```python
import torch

def _softmax(x, axis=-1):
    return torch.softmax(x, dim=axis)
def _gelu(x):
    return torch.nn.functional.gelu(x, approximate="tanh")
def _silu(x):
    return torch.nn.functional.silu(x)
def _sigmoid(x):
    return torch.sigmoid(x)
def _layernorm(x, axis=-1, eps=1e-5):
    m = x.mean(dim=axis, keepdim=True)
    v = x.var(dim=axis, keepdim=True, unbiased=False)
    return (x - m) / torch.sqrt(v + eps)
def _scatter_add(tgt, idx, src, axis=0):
    return tgt.clone().index_add_(axis, idx, src)
def _segment_sum(src, seg, n):
    out = torch.zeros((n,) + src.shape[1:], dtype=src.dtype)
    return out.index_add_(0, seg, src)
def _pad(x, pw):
    flat = tuple(v for pair in reversed(pw) for v in pair)
    return torch.nn.functional.pad(x, flat)

kernel_name = 'gated_mix__softmax_full_mha__geglu_ffn__prompt'

def setup_inputs():

    _w = (lambda a: (lambda t: t.to(torch.bfloat16) if t.is_floating_point() else t)(torch.as_tensor(a)))
    def _A_setup():
        B, S, D = 1, 2048, 640
        return {
            "x": _w((lambda *s: torch.randn(*s, dtype=torch.bfloat16) * 0.05)(B, S, D)),
            "wqkv": _w((lambda *s: torch.randn(*s, dtype=torch.bfloat16) * 0.8)(D, 3 * D)),
            "wo": _w((lambda *s: torch.randn(*s, dtype=torch.bfloat16) * 0.05)(D, D)),
        }
    _A_in = _A_setup()

    def _B_setup():
        B, S, D, F = 1, 2048, 640, 1728
        return {
            "x": _w((lambda *s: torch.randn(*s, dtype=torch.bfloat16) * 0.05)(B, S, D)),
            "w_gate": _w((lambda *s: torch.randn(*s, dtype=torch.bfloat16) * 0.1)(D, F)),
            "w_up": _w((lambda *s: torch.randn(*s, dtype=torch.bfloat16) * 0.1)(D, F)),
            "w_down": _w((lambda *s: torch.randn(*s, dtype=torch.bfloat16) * 0.1)(F, D)),
        }
    _B_in = _B_setup()

    return {
        "A_x": _A_in["x"],
        "A_wqkv": _A_in["wqkv"],
        "A_wo": _A_in["wo"],
        "B_x": _B_in["x"],
        "B_w_gate": _B_in["w_gate"],
        "B_w_up": _B_in["w_up"],
        "B_w_down": _B_in["w_down"],
        "gate_w": _w((lambda *s: torch.randn(*s, dtype=torch.bfloat16) * 0.05)(640) * 16.0),
    }

def reference(A_x, A_wqkv, A_wo, B_x, B_w_gate, B_w_up, B_w_down, gate_w):
    def _A_ref(x, wqkv, wo):
        B, S, D = x.shape
        H = 32; Dh = D // H
        qkv = (lambda x, *d: x.permute(*d))((x @ wqkv).reshape(B, S, 3, H, Dh), 2, 0, 3, 1, 4)
        q, k, v = qkv[0], qkv[1], qkv[2]
        scale = Dh ** -0.5
        scores = torch.einsum("bhqd,bhkd->bhqk", q, k) * scale
        p = _softmax(scores, axis=-1)
        o = torch.einsum("bhqk,bhkd->bhqd", p, v)
        return (lambda x, *d: x.permute(*d))(o, 0, 2, 1, 3).reshape(B, S, D) @ wo

    def _B_ref(x, w_gate, w_up, w_down):
        return (_gelu(x @ w_gate) * (x @ w_up)) @ w_down

    x = A_x
    g = _sigmoid((x * gate_w).sum(-1, keepdims=True))
    a = _A_ref(x, A_wqkv, A_wo)
    b = _B_ref(x, B_w_gate, B_w_up, B_w_down)
    return g * a + (1 - g) * b
```

```python
import re

class Kern:
    def __init__(self, name, block, grid, lds, vgpr, sgpr=96, accum=None):
        self.name, self.block, self.grid, self.lds = name, block, grid, lds
        self.vgpr, self.sgpr = vgpr, sgpr
        self.accum = accum if accum is not None else ((vgpr + 3) // 4) * 4
        self.lines = []
        self._n = 0
    def __call__(self, s=""):
        for l in s.split("\n"):
            l = l.strip()
            if l:
                self.lines.append(l)
    def label(self, l):
        self.lines.append(l + ":")
    def uniq(self, base):
        self._n += 1
        return f"L_{self.name}_{base}_{self._n}"
    def text(self):
        out = [f".globl {self.name}", ".p2align 8", f".type {self.name},@function", f"{self.name}:"]
        for l in self.lines:
            out.append(l if (l.endswith(":") or l.startswith(".")) else "    " + l)
        return "\n".join(out) + "\n"
    def desc(self):
        return f""".p2align 6
.amdhsa_kernel {self.name}
  .amdhsa_next_free_vgpr {self.vgpr}
  .amdhsa_next_free_sgpr {self.sgpr}
  .amdhsa_accum_offset {self.accum}
  .amdhsa_group_segment_fixed_size 0
  .amdhsa_kernarg_size 88
  .amdhsa_user_sgpr_count 2
  .amdhsa_user_sgpr_kernarg_segment_ptr 1
  .amdhsa_system_sgpr_workgroup_id_x 1
.end_amdhsa_kernel
"""

def vr(a, n=1):
    return f"v{a}" if n == 1 else f"v[{a}:{a+n-1}]"
def sr(a, n=1):
    return f"s{a}" if n == 1 else f"s[{a}:{a+n-1}]"

def assemble_file(header, kerns, launches):
    s = header
    for (k, grid) in launches:
        s += f"; @launch kernel={k.name} grid=({grid},1,1) block=({k.block},1,1) lds={k.lds}\n"
    s += '.amdgcn_target "amdgcn-amd-amdhsa--gfx950"\n.text\n'
    for k in kerns:
        s += k.text()
    s += '.section .rodata,"a"\n'
    for k in kerns:
        s += k.desc()
    return s

PROF_S = 64
WS_PROF = 0x8000000
def stamp(on, i):
    if not on: return ""
    if on == "rt": return f"s_memrealtime s[{PROF_S+2*i}:{PROF_S+2*i+1}]"
    return f"s_memtime s[{PROF_S+2*i}:{PROF_S+2*i+1}]\ns_memrealtime s[{PROF_S+16+2*i}:{PROF_S+17+2*i}]"
def prof_out(k, i, sWS, sW, v=100, mode=True):
    k("s_waitcnt vmcnt(0)")
    k(stamp(mode, i))
    k(f"""s_lshl_b32 s40, s2, 4
    s_add_u32 s40, s40, s{sW}
    s_lshl_b32 s40, s40, 6
    s_add_u32 s40, s40, {WS_PROF}
    s_add_u32 s44, s{sWS}, s40
    s_addc_u32 s45, s{sWS+1}, 0
    s_mov_b32 s46, 64
    s_mov_b32 s47, 0x00020000
    s_mov_b64 exec, 1
    v_mov_b32 v{v}, 0
    s_waitcnt lgkmcnt(0)""")
    for j in range(16):
        k(f"v_mov_b32 v{v+1}, s{PROF_S+2*j}")
        k(f"buffer_store_dword v{v+1}, v{v}, s[44:47], 0 offen offset:{4*j}")
    k("s_waitcnt vmcnt(0)")

_REG = re.compile(r"^(-|\|)?(?:abs\()?([vsa])(?:(\d+)|\[(\d+):(\d+)\])\)?\|?$")
def regs_of(op):
    op = op.strip()
    if op == "vcc": return [("s", "vcc_lo"), ("s", "vcc_hi")]
    if op in ("vcc_lo", "vcc_hi"): return [("s", op)]
    if op == "exec": return [("s", "exec_lo"), ("s", "exec_hi")]
    if op in ("exec_lo", "exec_hi", "m0"): return [("s", op)]
    m = _REG.match(op)
    if not m: return []
    f = m.group(2)
    if m.group(3) is not None: return [(f, int(m.group(3)))]
    return [(f, i) for i in range(int(m.group(4)), int(m.group(5)) + 1)]

TRANS = ("v_exp_", "v_log_", "v_rcp_", "v_rsq_", "v_sqrt_", "v_sin_", "v_cos_")

class Ins:
    def __init__(self, text, idx):
        self.text, self.idx = text, idx
        code = text.split(";")[0].strip()
        self.note = text.split(";", 1)[1] if ";" in text else ""
        parts = code.split(None, 1)
        self.op = parts[0]
        rest = parts[1] if len(parts) > 1 else ""
        ops, depth, cur = [], 0, ""
        for ch in rest:
            if ch in "[(": depth += 1
            if ch in "])": depth -= 1
            if ch == "," and depth == 0:
                ops.append(cur.strip()); cur = ""
            else: cur += ch
        if cur.strip(): ops.append(cur.strip())
        self.mods = ""
        if ops:
            last = ops[-1].split(None, 1)
            if len(last) > 1 and not self.op.startswith("s_waitcnt"):
                ops[-1] = last[0]; self.mods = last[1]
        self.ops = ops
        self.classify()
    def classify(self):
        op, ops = self.op, self.ops
        R = lambda l: [r for o in l for r in regs_of(o)]
        self.kind = "other"; self.dst = []; self.src = []
        self.passes = 0
        if op.startswith("v_mfma") or op.startswith("v_smfmac"):
            self.kind = "mfma"
            self.dst = R(ops[:1]); self.srcA = R(ops[1:2]); self.srcB = R(ops[2:3]); self.srcC = R(ops[3:4])
            self.src = self.srcA + self.srcB + self.srcC
            self.passes = 8 if "32x32" in op else 4
        elif op.startswith("v_"):
            self.kind = "valu"
            nd = 1
            if op.startswith(("v_add_co", "v_sub_co", "v_addc_co", "v_subb_co", "v_subrev_co", "v_div_scale", "v_mad_u64_u32")): nd = 2
            if op.startswith(("v_permlane32_swap", "v_permlane16_swap", "v_swap")):
                self.dst = R(ops); self.src = R(ops)
            else:
                self.dst = R(ops[:nd]); self.src = R(ops[nd:])
                if op.startswith(("v_fmac", "v_pk_fmac", "v_dot2c", "v_mac", "v_writelane")) or "UNUSED_PRESERVE" in self.mods or ("dpp" in op or "row_" in self.mods or "quad_perm" in self.mods):
                    self.src += self.dst
                if op.startswith("v_cmpx"): self.dst += regs_of("exec")
            if op == "v_nop": self.kind = "other"
        elif op.startswith("ds_"):
            self.kind = "ds"
            if op.startswith(("ds_read", "ds_bpermute", "ds_permute", "ds_swizzle")) or "_rtn" in op:
                self.dst = R(ops[:1]); self.src = R(ops[1:])
            else:
                self.src = R(ops)
        elif op.startswith("buffer_") or op.startswith("global_"):
            self.kind = "vmem"
            self.lds = (" lds" in " " + self.mods) or "_lds_" in op
            if op.startswith(("buffer_wbl2", "buffer_inv")):
                pass
            elif "load" in op and not self.lds:
                self.dst = R(ops[:1]); self.src = R(ops[1:])
            elif "atomic" in op and "sc0" in self.mods and op.startswith("buffer_"):
                self.dst = R(ops[:1]); self.src = R(ops)
            elif "atomic" in op and "sc0" in self.mods:
                self.dst = R(ops[:1]); self.src = R(ops[1:])
            else:
                self.src = R(ops)
            if self.lds: self.src += regs_of("m0")
            self.store_data = []
            if "store" in op and ("x3" in op or "x4" in op):
                self.store_data = R(ops[:1]) if op.startswith("buffer_") else R(ops[1:2])
        elif op.startswith(("s_load", "s_buffer_load", "s_memtime", "s_memrealtime", "s_atomic")):
            self.kind = "smem"
            self.dst = R(ops[:1]); self.src = R(ops[1:])
        elif op.startswith("s_"):
            self.kind = "salu"
            if op.startswith(("s_cmp", "s_cbranch", "s_branch", "s_waitcnt", "s_barrier", "s_nop", "s_endpgm", "s_setprio", "s_sleep", "s_bitcmp", "s_setreg")):
                self.src = R(ops)
            else:
                self.dst = R(ops[:1]); self.src = R(ops[1:])
                if "saveexec" in op: self.dst += regs_of("exec")
        self.trans = op.startswith(TRANS)

def _imm(x):
    try:
        if x.startswith("0x") or x.startswith("-0x"): return int(x, 16) & 0xffffffff
        return int(x) & 0xffffffff
    except Exception:
        return None

def check(kern, init=None, branch=None, maxsteps=400000, verbose=False):
    init = dict(init or {}); branch = dict(branch or {})
    ins, labels = [], {}
    for l in kern.lines:
        if l.endswith(":"): labels[l[:-1]] = len(ins)
        elif l.startswith(".") or l.startswith(";"): continue
        else: ins.append(Ins(l, len(ins)))
    S = {}
    if "wg" in init: S[2] = init["wg"]
    scc = None
    errs = []
    t = 0
    lastw = {}
    mfma_c = []
    stores = []
    vmq, lgq = [], []
    pc, steps = 0, 0
    seen = set()
    def err(msg, i, j=None):
        key = (msg, i.idx, j.idx if j else None)
        if key not in seen:
            seen.add(key)
            errs.append(f"{kern.name}: {msg}: [{i.idx}] {i.text}" + (f"   <- [{j.idx}] {j.text}" if j else ""))
    def val(o):
        r = regs_of(o)
        if len(r) == 1 and r[0][0] == "s": return S.get(r[0][1])
        if r: return None
        return _imm(o)
    counts = {}
    while pc < len(ins) and steps < maxsteps:
        i = ins[pc]; steps += 1
        counts[i.kind] = counts.get(i.kind, 0) + 1
        touched = set(i.src) | set(i.dst)
        for q, nm in ((vmq, "vmcnt"), (lgq, "lgkmcnt")):
            for (d, j) in q:
                if d & touched:
                    if i.kind in ("ds", "vmem") and i.kind == j.kind and not (d & set(i.src)):
                        continue
                    err(f"register of outstanding load used before {nm} wait", i, j)
        def need(regs, n, pred, msg):
            for r in regs:
                w = lastw.get(r)
                if w and pred(w[1]) and t - w[0] < n:
                    err(f"{msg} needs {n} wait states, has {t - w[0]}", i, w[1])
        isv = lambda j: j.kind == "valu"
        ism = lambda j: j.kind == "mfma"
        if i.kind == "mfma":
            need(i.src, 2, isv, "VALU->MFMA")
            for r in i.srcA + i.srcB:
                w = lastw.get(r)
                if w and ism(w[1]) and t - w[0] < w[1].passes + 4: err("MFMA D->MFMA A/B", i, w[1])
            for r in i.srcC:
                w = lastw.get(r)
                if w and ism(w[1]) and not (w[1].dst == i.srcC and w[1].passes == i.passes) and t - w[0] < w[1].passes + 2:
                    err("MFMA D->MFMA C overlap", i, w[1])
            need(regs_of("exec"), 4, isv, "VALU exec->MFMA")
        if i.kind in ("valu", "vmem", "ds"):
            for r in set(i.src) | set(i.dst):
                w = lastw.get(r)
                if w and ism(w[1]) and t - w[0] < w[1].passes + 4:
                    err(f"MFMA D->VALU/mem needs {w[1].passes+4}, has {t-w[0]}", i, w[1])
        if i.kind == "valu":
            for (tm, j) in mfma_c:
                if t - tm < j.passes - 1 and set(j.srcC) & set(i.dst): err("MFMA C WAR", i, j)
            if not i.trans: need(i.src, 1, lambda j: j.trans, "trans->VALU")
            sg = [r for r in i.src if r[0] == "s"]
            need(sg, 2, isv, "VALU sgpr->VALU const")
            if i.op.startswith(("v_readfirstlane", "v_readlane")):
                need([r for r in i.src if r[0] == "v"], 1, isv, "VALU->readlane")
                need(sg, 4, isv, "VALU sgpr->lane select")
            if i.op.startswith("v_permlane"): need(i.src, 2, isv, "VALU->permlane")
            if "dpp" in i.op or "row_" in i.mods or "quad_perm" in i.mods: need([r for r in i.src if r[0] == "v"], 2, isv, "VALU->DPP")
            need(i.src, 1, lambda j: j.kind == "valu" and ("sdwa" in j.op or ("op_sel:" in j.mods and not j.op.startswith("v_pk_"))), "SDWA/opsel->VALU")
            for (tm, rg, j) in stores:
                if t - tm < 2 and rg & set(i.dst): err("store data WAR", i, j)
        elif i.dst:
            for (tm, rg, j) in stores:
                if t - tm < 1 and rg & set(i.dst): err("store data WAR", i, j)
        if i.kind == "vmem":
            need([r for r in i.src if r[0] == "s"], 5, isv, "VALU sgpr->VMEM")
            if i.lds: need(regs_of("m0"), 1, lambda j: j.kind == "salu", "M0->LDS DMA")
        if i.kind == "salu" and i.op.startswith("s_cbranch_vcc"):
            pass
        nxt = pc + 1
        op, o = i.op, i.ops
        dt = 1
        if op == "s_nop": dt = int(o[0]) + 1
        if op == "s_endpgm": break
        if op == "s_waitcnt":
            txt = i.text.split(";")[0]
            m = re.search(r"vmcnt\((\d+)\)", txt)
            if m:
                n = int(m.group(1));
                while len(vmq) > n: vmq.pop(0)
            m = re.search(r"lgkmcnt\((\d+)\)", txt)
            if m:
                n = int(m.group(1))
                if n > 0 and any(j.kind == "smem" for _, j in lgq): err("counted lgkmcnt with SMEM outstanding", i)
                while len(lgq) > n: lgq.pop(0)
        if i.kind == "vmem" and not op.startswith(("buffer_inv",)):
            vmq.append((set(i.dst), i))
            if len(vmq) > 63: err("more than 63 vmem outstanding (counter saturates; fine only if waits account for it)", i)
            if getattr(i, "store_data", None): stores.append((t + 1, set(i.store_data), i)); stores = stores[-4:]
        if i.kind in ("ds", "smem"):
            lgq.append((set(i.dst), i))
        if i.kind in ("valu", "mfma", "salu"):
            for r in i.dst: lastw[r] = (t + dt, i)
        else:
            for r in i.dst: lastw.pop(r, None)
        if i.kind == "mfma":
            mfma_c.append((t + 1, i)); mfma_c = mfma_c[-4:]
        for r in i.dst:
            if r[0] == "s" and i.kind != "salu": S.pop(r[1], None)
        if i.kind == "salu":
            d = i.dst[0][1] if (i.dst and len(regs_of(o[0])) == 1) else None
            a = val(o[1]) if len(o) > 1 else None
            b = val(o[2]) if len(o) > 2 else None
            both = a is not None and b is not None
            M = 0xffffffff
            res = None
            if op in ("s_mov_b32", "s_movk_i32"): res = a
            elif op in ("s_add_u32", "s_add_i32"):
                res = (a + b) & M if both else None; scc = ((a + b) >> 32) if both else None
            elif op in ("s_sub_u32", "s_sub_i32"):
                res = (a - b) & M if both else None; scc = int(a < b) if both else None
            elif op == "s_addk_i32":
                c = S.get(d); res = (c + a) & M if c is not None and a is not None else None; scc = None
            elif op == "s_mul_i32": res = (a * b) & M if both else None
            elif op == "s_mul_hi_u32": res = (a * b) >> 32 if both else None
            elif op == "s_lshl_b32": res = (a << (b & 31)) & M if both else None; scc = None if res is None else int(res != 0)
            elif op == "s_lshr_b32": res = a >> (b & 31) if both else None; scc = None if res is None else int(res != 0)
            elif op == "s_and_b32": res = a & b if both else None; scc = None if res is None else int(res != 0)
            elif op == "s_or_b32": res = a | b if both else None; scc = None if res is None else int(res != 0)
            elif op == "s_xor_b32": res = a ^ b if both else None; scc = None if res is None else int(res != 0)
            elif op == "s_min_u32": res = min(a, b) if both else None; scc = None
            elif op == "s_cselect_b32": res = None if scc is None else (a if scc else b)
            elif op.startswith("s_cmp_") or op.startswith("s_cmpk_"):
                x, y = val(o[0]), val(o[1])
                if x is None or y is None: scc = None
                else:
                    c = op.split("_")[2]
                    if op.endswith("i32"):
                        x = x - (1 << 32) if x >> 31 else x; y = y - (1 << 32) if y >> 31 else y
                    scc = int({"eq": x == y, "lg": x != y, "lt": x < y, "le": x <= y, "gt": x > y, "ge": x >= y}[c])
            elif op == "s_branch": nxt = labels[o[0]]
            elif op in ("s_cbranch_scc0", "s_cbranch_scc1"):
                tk = branch.get(o[0], False) if scc is None else (scc == int(op[-1]))
                if tk: nxt = labels[o[0]]
            elif op.startswith("s_cbranch"):
                if branch.get(o[0], False): nxt = labels[o[0]]
            elif op in ("s_waitcnt", "s_barrier", "s_nop", "s_setprio", "s_sleep"): pass
            else:
                if not op.startswith(("s_mov_b64", "s_getreg", "s_setreg")): scc = None
            if i.dst:
                for r in i.dst: S.pop(r[1], None)
                if d is not None and res is not None: S[d] = res
        m = re.search(r"@set s(\d+)=(\w+)", i.note)
        if m and m.group(2) in init: S[int(m.group(1))] = init[m.group(2)]
        t += dt
        pc = nxt
    if steps >= maxsteps: errs.append(f"{kern.name}: trace did not end")
    if verbose: print(kern.name, init, "steps", steps, counts)
    return errs
```

```python
S, D, H, DH, F = 2048, 640, 32, 20, 1728
WS_KV = 0
KV_TILE = 2560
KV_HEAD = 64 * KV_TILE
WS_Q = 0x500000
Q_TILE = 1280
NSTEP = 74
STEP_O = 54
STEP_OT = 70
WS_A2 = 0x800000
A2_BLK = NSTEP * 4096
WS_B2 = 0x1200000
B2_BLK = NSTEP * 5120
WS_G = 0x1600000
WS_SYNC = 0x1700000
SY_STRIDE = 1280
SY_CNT, SY_FLAG, SY_P1, SY_P1F, SY_N = 0, 6, 12, 28, 44
QSCALE = (20 ** -0.5) * 1.4426950408889634

def ffn_block(fb):
    return (11 * fb, 11) if fb < 8 else (88 + 10 * (fb - 8), 10)
def wave_slots(fb, cg):
    if fb < 8:
        if cg < 2: return (3 * cg, 3 * cg + 1, 3 * cg + 2), 'full', (40 + fb, cg)
        return (2 * cg + 2, 2 * cg + 3, 10), ('lo', 'hi')[cg - 2], (50 + fb // 2, fb & 1)
    return (2 * cg, 2 * cg + 1, 8 + cg // 2), ('lo', 'hi')[cg & 1], (40 + fb, cg // 2)
def k_order():
    ko = [[[None] * 8 for _ in range(4)] for _ in range(NSTEP)]
    for fb in range(10):
        p0, n = ffn_block(fb)
        for cg in range(4):
            sl, mode, (st2, half) = wave_slots(fb, cg)
            for kg in range(4):
                for j in range(8):
                    ko[fb * 4 + cg][kg][j] = 16 * (p0 + sl[j >> 2]) + 4 * kg + (j & 3)
            for k2 in range(2):
                for j in range(8):
                    ko[st2][2 * half + k2][j] = 16 * (p0 + sl[2]) + 4 * k2 + 8 * (j >> 2) + (j & 3)
    for m in range(16):
        for kg in range(4):
            for j in range(8):
                ko[STEP_O + m][kg][j] = F + 20 * (2 * m + (kg >> 1)) + 4 * (kg & 1) + 8 * (j >> 2) + (j & 3)
    for m in range(4):
        for kg in range(4):
            for j in range(8):
                ko[STEP_OT + m][kg][j] = F + 20 * (8 * m + 2 * kg + (j >> 2)) + 16 + (j & 3)
    flat = sorted(x for a in ko for b in a for x in b)
    assert flat == list(range(F + D))
    return ko
CB_TABLE = [10, 0, 1, 2, 11, 3, 4, 5, 12, 14, 6, 7, 13, 15, 8, 9]
if __name__ == "__main__":
    k_order()
    for M, d, n in ((2979, 22, 768), (1561, 42, 1536), (3277, 20, 320)):
        assert all((u * M) >> 16 == u // d for u in range(n)), (M, d)
    print("ok")
```

```python
from asmlib import *
from layout import *
import struct
def f32hex(x): return "0x%08x" % struct.unpack("<I", struct.pack("<f", x))[0]

sWS, sDBG, sW = 4, 6, 3
sX, sWt, sO = 8, 12, 16
sRb, sCb, sTg, sCg = 20, 21, 22, 23
sT = [24, 25, 26, 27, 28, 29, 30, 31]
sM0x, sM0w = 32, [33, 34, 35]
sSoX, sSoW, sStr = 36, 37, 38
sFb0, sMode, sSt2 = 39, 40, 41
sC = 42
sPtr = 48
X_SLOT, W_BASE, W_SLOT, W_UP = 16384, 49152, 22528, 11264
vDx, vDw = 1, [2, 3, 4]
vXa = [[5, 6], [7, 8]]
vWa, vWb = [9, 10], [11, 12]
FR = [16, 56]
ACC = 96
HP = 192
SC1 = " sc1"

def p1_setup(k, prof=False):
    t = sT
    lo = sum(CB_TABLE[i] << (4 * i) for i in range(8)); hi = sum(CB_TABLE[8 + i] << (4 * i) for i in range(8))
    k(f"""
    s_load_dwordx16 s[{sPtr}:{sPtr+15}], s[0:1], 0
    s_load_dwordx2 s[{sWS}:{sWS+1}], s[0:1], 80
    s_load_dwordx2 s[{sDBG}:{sDBG+1}], s[0:1], 72
    {stamp(prof, 0)}
    v_lshrrev_b32 v1, 6, v0
    v_and_b32 v0, 63, v0
    s_and_b32 s{t[0]}, s2, 1
    v_readfirstlane_b32 s{sW}, v1
    s_lshl_b32 s{t[0]}, s{t[0]}, 3
    s_lshr_b32 s{t[1]}, s2, 3
    s_and_b32 s{t[2]}, s{t[1]}, 7
    s_add_u32 s{sRb}, s{t[0]}, s{t[2]}
    s_lshr_b32 s{t[1]}, s{t[1]}, 3
    s_and_b32 s{t[0]}, s2, 2
    s_lshl_b32 s{t[0]}, s{t[0]}, 1
    s_add_u32 s{t[1]}, s{t[1]}, s{t[0]}
    s_lshl_b32 s{t[1]}, s{t[1]}, 2
    s_and_b32 s{t[0]}, s2, 4
    s_mov_b32 s{t[2]}, {hex(hi)}
    s_cmp_eq_u32 s{t[0]}, 0
    s_cselect_b32 s{t[0]}, {hex(lo)}, s{t[2]}
    s_lshr_b32 s{t[0]}, s{t[0]}, s{t[1]}
    s_and_b32 s{sCb}, s{t[0]}, 15
    s_and_b32 s{sTg}, s{sW}, 1
    s_lshr_b32 s{sCg}, s{sW}, 1
    """)
    k(f"""
    s_lshl_b32 s{sM0x}, s{sW}, 10
    s_lshl_b32 s{t[0]}, s{sW}, 2
    v_lshrrev_b32 v5, 4, v0
    v_add_u32 v5, s{t[0]}, v5
    v_xor_b32 v5, v5, v0
    v_and_b32 v5, 7, v5
    v_lshlrev_b32 v5, 4, v5
    v_lshrrev_b32 v6, 3, v0
    s_mul_i32 s{t[0]}, s{sW}, {8*1280}
    v_mul_u32_u24 v6, 1280, v6
    v_add3_u32 v{vDx}, v5, v6, s{t[0]}
    s_mul_i32 s{t[1]}, s{sRb}, {128*1280}
    s_mov_b32 s{sX+2}, {128*1280}
    s_mov_b32 s{sX+3}, 0x00020000
    s_mov_b32 s{sWt+3}, 0x00020000
    s_mov_b32 s{sO+3}, 0x00020000
    """)
    LQ, LJ = k.uniq("qkvpar"), k.uniq("parj")
    k(f"""
    s_cmp_ge_u32 s{sCb}, 10
    s_cbranch_scc1 {LQ}
    s_mul_i32 s{sFb0}, s{sCb}, 11
    s_cmp_eq_u32 s{sCb}, 9
    s_cselect_b32 s{sFb0}, 98, s{sFb0}
    s_mov_b32 s{t[2]}, 2979
    s_mov_b32 s{t[3]}, 22
    s_mov_b32 s{t[4]}, 3456
    s_lshl_b32 s{t[5]}, s{sFb0}, 5
    s_and_b32 s{t[6]}, s{sW}, 3
    s_mov_b32 s{t[7]}, 4
    s_mov_b32 s{sC}, 22
    s_lshr_b32 s{sC+1}, s{sW}, 2
    s_mul_i32 s{sC+1}, s{sC+1}, {W_UP}
    s_mov_b32 s{sWt+2}, {640*3456}
    s_cmp_lt_u32 s{sW}, 4
    s_waitcnt lgkmcnt(0)
    s_cselect_b32 s{sWt}, s{sPtr+8}, s{sPtr+10}
    s_cselect_b32 s{sWt+1}, s{sPtr+9}, s{sPtr+11}
    s_branch {LJ}
    {LQ}:
    s_mov_b32 s{t[2]}, 1561
    s_mov_b32 s{t[3]}, 42
    s_mov_b32 s{t[4]}, 3840
    s_sub_u32 s{t[5]}, s{sCb}, 10
    s_mul_i32 s{t[5]}, s{t[5]}, 640
    s_mov_b32 s{t[6]}, s{sW}
    s_mov_b32 s{t[7]}, 8
    s_mov_b32 s{sC}, 40
    s_mov_b32 s{sC+1}, 0
    s_mov_b32 s{sWt+2}, {640*3840}
    s_waitcnt lgkmcnt(0)
    s_mov_b32 s{sWt}, s{sPtr+2}
    s_mov_b32 s{sWt+1}, s{sPtr+3}
    {LJ}:
    s_add_u32 s{sX}, s{sPtr}, s{t[1]}
    s_addc_u32 s{sX+1}, s{sPtr+1}, 0
    s_lshl_b32 s{sStr}, s{t[4]}, 5
    s_mov_b32 s{sSoX}, 0
    s_mov_b32 s{sSoW}, 0
    s_mov_b32 m0, s{sM0x}
    s_mov_b32 s{t[0]}, {64*1280}
    buffer_load_dwordx4 v{vDx}, s[{sX}:{sX+3}], 0 offen lds
    s_add_u32 m0, s{sM0x}, 8192
    v_mov_b32 v13, 0x7fff0000
    buffer_load_dwordx4 v{vDx}, s[{sX}:{sX+3}], s{t[0]} offen lds
    """)
    for i in range(3):
        k(f"""
        s_lshl_b32 s{t[0]}, s{t[6]}, 6
        v_add_u32 v5, s{t[0]}, v0
        v_mul_u32_u24 v6, s{t[2]}, v5
        v_lshrrev_b32 v6, 16, v6
        v_mul_u32_u24 v7, s{t[3]}, v6
        v_sub_u32 v7, v5, v7
        v_and_b32 v8, 0x13, v6
        v_and_b32 v9, 4, v6
        v_lshl_or_b32 v8, v9, 1, v8
        v_and_b32 v9, 8, v6
        v_lshrrev_b32 v9, 1, v9
        v_or_b32 v8, v8, v9
        v_mul_u32_u24 v8, s{t[4]}, v8
        v_cmp_gt_u32 vcc, s{sC}, v7
        v_lshl_add_u32 v8, v7, 4, v8
        v_add_u32 v8, s{t[5]}, v8
        v_cndmask_b32 v8, v13, v8, vcc
        v_cmp_gt_u32 vcc, 32, v6
        s_lshl_b32 s{t[0]}, s{t[6]}, 10
        s_add_u32 s{t[0]}, s{t[0]}, s{sC+1}
        v_cndmask_b32 v{vDw[i]}, v13, v8, vcc
        s_lshl_b32 s{t[1]}, s{t[6]}, 1
        s_cmp_lt_u32 s{t[1]}, s{t[3]}
        s_cselect_b32 s{sM0w[i]}, s{t[0]}, {163840 - W_BASE}
        s_add_u32 m0, s{sM0w[i]}, {W_BASE}
        s_add_u32 s{t[6]}, s{t[6]}, s{t[7]}
        buffer_load_dwordx4 v{vDw[i]}, s[{sWt}:{sWt+3}], 0 offen lds
        """)

def dma_group(n, NW):
    out = []
    if n >= 20: return out
    out.append([f"s_add_u32 s{sSoW}, s{sSoW}, s{sStr}"])
    for i in range(3):
        out.append([f"s_add_u32 m0, s{sM0w[i]}, {W_BASE + (n % NW) * W_SLOT}", None, f"buffer_load_dwordx4 v{vDw[i]}, s[{sWt}:{sWt+3}], s{sSoW} offen lds"])
    if n % 2 == 0:
        c = n // 2
        for h in range(2):
            out.append([f"s_add_u32 m0, s{sM0x}, {(c % 3) * X_SLOT + h * 8192}", f"s_mov_b32 s{sSoX}, {h * 64 * 1280 + c * 128}",
                        f"buffer_load_dwordx4 v{vDx}, s[{sX}:{sX+3}], s{sSoX} offen lds"])
    return out
def ndma(n): return 0 if n >= 20 else (5 if n % 2 == 0 else 3)

def p1_addr(k, var):
    t = sT
    pitch = 352 if var[0] == 'F' else 672
    k(f"""
    v_and_b32 v13, 15, v0
    v_lshrrev_b32 v14, 4, v0
    v_lshrrev_b32 v15, 1, v13
    v_xor_b32 v15, v15, v14
    v_lshlrev_b32 v15, 4, v15
    v_lshl_add_u32 v15, v13, 7, v15
    s_lshl_b32 s{t[0]}, s{sTg}, 13
    """)
    if var == 'F20':
        k(f"""
        s_cmp_eq_u32 s{sMode}, 2
        s_cselect_b32 s{t[1]}, 4096, 0
        s_add_u32 s{t[0]}, s{t[0]}, s{t[1]}
        """)
    k(f"""
    v_add_u32 v{vXa[0][0]}, s{t[0]}, v15
    v_xor_b32 v{vXa[0][1]}, 4096, v{vXa[0][0]}
    v_xor_b32 v{vXa[1][0]}, 64, v{vXa[0][0]}
    v_xor_b32 v{vXa[1][1]}, 64, v{vXa[0][1]}
    v_lshrrev_b32 v13, 2, v0
    v_and_b32 v15, 7, v13
    v_and_b32 v13, 8, v13
    v_lshl_or_b32 v15, v13, 1, v15
    v_mul_u32_u24 v15, {pitch}, v15
    v_and_b32 v13, 3, v0
    v_mul_u32_u24 v13, {40 if var == 'QK' else 8}, v13
    """)
    if var[0] == 'F':
        k(f"""
        s_lshl_b32 s{t[0]}, s{t[2]}, 5
        s_add_u32 s{t[0]}, s{t[0]}, {W_BASE}
        s_lshl_b32 s{t[1]}, s{t[3]}, 5
        s_add_u32 s{t[1]}, s{t[1]}, {W_BASE}
        v_add3_u32 v{vWa[0]}, v13, v15, s{t[0]}
        v_add3_u32 v{vWb[0]}, v13, v15, s{t[1]}
        v_add_u32 v{vWa[1]}, {2*W_SLOT}, v{vWa[0]}
        v_add_u32 v{vWb[1]}, {2*W_SLOT}, v{vWb[0]}
        """)
    else:
        k(f"""
        s_mul_i32 s{t[0]}, s{sCg}, 160
        s_add_u32 s{t[0]}, s{t[0]}, {W_BASE}
        v_add3_u32 v{vWa[0]}, v13, v15, s{t[0]}
        v_add_u32 v{vWa[1]}, {2*W_SLOT}, v{vWa[0]}
        """)

def frag_reads(var, s, NW):
    fs = FR[s & 1]
    out = []
    for tt in range(4):
        out.append(f"ds_read_b128 v[{fs+4*tt}:{fs+4*tt+3}], v{vXa[s & 1][tt >> 1]} offset:{((s // 2) % 3) * X_SLOT + (tt & 1) * 2048}")
    slot = s % NW
    hb = 1 if slot >= 2 else 0
    so = (slot - 2 * hb) * W_SLOT
    w0 = fs + 16
    if var[0] == 'F':
        for sl in range(3):
            for up in range(2):
                r = w0 + 4 * (2 * sl + up)
                a = vWa[hb] if sl < 2 else vWb[hb]
                for j in range(2):
                    out.append(f"ds_read_b64_tr_b16 v[{r+2*j}:{r+2*j+1}], v{a} offset:{so + up * W_UP + (32 if sl == 1 else 0) + j * 8 * 352}")
    else:
        for tl in range(5):
            r = w0 + 4 * tl
            for j in range(2):
                out.append(f"ds_read_b64_tr_b16 v[{r+2*j}:{r+2*j+1}], v{vWa[hb]} offset:{so + tl * (8 if var == 'QK' else 32) + j * 8 * 672}")
    return out

def acc_reg(var, tt, c):
    return ACC + 4 * (tt * (6 if var[0] == 'F' else 5) + c)
def mfmas(var, s):
    fs = FR[s & 1]
    out = []
    nc = 6 if var[0] == 'F' else 5
    for tt in range(4):
        for c in range(nc):
            if var == 'F20' and tt >= 2 and c >= 4: continue
            d = acc_reg(var, tt, c)
            X, W = f"v[{fs+4*tt}:{fs+4*tt+3}]", f"v[{fs+16+4*c}:{fs+19+4*c}]"
            a, b = (X, W) if var == 'V' else (W, X)
            out.append(f"v_mfma_f32_16x16x32_bf16 v[{d}:{d+3}], {a}, {b}, " + ("0" if s == 0 else f"v[{d}:{d+3}]"))
    return out

def p1_loop(k, var, NW, prof=False, compute=True):
    for n in range(1, NW):
        for g in dma_group(n, NW):
            for x in g: k(x if x else "s_nop 0")
    p1_addr(k, var)
    out_after = lambda s, last: sum(ndma(n) for n in range(s + 2, last + 1))
    k(f"s_waitcnt vmcnt({out_after(-1, NW - 1)})")
    k("s_barrier")
    k(stamp(prof, 1))
    for x in frag_reads(var, 0, NW): k(x)
    for s in range(20):
        k(f"s_waitcnt vmcnt({out_after(s, s - 1 + NW)}) lgkmcnt(0)")
        k("s_barrier")
        if prof == "rt" and s % 2 == 1: k(stamp(prof, 2 + s // 2))
        m = mfmas(var, s) if compute else []
        r = frag_reads(var, s + 1, NW) if (s < 19 and compute) else []
        g = dma_group(s + NW, NW)
        seq = []
        ri = gi = 0
        for i, x in enumerate(m):
            seq.append(x)
            if ri < len(r):
                seq += r[ri:ri + 2]; ri += 2
            elif gi < len(g) and (i % 2 == 0):
                y = g[gi]; gi += 1
                if len(y) == 1 and gi < len(g):
                    seq += y; y = g[gi]; gi += 1
                    y = [y[0], None, y[2]]
                seq += [z if z else "s_nop 0" for z in y]
        for y in g[gi:]: seq += [z if z else "s_nop 0" for z in y]
        for x in seq: k(x)
    k(stamp(prof, 12 if prof == 'rt' else 2))

def ffn_wave_params(k):
    t = sT
    L10, LJ = k.uniq("b10"), k.uniq("bj")
    k(f"""
    s_cmp_ge_u32 s{sCb}, 8
    s_cbranch_scc1 {L10}
    s_mul_i32 s{t[2]}, s{sCg}, 3
    s_add_u32 s{t[3]}, s{t[2]}, 2
    s_add_u32 s{t[0]}, s{sCb}, 40
    s_lshl_b32 s{t[0]}, s{t[0]}, 3
    s_add_u32 s{t[0]}, s{t[0]}, s{sCg}
    s_lshl_b32 s{t[4]}, s{sCg}, 1
    s_add_u32 s{t[4]}, s{t[4]}, 2
    s_lshr_b32 s{t[1]}, s{sCb}, 1
    s_add_u32 s{t[1]}, s{t[1]}, 50
    s_lshl_b32 s{t[1]}, s{t[1]}, 3
    s_and_b32 s{t[5]}, s{sCb}, 1
    s_add_u32 s{t[1]}, s{t[1]}, s{t[5]}
    s_sub_u32 s{sMode}, s{sCg}, 1
    s_cmp_lt_u32 s{sCg}, 2
    s_cselect_b32 s{t[2]}, s{t[2]}, s{t[4]}
    s_cselect_b32 s{t[3]}, s{t[3]}, 10
    s_cselect_b32 s{sSt2}, s{t[0]}, s{t[1]}
    s_cselect_b32 s{sMode}, 0, s{sMode}
    s_branch {LJ}
    {L10}:
    s_lshl_b32 s{t[2]}, s{sCg}, 1
    s_lshr_b32 s{t[0]}, s{sCg}, 1
    s_add_u32 s{t[3]}, s{t[0]}, 8
    s_add_u32 s{sSt2}, s{sCb}, 40
    s_lshl_b32 s{sSt2}, s{sSt2}, 3
    s_add_u32 s{sSt2}, s{sSt2}, s{t[0]}
    s_and_b32 s{sMode}, s{sCg}, 1
    s_add_u32 s{sMode}, s{sMode}, 1
    {LJ}:
    s_lshl_b32 s{sSt2}, s{sSt2}, 9
    """)

def gelu_math(k, var):
    c1 = -2.0 * 1.4426950408889634 * (2.0 / 3.141592653589793) ** 0.5
    k(f"""
    s_mov_b32 s{sC}, {f32hex(c1)}
    s_mov_b32 s{sC+1}, {f32hex(c1)}
    s_mov_b32 s{sC+2}, {f32hex(c1 * 0.044715)}
    s_mov_b32 s{sC+3}, {f32hex(c1 * 0.044715)}
    v_mov_b32 v14, s{sC}
    v_mov_b32 v15, s{sC}
    """)
    items = []
    for tt in range(4):
        for sl in range(2): items.append((tt, sl, HP + 4 * tt + 2 * sl))
    for tt in range(4 if var == 'F24' else 2): items.append((tt, 2, HP + 16 + 2 * tt))
    P = lambda r: f"v[{r}:{r+1}]"
    def stage(n, ph):
        tt, sl, dst = items[n]
        g, u = acc_reg(var, tt, 2 * sl), acc_reg(var, tt, 2 * sl + 1)
        z = 16 + 4 * (n % 4)
        if ph == 0:
            return [f"v_pk_mul_f32 {P(z+2*h)}, {P(g+2*h)}, {P(g+2*h)}" for h in range(2)] + \
                   [f"v_pk_fma_f32 {P(z+2*h)}, {P(z+2*h)}, s[{sC+2}:{sC+3}], v[14:15]" for h in range(2)] + \
                   [f"v_pk_mul_f32 {P(z+2*h)}, {P(z+2*h)}, {P(g+2*h)}" for h in range(2)]
        if ph == 1:
            return [f"v_exp_f32 v{z+i}, v{z+i}" for i in range(4)] + [f"v_pk_mul_f32 {P(u+2*h)}, {P(u+2*h)}, {P(g+2*h)}" for h in range(2)] + \
                   [f"v_pk_add_f32 {P(z+2*h)}, {P(z+2*h)}, 1.0 op_sel_hi:[1,0]" for h in range(2)]
        return [f"v_rcp_f32 v{z+i}, v{z+i}" for i in range(4)] + ["s_nop 0"] + [f"v_pk_mul_f32 {P(u+2*h)}, {P(u+2*h)}, {P(z+2*h)}" for h in range(2)] + \
               [f"v_cvt_pk_bf16_f32 v{dst+h}, v{u+2*h}, v{u+2*h+1}" for h in range(2)]
    out = []
    for n in range(len(items)):
        for ph in range(3): out += stage(n, ph)
    return out

def h_store_setup(k, var):
    t = sT
    k(f"""
    s_lshl_b32 s{t[0]}, s{sRb}, 1
    s_add_u32 s{t[0]}, s{t[0]}, s{sTg}
    s_mul_i32 s{t[0]}, s{t[0]}, {A2_BLK}
    s_add_u32 s{t[0]}, s{t[0]}, {WS_A2}
    s_add_u32 s{sO}, s{sWS}, s{t[0]}
    s_addc_u32 s{sO+1}, s{sWS+1}, 0
    s_mov_b32 s{sO+2}, {A2_BLK}
    s_lshl_b32 s{t[0]}, s{sCb}, 2
    s_add_u32 s{t[0]}, s{t[0]}, s{sCg}
    s_lshl_b32 s{t[0]}, s{t[0]}, 12
    s_cmp_eq_u32 s{sMode}, 2
    s_cselect_b32 s{t[1]}, 2048, 0
    s_add_u32 s{t[0]}, s{t[0]}, s{t[1]}
    s_add_u32 s{t[1]}, s{t[1]}, s{sSt2}
    v_lshlrev_b32 v13, 4, v0
    v_add_u32 v{HP+24}, s{t[0]}, v13
    v_xor_b32 v{HP+25}, 2048, v{HP+24}
    v_and_b32 v{HP+26}, 512, v13
    v_add3_u32 v{HP+26}, v{HP+26}, v13, s{t[1]}
    """)
def h_stores(var):
    out = []
    for pr in range(2 if var == 'F24' else 1):
        for h in range(2): out.append(f"v_permlane32_swap_b32 v{HP+16+4*pr+h}, v{HP+18+4*pr+h}")
    for tt in range(4):
        out.append(f"buffer_store_dwordx4 v[{HP+4*tt}:{HP+4*tt+3}], v{HP+24+(tt>>1)}, s[{sO}:{sO+3}], 0 offen offset:{(tt&1)*1024}{SC1}")
    for pr in range(2 if var == 'F24' else 1):
        out.append(f"buffer_store_dwordx4 v[{HP+16+4*pr}:{HP+19+4*pr}], v{HP+26}, s[{sO}:{sO+3}], 0 offen offset:{pr*2048}{SC1}")
    return out

def qk_epilogue(k):
    t = sT
    LK, LJ = k.uniq("isk"), k.uniq("qkj")
    k(f"""
    s_and_b32 s{t[3]}, s{sCb}, 1
    s_lshl_b32 s{t[3]}, s{t[3]}, 2
    s_add_u32 s{t[3]}, s{t[3]}, s{sCg}
    s_lshl_b32 s{t[3]}, s{t[3]}, 8
    s_lshl_b32 s{t[4]}, s{sRb}, 2
    s_add_u32 s{t[3]}, s{t[3]}, s{t[4]}
    s_lshl_b32 s{t[4]}, s{sTg}, 1
    s_add_u32 s{t[3]}, s{t[3]}, s{t[4]}
    v_and_b32 v13, 15, v0
    v_lshrrev_b32 v14, 4, v0
    s_cmp_ge_u32 s{sCb}, 12
    s_cbranch_scc1 {LK}
    s_mov_b32 s{t[0]}, {WS_Q}
    s_mov_b32 s{t[1]}, {Q_TILE}
    s_mov_b32 s{t[5]}, 16
    s_mov_b32 s{sC}, {f32hex(QSCALE)}
    s_mov_b32 s{sC+1}, {f32hex(QSCALE)}
    """)
    for r in range(0, 80, 2): k(f"v_pk_mul_f32 v[{ACC+r}:{ACC+r+1}], v[{ACC+r}:{ACC+r+1}], s[{sC}:{sC+1}]")
    k(f"""
    s_branch {LJ}
    {LK}:
    s_mov_b32 s{t[0]}, {WS_KV}
    s_mov_b32 s{t[1]}, {KV_TILE}
    s_mov_b32 s{t[5]}, 8
    v_and_b32 v15, 8, v13
    v_add_u32 v13, v13, v15
    {LJ}:
    s_mul_i32 s{t[3]}, s{t[3]}, s{t[1]}
    s_add_u32 s{t[0]}, s{t[0]}, s{t[3]}
    s_add_u32 s{sO}, s{sWS}, s{t[0]}
    s_addc_u32 s{sO+1}, s{sWS+1}, 0
    s_lshl_b32 s{t[2]}, s{t[1]}, 6
    s_lshl_b32 s{sO+2}, s{t[1]}, 8
    v_mul_u32_u24 v14, s{t[2]}, v14
    v_add_u32 v15, s{t[5]}, v13
    v_lshl_add_u32 v5, v13, 4, v14
    v_lshl_add_u32 v6, v15, 4, v14
    v_lshl_add_u32 v7, v13, 3, v14
    v_lshl_add_u32 v8, v15, 3, v14
    """)
    for tt in range(4):
        o = 16 + 12 * tt
        for c in range(5):
            a = acc_reg('QK', tt, c)
            for h in range(2): k(f"v_cvt_pk_bf16_f32 v{o+2*c+h}, v{a+2*h}, v{a+2*h+1}")
        so = "0" if tt < 2 else f"s{t[1]}"
        k(f"buffer_store_dwordx4 v[{o}:{o+3}], v{5+(tt&1)}, s[{sO}:{sO+3}], {so} offen{SC1}")
        k(f"buffer_store_dwordx4 v[{o+4}:{o+7}], v{5+(tt&1)}, s[{sO}:{sO+3}], {so} offen offset:512{SC1}")
        k(f"buffer_store_dwordx2 v[{o+8}:{o+9}], v{7+(tt&1)}, s[{sO}:{sO+3}], {so} offen offset:1024{SC1}")

def v_epilogue(k):
    t = sT
    k(f"""
    s_and_b32 s{t[3]}, s{sCb}, 1
    s_lshl_b32 s{t[3]}, s{t[3]}, 2
    s_add_u32 s{t[3]}, s{t[3]}, s{sCg}
    s_lshl_b32 s{t[3]}, s{t[3]}, 8
    s_lshl_b32 s{t[4]}, s{sRb}, 2
    s_add_u32 s{t[3]}, s{t[3]}, s{t[4]}
    s_lshl_b32 s{t[4]}, s{sTg}, 1
    s_add_u32 s{t[3]}, s{t[3]}, s{t[4]}
    s_mul_i32 s{t[3]}, s{t[3]}, {KV_TILE}
    s_add_u32 s{t[3]}, s{t[3]}, {WS_KV}
    s_add_u32 s{sO}, s{sWS}, s{t[3]}
    s_addc_u32 s{sO+1}, s{sWS+1}, 0
    s_mov_b32 s{sO+2}, {4*KV_HEAD}
    s_mov_b32 s{t[0]}, {KV_HEAD - 320}
    v_lshrrev_b32 v14, 4, v0
    v_mul_u32_u24 v14, 320, v14
    v_and_b32 v13, 15, v0
    """)
    for c in range(5):
        k(f"""
        v_add_u32 v15, {16*c}, v13
        v_mul_u32_u24 v{5+c}, 3277, v15
        v_lshrrev_b32 v{5+c}, 16, v{5+c}
        v_mul_u32_u24 v{5+c}, s{t[0]}, v{5+c}
        v_lshl_add_u32 v15, v15, 4, v14
        v_add_u32 v{5+c}, v{5+c}, v15
        """)
    n = 0
    for pr in range(2):
        for c in range(5):
            o = 16 + 4 * n; n += 1
            for b in range(2):
                a = acc_reg('V', 2 * pr + b, c)
                for h in range(2): k(f"v_cvt_pk_bf16_f32 v{o+2*b+h}, v{a+2*h}, v{a+2*h+1}")
            k(f"buffer_store_dwordx4 v[{o}:{o+3}], v{5+c}, s[{sO}:{sO+3}], 0 offen offset:{1280 + pr*KV_TILE}{SC1}")

def side_jobs(k):
    t = sT
    LN, LG = k.uniq("nojob"), k.uniq("nogate")
    sJ, sA, sB1, sB2_, sCj = t[0], t[1], t[2], t[3], t[4]
    sSt, sCq = sFb0, sMode
    L = [k.uniq(f"ty{i}") for i in range(5)]
    k(f"""
    s_sub_u32 s{sJ}, s{sCb}, 10
    s_lshl_b32 s{sJ}, s{sJ}, 4
    s_add_u32 s{sJ}, s{sJ}, s{sRb}
    s_lshl_b32 s{sJ}, s{sJ}, 3
    s_add_u32 s{sJ}, s{sJ}, s{sW}
    s_cmp_ge_u32 s{sJ}, 740
    s_cbranch_scc1 {LN}
    s_mul_i32 s{sSt}, s{sJ}, 6554
    s_lshr_b32 s{sSt}, s{sSt}, 16
    s_mul_i32 s{sCq}, s{sSt}, 10
    s_sub_u32 s{sCq}, s{sJ}, s{sCq}
    s_mov_b32 s{sB1}, 4
    s_mov_b32 s{sCj}, 8
    s_cmp_ge_u32 s{sSt}, 70
    s_cbranch_scc1 {L[4]}
    s_cmp_ge_u32 s{sSt}, 54
    s_cbranch_scc1 {L[3]}
    s_cmp_ge_u32 s{sSt}, 50
    s_cbranch_scc1 {L[2]}
    s_cmp_ge_u32 s{sSt}, 40
    s_cbranch_scc1 {L[1]}
    s_lshr_b32 s{t[5]}, s{sSt}, 2
    s_and_b32 s{t[6]}, s{sSt}, 3
    s_mul_i32 s{sA}, s{t[5]}, 11
    s_cmp_eq_u32 s{t[5]}, 9
    s_cselect_b32 s{sA}, 98, s{sA}
    s_lshl_b32 s{t[7]}, s{t[6]}, 1
    s_add_u32 s{sA}, s{sA}, s{t[7]}
    s_min_u32 s{t[6]}, s{t[6]}, 2
    s_cmp_lt_u32 s{t[5]}, 8
    s_cselect_b32 s{t[6]}, s{t[6]}, 0
    s_add_u32 s{sA}, s{sA}, s{t[6]}
    s_lshl_b32 s{sA}, s{sA}, 4
    s_mov_b32 s{sB2_}, 8
    s_mov_b32 s{sCj}, 16
    s_branch {L[0]}
    {L[1]}:
    s_sub_u32 s{t[5]}, s{sSt}, 40
    s_mul_i32 s{sA}, s{t[5]}, 11
    s_cmp_eq_u32 s{t[5]}, 9
    s_cselect_b32 s{sA}, 98, s{sA}
    s_cmp_lt_u32 s{t[5]}, 8
    s_cselect_b32 s{t[6]}, 2, 8
    s_cselect_b32 s{sB2_}, 48, 16
    s_add_u32 s{sA}, s{sA}, s{t[6]}
    s_lshl_b32 s{sA}, s{sA}, 4
    s_branch {L[0]}
    {L[2]}:
    s_sub_u32 s{t[5]}, s{sSt}, 50
    s_mul_i32 s{sA}, s{t[5]}, {22*16}
    s_add_u32 s{sA}, s{sA}, 160
    s_mov_b32 s{sB2_}, {11*16}
    s_branch {L[0]}
    {L[3]}:
    s_sub_u32 s{t[5]}, s{sSt}, 54
    s_mul_i32 s{sA}, s{t[5]}, 40
    s_mov_b32 s{sB2_}, 20
    s_branch {L[0]}
    {L[4]}:
    s_sub_u32 s{t[5]}, s{sSt}, 70
    s_mul_i32 s{sA}, s{t[5]}, 160
    s_add_u32 s{sA}, s{sA}, 16
    s_mov_b32 s{sB1}, 40
    s_mov_b32 s{sB2_}, 80
    s_mov_b32 s{sCj}, 20
    {L[0]}:
    s_mov_b32 s{t[5]}, {1728*1280}
    s_cmp_ge_u32 s{sSt}, 54
    s_cselect_b32 s{sWt}, s{sPtr+4}, s{sPtr+12}
    s_cselect_b32 s{sWt+1}, s{sPtr+5}, s{sPtr+13}
    s_cselect_b32 s{sWt+2}, {640*1280}, s{t[5]}
    v_lshrrev_b32 v5, 5, v0
    v_mul_u32_u24 v5, s{sCj}, v5
    v_lshrrev_b32 v6, 3, v0
    v_and_b32 v6, 3, v6
    v_add_u32 v5, v5, v6
    v_mul_u32_u24 v5, 1280, v5
    v_and_b32 v6, 7, v0
    v_lshl_add_u32 v5, v6, 4, v5
    s_lshl_b32 s{t[5]}, s{sCq}, 7
    v_add_u32 v5, s{t[5]}, v5
    s_mul_i32 s{sA}, s{sA}, 1280
    s_mul_i32 s{sB1}, s{sB1}, 1280
    s_mul_i32 s{sB2_}, s{sB2_}, 1280
    s_lshl_b32 s{t[5]}, s{sW}, 12
    s_mov_b32 m0, s{t[5]}
    s_add_u32 s{t[6]}, s{sA}, s{sB1}
    buffer_load_dwordx4 v5, s[{sWt}:{sWt+3}], s{sA} offen lds
    s_add_u32 m0, m0, 1024
    s_add_u32 s{sA}, s{sA}, s{sB2_}
    buffer_load_dwordx4 v5, s[{sWt}:{sWt+3}], s{t[6]} offen lds
    s_add_u32 m0, m0, 1024
    s_add_u32 s{t[6]}, s{t[6]}, s{sB2_}
    buffer_load_dwordx4 v5, s[{sWt}:{sWt+3}], s{sA} offen lds
    s_add_u32 m0, m0, 1024
    s_mov_b32 s{sO+2}, {8*B2_BLK}
    buffer_load_dwordx4 v5, s[{sWt}:{sWt+3}], s{t[6]} offen lds
    s_add_u32 s{sO}, s{sWS}, {WS_B2}
    s_addc_u32 s{sO+1}, s{sWS+1}, 0
    v_lshrrev_b32 v6, 4, v0
    v_lshlrev_b32 v6, 10, v6
    v_lshrrev_b32 v7, 2, v0
    v_and_b32 v7, 3, v7
    v_lshl_add_u32 v6, v7, 7, v6
    v_and_b32 v7, 3, v0
    v_lshl_add_u32 v6, v7, 3, v6
    v_add_u32 v6, s{t[5]}, v6
    v_lshlrev_b32 v7, 4, v0
    s_lshl_b32 s{sCq}, s{sCq}, 2
    s_mul_i32 s{sSt}, s{sSt}, 5120
    s_waitcnt vmcnt(0)
    """)
    for i in range(4):
        for j in range(2): k(f"ds_read_b64_tr_b16 v[{16+4*i+2*j}:{17+4*i+2*j}], v6 offset:{32*i + 512*j}")
    for i in range(4):
        k(f"""
        s_mul_i32 s{t[5]}, s{sCq}, 13108
        s_lshr_b32 s{t[5]}, s{t[5]}, 16
        s_mul_i32 s{t[5]}, s{t[5]}, {B2_BLK - 5120}
        s_lshl_b32 s{t[6]}, s{sCq}, 10
        s_add_u32 s{t[5]}, s{t[5]}, s{t[6]}
        s_add_u32 s{t[5]}, s{t[5]}, s{sSt}
        s_add_u32 s{sCq}, s{sCq}, 1
        s_waitcnt lgkmcnt({6-2*i})
        buffer_store_dwordx4 v[{16+4*i}:{19+4*i}], v7, s[{sO}:{sO+3}], s{t[5]} offen{SC1}
        """)
    k.label(LN)
    k(f"""
    s_cmp_lt_u32 s{sCb}, 12
    s_cbranch_scc1 {LG}
    s_sub_u32 s{t[0]}, s{sCb}, 12
    s_lshl_b32 s{t[0]}, s{t[0]}, 3
    s_add_u32 s{t[0]}, s{t[0]}, s{sW}
    s_lshl_b32 s{t[0]}, s{t[0]}, 2
    v_lshrrev_b32 v5, 4, v0
    v_add_u32 v5, s{t[0]}, v5
    v_and_b32 v6, 15, v0
    v_lshlrev_b32 v6, 4, v6
    v_mul_u32_u24 v8, 1280, v5
    v_add_u32 v8, v8, v6
    s_mov_b32 s{sWt}, s{sPtr+14}
    s_mov_b32 s{sWt+1}, s{sPtr+15}
    s_mov_b32 s{sWt+2}, 1280
    """)
    for i in range(5):
        k(f"buffer_load_dwordx4 v[{32+4*i}:{35+4*i}], v8, s[{sX}:{sX+3}], 0 offen offset:{256*i}")
        k(f"buffer_load_dwordx4 v[{52+4*i}:{55+4*i}], v6, s[{sWt}:{sWt+3}], 0 offen offset:{256*i}")
    k(f"""
    s_lshl_b32 s{t[1]}, s{sRb}, 9
    s_add_u32 s{t[1]}, s{t[1]}, {WS_G}
    s_add_u32 s{sO}, s{sWS}, s{t[1]}
    s_addc_u32 s{sO+1}, s{sWS+1}, 0
    s_mov_b32 s{sO+2}, 512
    v_lshlrev_b32 v5, 2, v5
    v_lshlrev_b32 v6, 16, v6
    v_add_u32 v5, v5, v6
    v_mov_b32 v9, 0
    v_mov_b32 v10, 0
    s_waitcnt vmcnt(0)
    """)
    for r in range(20): k(f"v_dot2_f32_bf16 v{9+(r&1)}, v{32+r}, v{52+r}, v{9+(r&1)}")
    k("s_nop 3\nv_add_f32 v9, v9, v10")
    for sh in (8, 4, 2, 1): k(f"s_nop 1\nv_add_f32_dpp v9, v9, v9 row_ror:{sh} row_mask:0xf bank_mask:0xf")
    k(f"""
    v_mul_f32 v9, {f32hex(-1.4426950408889634)}, v9
    v_exp_f32 v9, v9
    s_nop 0
    v_add_f32 v9, 1.0, v9
    v_rcp_f32 v9, v9
    s_nop 0
    buffer_store_dword v9, v5, s[{sO}:{sO+3}], 0 offen{SC1}
    """)
    k.label(LG)

def gen_k1(name="p1_kernel", NW=5, prof=False, compute=True):
    k = Kern(name, block=512, grid=256, lds=163840, vgpr=256)
    END = name + "_end"
    k(f"s_cmp_ge_u32 s2, 256\ns_cbranch_scc1 {END}")
    p1_setup(k, prof)
    LQ, LV, L20, LD = name + "_qkv", name + "_v", name + "_f20", name + "_done"
    k(f"s_cmp_ge_u32 s{sCb}, 10\ns_cbranch_scc1 {LQ}")
    ffn_wave_params(k)
    k(f"s_cmp_lg_u32 s{sMode}, 0\ns_cbranch_scc1 {L20}")
    for var in ('F24', 'F20'):
        if var == 'F20': k.label(L20)
        p1_loop(k, var, NW, prof, compute)
        h_store_setup(k, var)
        for x in gelu_math(k, var): k(x)
        k(stamp(prof, 13 if prof == 'rt' else 3))
        k("s_nop 1")
        for x in h_stores(var): k(x)
        k(f"s_branch {LD}")
    k.label(LQ)
    k(f"s_cmp_ge_u32 s{sCb}, 14\ns_cbranch_scc1 {LV}")
    LS = name + "_side"
    p1_loop(k, 'QK', NW, prof, compute)
    k("s_nop 7")
    qk_epilogue(k)
    k(f"s_branch {LS}")
    k.label(LV)
    p1_loop(k, 'V', NW, prof, compute)
    k("s_nop 7")
    v_epilogue(k)
    k.label(LS)
    k(stamp(prof, 13 if prof == 'rt' else 3))
    side_jobs(k)
    k.label(LD)
    if prof: prof_out(k, 14 if prof == 'rt' else 4, sWS, sW, mode=prof)
    k.label(END)
    k("s_endpgm")
    return k

if __name__ == "__main__":
    k = gen_k1()
    for wg in range(0, 256, 9):
        for w in (0, 3, 5, 7):
            for e in check(k, init=dict(wg=wg, wave=w), verbose=(wg < 30 and w == 5)): print(e)
```

```python
from asmlib import *
from layout import *
from p1 import f32hex, sWS, sDBG, sW, SC1

vKa, vKt, vVa = 2, 3, 4
S0, S1, OA, OB, P = 16, 32, 48, 64, 80
QA, QB = 88, 94
Kb = [100, 106]
Vs0 = 112
Vs1 = [116, 120]
vG = 124
sKV, sQ, sA2 = 8, 12, 16
sHead, sQb, sQg, sKh, sT0, sT1, sCnt = 21, 22, 23, 24, 25, 26, 27
sMask = 28
sTile = 30
vD = 14

def p2_setup(k):
    k(f"""
    s_and_b32 s{sT0}, s2, 7
    s_lshr_b32 s{sT1}, s2, 3
    s_lshl_b32 s{sHead}, s{sT0}, 2
    s_and_b32 s{sT0}, s{sT1}, 3
    s_add_u32 s{sHead}, s{sHead}, s{sT0}
    s_lshr_b32 s{sQb}, s{sT1}, 2
    s_and_b32 s{sQg}, s{sW}, 3
    s_lshr_b32 s{sKh}, s{sW}, 2
    s_lshl_b32 s{sTile}, s{sQb}, 2
    s_add_u32 s{sTile}, s{sTile}, s{sQg}
    v_lshlrev_b32 v{vD}, 4, v0
    v_and_b32 v5, 31, v0
    v_lshlrev_b32 v{vKt}, 3, v5
    v_lshrrev_b32 v6, 5, v0
    v_mul_u32_u24 v{vVa}, 320, v6
    v_lshl_add_u32 v{vVa}, v5, 4, v{vVa}
    v_lshlrev_b32 v7, 20, v6
    v_add_u32 v7, v7, v{vKt}
    s_mul_i32 s{sT0}, s{sHead}, {KV_HEAD}
    s_lshl_b32 s{sT1}, s{sHead}, 5
    s_add_u32 s{sT1}, s{sT1}, s{sTile}
    s_mul_i32 s{sT1}, s{sT1}, {2*Q_TILE}
    s_add_u32 s{sT1}, s{sT1}, {WS_Q}
    s_mov_b32 s{sKV+2}, {KV_HEAD}
    s_mov_b32 s{sKV+3}, 0x00020000
    s_mov_b32 s{sQ+2}, {2*Q_TILE}
    s_mov_b32 s{sQ+3}, 0x00020000
    s_add_u32 s{sKV}, s{sWS}, s{sT0}
    s_addc_u32 s{sKV+1}, s{sWS+1}, 0
    s_add_u32 s{sQ}, s{sWS}, s{sT1}
    s_addc_u32 s{sQ+1}, s{sWS+1}, 0
    s_mul_i32 s{sT0}, s{sKh}, 81920
    s_lshl_b32 s{sT1}, s{sQg}, 10
    s_add_u32 s{sCnt}, s{sT0}, s{sT1}
    v_add_u32 v{vKa}, s{sT0}, v{vD}
    v_add_u32 v{vKt}, s{sT0}, v{vKt}
    v_add_u32 v{vVa}, s{sT0}, v{vVa}
    """)

def kv_dma(i):
    return [f"s_add_u32 m0, s{sCnt}, {4096*i}", None, f"buffer_load_dwordx4 v{vD}, s[{sKV}:{sKV+3}], m0 offen{SC1} lds"]

def p2_first_loads(k, n0):
    k(f"""
    buffer_load_dwordx4 v[{QA}:{QA+3}], v{vD}, s[{sQ}:{sQ+3}], 0 offen{SC1}
    buffer_load_dwordx2 v[{QA+4}:{QA+5}], v7, s[{sQ}:{sQ+3}], 0 offen offset:1024{SC1}
    """)
    for i in range(n0):
        for x in kv_dma(i): k(x or "s_nop 0")
        if i == 0:
            k(f"""
            buffer_load_dwordx4 v[{QB}:{QB+3}], v{vD}, s[{sQ}:{sQ+3}], 0 offen offset:1280{SC1}
            buffer_load_dwordx2 v[{QB+4}:{QB+5}], v7, s[{sQ}:{sQ+3}], 0 offen offset:2304{SC1}
            """)

def p2_init_regs(k):
    k(f"""
    s_mov_b32 s{sMask}, 0x000fffff
    s_mov_b32 s{sMask+1}, 0x000fffff
    v_and_b32 v10, 27, v0
    v_cmp_eq_u32 vcc, 24, v10
    v_mov_b32 v10, 0x3f803f80
    """)
    for r in range(32): k(f"v_mov_b32 v{OA+r}, 0")
    for r in range(8): k(f"v_mov_b32 v{P+r}, 0")
    for r in range(12): k(f"v_cndmask_b32 v{Vs0+r}, 0, v10, vcc")

def qk(Sd, Kr, Q):
    return [f"v_mfma_f32_32x32x16_bf16 v[{Sd}:{Sd+15}], v[{Kr}:{Kr+3}], v[{Q}:{Q+3}], 0",
            f"v_mfma_f32_32x32x8_bf16 v[{Sd}:{Sd+15}], v[{Kr+4}:{Kr+5}], v[{Q+4}:{Q+5}], v[{Sd}:{Sd+15}]"]
def pv(O, V, Pr):
    return f"v_mfma_f32_32x32x16_bf16 v[{O}:{O+15}], v[{V}:{V+3}], v[{Pr}:{Pr+3}], v[{O}:{O+15}]"

def p2_loop(k, n0=4, later=0, bars=(3, 9), rate=2, prio=None, extra=None, prof=False, pattern=0, xbars=()):
    extra = extra or {}
    base = [0]
    def rdK(buf, t):
        t -= base[0]
        return [f"ds_read_b128 v[{Kb[buf]}:{Kb[buf]+3}], v{vKa} offset:{t*KV_TILE}",
                f"ds_read_b64 v[{Kb[buf]+4}:{Kb[buf]+5}], v{vKt} offset:{t*KV_TILE+1024}"]
    def rdV(buf, t):
        t -= base[0]
        return [f"s_mov_b64 exec, s[{sMask}:{sMask+1}]",
                f"ds_read_b128 v[{Vs0}:{Vs0+3}], v{vVa} offset:{t*KV_TILE+1280}",
                f"ds_read_b128 v[{Vs1[buf]}:{Vs1[buf]+3}], v{vVa} offset:{t*KV_TILE+1280+640}",
                "s_mov_b64 exec, -1"]
    q = list(range(n0)) + [None] * later
    nxt = [n0]
    def need(upto_tile):
        by = min((upto_tile + 1) * KV_TILE + 1280, 81920)
        return (by + 4095) // 4096 - 1
    def wait_for(piece):
        assert piece in q, (piece, q)
        return len(q) - 1 - q.index(piece)
    bars = list(bars)
    k(f"s_waitcnt vmcnt({wait_for(need(bars[0]))})")
    k("s_barrier")
    k(stamp(prof, 2))
    for x in rdK(0, 0) + rdK(1, 1) + rdV(0, 0): k(x)
    k("s_waitcnt lgkmcnt(4)")
    for x in qk(S0, Kb[0], QA): k(x)
    k("s_nop 11")
    def slot(Sx, M, pre4=[], post4=[], pre=[], mid=[[], [], []]):
        e = lambda r: f"v_exp_f32 v{Sx+r}, v{Sx+r}"
        c = lambda r: f"v_cvt_pk_bf16_f32 v{P+r//2}, v{Sx+r}, v{Sx+r+1}"
        if pattern == 0:
            seq = pre + [M[0], e(0), e(1), e(2), c(0), e(3)] + mid[0] + [
                   M[1], e(4), c(2), e(5), e(6), c(4), e(7)] + mid[1] + [
                   M[2], e(8), c(6), e(9), e(10), c(8), e(11)] + mid[2] + pre4 + [M[3]] + post4 + [
                   e(12), c(10), e(13), e(14), e(15), c(12), c(14)]
        else:
            seq = pre + [M[0], e(0), e(1), e(2), e(3), c(0)] + mid[0] + [
                   M[1], e(4), e(5), c(2), e(6), e(7), c(4)] + mid[1] + [
                   M[2], e(8), e(9), c(6), e(10), e(11), c(8)] + mid[2] + pre4 + [M[3]] + post4 + [
                   e(12), e(13), c(10), e(14), e(15), c(12), c(14)]
        for x in seq: k(x)
    pad = ["s_nop 0"] if pattern else []
    k(".p2align 3")
    for u in range(32):
        p = u & 1
        mids = [[[], [], []], [[], [], []]]
        groups = []
        for _ in range(rate):
            if nxt[0] < 20:
                groups.append((nxt[0], kv_dma(nxt[0]))); nxt[0] += 1
        groups += [(None, g) for g in extra.get(u, [])]
        places = [(0, 0), (1, 0), (0, 1), (1, 1), (0, 2), (1, 2)]
        order = []
        for j, (pid, g) in enumerate(groups):
            sl, m = places[j % 6]
            order.append((sl, m, j, pid, g))
        order.sort(key=lambda x: x[:3])
        pre = [f"s_setprio {prio[u]}"] + pad if (prio and u in prio) else []
        if u == 16:
            pre += [f"v_add_u32 v{r}, {16*KV_TILE}, v{r}" for r in (vKa, vKt, vVa)]
            base[0] = 16
        def emit(sl):
            for (s_, m, j, pid, g) in order:
                if s_ == sl:
                    mids[sl][m] += [x or "s_nop 0" for x in g]
                    q.extend([pid] * sum(1 for x in g if x and x.startswith("buffer_")))
        emit(0)
        qB = qk(S1, Kb[p], QB)
        slot(S0, [qB[0], qB[1], pv(OB, Vs1[p ^ 1], P + 4), pv(OA, Vs0, P)], pre4=["s_waitcnt lgkmcnt(0)"] + pad, pre=pre, mid=mids[0])
        emit(1)
        qA = qk(S0, Kb[p ^ 1], QA)
        post = []
        if u in bars:
            i = bars.index(u)
            up = bars[i + 1] if i + 1 < len(bars) else 32
            post += [f"s_waitcnt vmcnt({wait_for(need(up))})", "s_barrier"]
        elif u in xbars:
            post += ["s_barrier"] + pad
        if u < 30: post += rdK(p, u + 2)
        if u < 31: post += rdV(p ^ 1, u + 1)
        if u == 31: qA = ["s_nop 0", "s_nop 0"]
        slot(S1, [qA[0], qA[1], pv(OA, Vs1[p], P + 4), pv(OB, Vs0, P)], post4=post, mid=mids[1])
    k("s_nop 1")
    k(pv(OB, Vs1[1], P + 4))
    if prio: k("s_setprio 0")
    k(stamp(prof, 3))
    return q

def g_load():
    return [[f"s_lshl_b32 s{sT0}, s{sTile}, 8", f"s_lshl_b32 s{sT1}, s{sKh}, 7", f"s_add_u32 s{sT0}, s{sT0}, s{sT1}", f"s_add_u32 s{sT0}, s{sT0}, {WS_G}",
             f"s_add_u32 s{sQ}, s{sWS}, s{sT0}", f"s_addc_u32 s{sQ+1}, s{sWS+1}, 0", f"s_mov_b32 s{sQ+2}, 128",
             f"v_and_b32 v{vG}, 31, v0", f"v_lshlrev_b32 v{vG}, 2, v{vG}",
             f"buffer_load_dword v{vG}, v{vG}, s[{sQ}:{sQ+3}], 0 offen{SC1}"]]

def p2_finish(k, gwait, xoff=0):
    vX, vR = 5, 6
    k(f"""
    s_lshl_b32 s{sT0}, s{sW}, 12
    s_add_u32 s{sT0}, s{sT0}, {xoff}
    s_xor_b32 s{sT1}, s{sT0}, 16384
    v_add_u32 v{vX}, s{sT0}, v{vD}
    v_add_u32 v{vR}, s{sT1}, v{vD}
    s_cmp_eq_u32 s{sKh}, 0
    """)
    L1, L2 = k.uniq("kh0"), k.uniq("sent")
    k(f"s_cbranch_scc1 {L1}")
    def send(O):
        for j in range(3): k(f"ds_write_b128 v{vX}, v[{O+4*j}:{O+4*j+3}] offset:{1024*j}")
        k(f"ds_write_b32 v{vX}, v{O+12} offset:3072")
    send(OA)
    k("s_nop 7")
    for r in range(6): k(f"v_mov_b32 v{QA+r}, v{QB+r}")
    for r in range(13): k(f"v_mov_b32 v{OA+r}, v{OB+r}")
    k(f"s_branch {L2}")
    k.label(L1)
    k("s_nop 7")
    send(OB)
    k.label(L2)
    vOm, vOt = 8, 9
    k(f"""
    s_mul_i32 s{sT1}, s{sTile}, {A2_BLK}
    s_add_u32 s{sT1}, s{sT1}, {WS_A2}
    s_add_u32 s{sA2}, s{sWS}, s{sT1}
    s_addc_u32 s{sA2+1}, s{sWS+1}, 0
    s_mov_b32 s{sA2+2}, {A2_BLK}
    s_mov_b32 s{sA2+3}, 0x00020000
    s_waitcnt lgkmcnt(0)
    s_barrier
    """)
    for j in range(3): k(f"ds_read_b128 v[{S0+4*j}:{S0+4*j+3}], v{vR} offset:{1024*j}")
    k(f"ds_read_b32 v{S0+12}, v{vR} offset:3072")
    k(f"""
    s_lshr_b32 s{sT0}, s{sHead}, 1
    s_add_u32 s{sT0}, s{sT0}, {STEP_O}
    s_lshl_b32 s{sT0}, s{sT0}, 1
    s_add_u32 s{sT0}, s{sT0}, s{sKh}
    s_lshl_b32 s{sT0}, s{sT0}, 2
    s_and_b32 s{sT1}, s{sHead}, 1
    s_add_u32 s{sT0}, s{sT0}, s{sT1}
    s_lshl_b32 s{sT0}, s{sT0}, 9
    v_and_b32 v10, 15, v0
    v_lshlrev_b32 v10, 4, v10
    v_and_b32 v11, 16, v0
    v_lshl_add_u32 v10, v11, 6, v10
    v_and_b32 v11, 32, v0
    v_lshl_add_u32 v{vOm}, v11, 3, v10
    v_add_u32 v{vOm}, s{sT0}, v{vOm}
    s_lshr_b32 s{sT0}, s{sHead}, 3
    s_add_u32 s{sT0}, s{sT0}, {STEP_OT}
    s_lshl_b32 s{sT0}, s{sT0}, 1
    s_add_u32 s{sT0}, s{sT0}, s{sKh}
    s_lshl_b32 s{sT0}, s{sT0}, 11
    s_lshl_b32 s{sT1}, s{sT1}, 3
    s_add_u32 s{sT0}, s{sT0}, s{sT1}
    s_and_b32 s{sT1}, s{sHead}, 6
    s_lshl_b32 s{sT1}, s{sT1}, 7
    s_add_u32 s{sT0}, s{sT0}, s{sT1}
    v_lshl_add_u32 v{vOt}, v11, 19, v10
    v_add_u32 v{vOt}, s{sT0}, v{vOt}
    s_mov_b32 s{sT0}, {f32hex(2.0**-24)}
    s_mov_b32 s{sT1}, {f32hex(2.0**64)}
    s_waitcnt lgkmcnt(0)
    """)
    for r in range(13): k(f"v_add_f32 v{OA+r}, v{OA+r}, v{S0+r}")
    k(f"v_mul_f32 v11, 0, v{OA}")
    for r in range(1, 12): k(f"v_fma_f32 v11, v{OA+r}, 0, v11")
    k(f"""
    v_add_f32 v11, v11, v{OA+12}
    v_cmp_nle_f32 vcc, s{sT0}, v11
    v_cmp_nle_f32 s[32:33], v11, s{sT1}
    s_nop 1
    s_or_b64 vcc, vcc, s[32:33]
    """)
    SLOW, FIN = k.name + "_slow", k.name + "_fin"
    k(f"s_cbranch_vccnz {SLOW}")
    k.label(FIN)
    k(f"v_rcp_f32 v11, v{OA+12}")
    k(f"s_waitcnt vmcnt({gwait})")
    k(f"v_mul_f32 v11, v11, v{vG}")
    for r in range(12): k(f"v_mul_f32 v{OA+r}, v{OA+r}, v11")
    for r in range(6): k(f"v_cvt_pk_bf16_f32 v{P+r}, v{OA+2*r}, v{OA+2*r+1}")
    k(f"""
    buffer_store_dwordx4 v[{P}:{P+3}], v{vOm}, s[{sA2}:{sA2+3}], 0 offen{SC1}
    buffer_store_dwordx2 v[{P+4}:{P+5}], v{vOt}, s[{sA2}:{sA2+3}], 0 offen{SC1}
    """)
    def fallback():
        k.label(SLOW)
        vM = 12
        k(f"""
        v_and_b32 v5, 31, v0
        v_lshlrev_b32 v{vKt}, 3, v5
        v_lshrrev_b32 v6, 5, v0
        v_mul_u32_u24 v{vVa}, 320, v6
        v_lshl_add_u32 v{vVa}, v5, 4, v{vVa}
        v_mov_b32 v{vM}, 0xff800000
        s_mov_b32 s{sCnt}, 0
        """)
        def ldK():
            k(f"buffer_load_dwordx4 v[{Kb[0]}:{Kb[0]+3}], v{vD}, s[{sKV}:{sKV+3}], s{sCnt} offen{SC1}")
            k(f"buffer_load_dwordx2 v[{Kb[0]+4}:{Kb[0]+5}], v{vKt}, s[{sKV}:{sKV+3}], s{sCnt} offen offset:1024{SC1}")
        LP1, LP2 = k.name + "_slow1", k.name + "_slow2"
        k.label(LP1)
        ldK()
        k("s_waitcnt vmcnt(0)")
        for x in qk(S0, Kb[0], QA): k(x)
        k("s_nop 15")
        for r in range(0, 16, 2): k(f"v_max3_f32 v{vM}, v{S0+r}, v{S0+r+1}, v{vM}")
        k(f"""
        s_add_u32 s{sCnt}, s{sCnt}, {KV_TILE}
        s_cmp_lt_u32 s{sCnt}, {KV_HEAD}
        s_cbranch_scc1 {LP1}
        v_mov_b32 v13, v{vM}
        s_nop 1
        v_permlane32_swap_b32 v{vM}, v13
        v_max_f32 v{vM}, v{vM}, v13
        s_mov_b32 s{sCnt}, 0
        """)
        for r in range(16): k(f"v_mov_b32 v{OA+r}, 0")
        k.label(LP2)
        ldK()
        k(f"""
        s_mov_b64 exec, s[{sMask}:{sMask+1}]
        buffer_load_dwordx4 v[{Vs0}:{Vs0+3}], v{vVa}, s[{sKV}:{sKV+3}], s{sCnt} offen offset:1280{SC1}
        buffer_load_dwordx4 v[{Vs1[0]}:{Vs1[0]+3}], v{vVa}, s[{sKV}:{sKV+3}], s{sCnt} offen offset:1920{SC1}
        s_mov_b64 exec, -1
        s_waitcnt vmcnt(0)
        """)
        for x in qk(S0, Kb[0], QA): k(x)
        k("s_nop 15")
        for r in range(16): k(f"v_sub_f32 v{S0+r}, v{S0+r}, v{vM}")
        for r in range(16): k(f"v_exp_f32 v{S0+r}, v{S0+r}")
        k("s_nop 0")
        for r in range(8): k(f"v_cvt_pk_bf16_f32 v{P+r}, v{S0+2*r}, v{S0+2*r+1}")
        k("s_nop 1")
        k(pv(OA, Vs0, P)); k(pv(OA, Vs1[0], P + 4))
        k(f"""
        s_add_u32 s{sCnt}, s{sCnt}, {KV_TILE}
        s_cmp_lt_u32 s{sCnt}, {KV_HEAD}
        s_cbranch_scc1 {LP2}
        s_nop 15
        s_branch {FIN}
        """)
    return fallback

def gen_k2(name="p2_kernel", prof=False, **kw):
    k = Kern(name, block=512, grid=256, lds=163840, vgpr=128)
    END = name + "_end"
    k(f"""
    s_cmp_ge_u32 s2, 256
    s_cbranch_scc1 {END}
    s_load_dwordx2 s[{sWS}:{sWS+1}], s[0:1], 80
    {stamp(prof, 0)}
    v_lshrrev_b32 v1, 6, v0
    v_and_b32 v0, 63, v0
    s_nop 0
    v_readfirstlane_b32 s{sW}, v1
    s_waitcnt lgkmcnt(0)
    """)
    p2_setup(k)
    n0 = kw.get("n0", 4)
    p2_first_loads(k, n0)
    p2_init_regs(k)
    k(stamp(prof, 1))
    q = p2_loop(k, extra={20: g_load()}, prof=prof, **kw)
    k("s_waitcnt lgkmcnt(0)\ns_barrier")
    fb = p2_finish(k, 0)
    if prof: prof_out(k, 4, sWS, sW)
    k.label(END)
    k("s_endpgm")
    fb()
    return k

if __name__ == "__main__":
    k = gen_k2()
    for w in (0, 5):
        for br in ({}, {k.name + "_slow": True}):
            for e in check(k, init=dict(wg=3, wave=w), branch=br, verbose=True): print(e)
```

```python
from asmlib import *
from layout import *
from p1 import f32hex, sWS, sDBG, sW, SC1

sA, sB, sOut = 36, 40, 44
sTb, sNb = 48, 49
sSa, sSb = 50, 51
sU0, sU1 = 52, 53
sRe, sRl = 54, 55
ACC3 = 8
BUF = [128, 164, 200, 88]
vG3 = 236
vL, vL2, vRe, vRl = 252, 253, 254, 255
BIG = 0x7ff00000

def p3_setup(k):
    k(f"""
    s_load_dwordx2 s[{sOut}:{sOut+1}], s[0:1], 64
    s_and_b32 s{sU0}, s2, 6
    s_lshl_b32 s{sU0}, s{sU0}, 2
    s_lshr_b32 s{sU1}, s2, 3
    s_and_b32 s{sTb}, s{sU1}, 7
    s_add_u32 s{sTb}, s{sTb}, s{sU0}
    s_and_b32 s{sU0}, s2, 1
    s_lshl_b32 s{sU0}, s{sU0}, 2
    s_lshr_b32 s{sNb}, s{sU1}, 3
    s_add_u32 s{sNb}, s{sNb}, s{sU0}
    s_mul_i32 s{sU0}, s{sTb}, {A2_BLK}
    s_add_u32 s{sU0}, s{sU0}, {WS_A2}
    s_add_u32 s{sA}, s{sWS}, s{sU0}
    s_addc_u32 s{sA+1}, s{sWS+1}, 0
    s_mov_b32 s{sA+2}, {A2_BLK}
    s_mov_b32 s{sA+3}, 0x00020000
    s_mul_i32 s{sU0}, s{sNb}, {B2_BLK}
    s_add_u32 s{sU0}, s{sU0}, {WS_B2}
    s_add_u32 s{sB}, s{sWS}, s{sU0}
    s_addc_u32 s{sB+1}, s{sWS+1}, 0
    s_mov_b32 s{sB+2}, {B2_BLK}
    s_mov_b32 s{sB+3}, 0x00020000
    s_lshr_b32 s{sU0}, s{sW}, 2
    s_mul_i32 s{sU0}, s{sU0}, 81920
    s_and_b32 s{sU1}, s{sW}, 3
    s_mul_i32 s{sRe}, s{sU1}, 15360
    s_add_u32 s{sRe}, s{sRe}, s{sU0}
    s_mul_i32 s{sRl}, s{sU1}, 5120
    s_add_u32 s{sRl}, s{sRl}, s{sU0}
    s_add_u32 s{sRl}, s{sRl}, 61440
    v_lshlrev_b32 v{vL}, 4, v0
    v_add_u32 v{vL2}, 4096, v{vL}
    """)

def step_expr(slot, s):
    if slot < 7:
        return [f"s_add_u32 s{s}, s{sW}, {8*slot}", f"s_cmp_lt_u32 s{s}, {STEP_O}"]
    if slot < 9:
        return [f"s_add_u32 s{s}, s{sW}, {STEP_O + 8*(slot-7)}", f"s_cmp_lt_u32 s{s}, {NSTEP}"]
    return [f"s_add_u32 s{s}, s{sW}, {STEP_OT - 4}", f"s_cmp_ge_u32 s{s}, {STEP_OT}"]
def always(slot): return slot not in (6, 9)
def so_a(slot):
    e = step_expr(slot, sSa)
    if always(slot): return [e[0], f"s_lshl_b32 s{sSa}, s{sSa}, 12"]
    return e + [f"s_cselect_b32 s{sSa}, s{sSa}, {BIG >> 12}", f"s_lshl_b32 s{sSa}, s{sSa}, 12"]
def so_b(slot):
    e = step_expr(slot, sSb)
    if always(slot): return [e[0], f"s_mul_i32 s{sSb}, s{sSb}, 5120"]
    return e + [f"s_cselect_b32 s{sSb}, s{sSb}, 1024", f"s_mul_i32 s{sSb}, s{sSb}, 5120"]
def ld_a(buf, tt):
    r = BUF[buf] + 4 * tt
    return f"buffer_load_dwordx4 v[{r}:{r+3}], v{vL}, s[{sA}:{sA+3}], s{sSa} offen offset:{1024*tt}{SC1}"
def ld_b(buf, nt):
    r = BUF[buf] + 16 + 4 * nt
    return f"buffer_load_dwordx4 v[{r}:{r+3}], v{vL if nt < 4 else vL2}, s[{sB}:{sB+3}], s{sSb} offen offset:{1024*(nt&3)}{SC1}"
def slot_loads(slot, buf, part="ab"):
    out = []
    if "a" in part: out += so_a(slot) + [ld_a(buf, tt) for tt in range(4)]
    if "b" in part: out += so_b(slot) + [ld_b(buf, nt) for nt in range(5)]
    return out
def acc(tt, nt): return ACC3 + 4 * (5 * tt + nt)
def mm(buf, tt, nt, first=False):
    d, a, b = acc(tt, nt), BUF[buf] + 4 * tt, BUF[buf] + 16 + 4 * nt
    return f"v_mfma_f32_16x16x32_bf16 v[{d}:{d+3}], v[{a}:{a+3}], v[{b}:{b+3}], " + ("0" if first else f"v[{d}:{d+3}]")
def g_loads():
    return [f"s_lshl_b32 s{sU0}, s{sTb}, 8", f"s_add_u32 s{sU0}, s{sU0}, {WS_G}",
            f"s_add_u32 s{sU0}, s{sWS}, s{sU0}", f"s_addc_u32 s{sU1}, s{sWS+1}, 0",
            f"v_and_b32 v{vG3}, 0x30, v0"] + \
           [f"global_load_dwordx4 v[{vG3+4*tt}:{vG3+4*tt+3}], v{vG3}, s[{sU0}:{sU1}] offset:{64*tt}{SC1}" for tt in (3, 2, 1, 0)]

class VQ:
    def __init__(self, q=()): self.q = list(q)
    def add(self, k, ins, tag):
        for x in ins:
            k(x)
            if x.startswith(("buffer_", "global_")): self.q.append(tag)
    def wait(self, *tags):
        i = max((j for j, t in enumerate(self.q) if t in tags), default=-1)
        n = len(self.q) - 1 - i
        self.q = self.q[i + 1:]
        return n

def compute_slot(k, vq, slot, buf, nxt=None, part="ab", first=False):
    k(f"s_waitcnt vmcnt({vq.wait(('a', slot), ('b', slot))})")
    SK = None
    if not always(slot):
        SK = k.uniq("skip")
        for x in step_expr(slot, sU0): k(x)
        k(f"s_cbranch_scc0 {SK}")
        assert nxt is None
    for tt in range(4):
        for nt in range(5):
            k(mm(buf, tt, nt, first))
            if nxt is not None:
                if "a" in part and tt == 0 and nt == 2:
                    for x in so_a(nxt): k(x)
                if "b" in part and tt == 2 and nt == 2:
                    for x in so_b(nxt): k(x)
                if "a" in part and tt > 0 and nt == 1: vq.add(k, [ld_a(buf, tt - 1)], ('a', nxt))
                if "b" in part and tt == 3 and nt > 1: vq.add(k, [ld_b(buf, nt - 2)], ('b', nxt))
    if nxt is not None:
        if "a" in part: vq.add(k, [ld_a(buf, 3)], ('a', nxt))
        if "b" in part: vq.add(k, [ld_b(buf, 3), ld_b(buf, 4)], ('b', nxt))
    if SK: k.label(SK)

def scale(k, vq):
    k(f"s_waitcnt vmcnt({vq.wait('g')})")
    for r in range(16): k(f"v_sub_f32 v{vG3+r}, 1.0, v{vG3+r}")
    for tt in range(4):
        for nt in range(5):
            for h in range(2):
                a, g = acc(tt, nt) + 2 * h, vG3 + 4 * tt + 2 * h
                k(f"v_pk_mul_f32 v[{a}:{a+1}], v[{a}:{a+1}], v[{g}:{g+1}]")

def o_phase(k, bufs):
    LB, LJ = k.uniq("clsb"), k.uniq("clsj")
    k(f"s_cmp_ge_u32 s{sW}, 4\ns_cbranch_scc1 {LB}")
    for cls in (0, 1):
        if cls:
            k.label(LB)
            k(f"v_lshlrev_b32 v{vRl}, 2, v0\nv_add_u32 v{vRe}, s{sRe}, v{vRl}\nv_add_u32 v{vRl}, s{sRl}, v{vRl}")
        else:
            k(f"s_mov_b32 m0, s{sRe}")
        def wr(q):
            r = ACC3 + 4 * q
            if cls == 0:
                pre = [f"s_sub_u32 m0, s{sRl}, {60*256}", "s_nop 0"] if q == 15 else []
                return pre + [f"ds_write_addtid_b32 v{r+j} offset:{256*(4*q+j)}" for j in range(4)]
            a, o = (vRe, 4 * q) if q < 15 else (vRl, 4 * q - 60)
            return [f"ds_write2st64_b32 v{a}, v{r+j}, v{r+j+1} offset0:{o+j} offset1:{o+j+1}" for j in (0, 2)]
        use = bufs[:2 + cls]
        D = 2
        seq = []
        for q0 in range(0, 20, 2):
            for b in use:
                for q in (q0, q0 + 1): seq.append(mm(b, q // 5, q % 5))
            if q0 >= 4: seq += wr(q0 - 4) + wr(q0 - 3)
        seq += wr(16) + wr(17) + ["s_nop 3"] + wr(18) + wr(19)
        for x in seq: k(x)
        if not cls: k(f"s_branch {LJ}")
    k.label(LJ)

def reduce_store(k):
    R = 88
    vA, vO = 124, 125
    def region(w, j):
        return (w >> 2) * 81920 + ((w & 3) * 15360 + 256 * j if j < 60 else 61440 + (w & 3) * 5120 + 256 * (j - 60))
    k(f"""
    s_lshr_b32 s{sU0}, s{sW}, 1
    s_and_b32 s{sU1}, s{sW}, 1
    s_lshl_b32 s{sU1}, s{sU1}, 1
    s_mul_i32 s{sSa}, s{sU0}, 5120
    s_mov_b32 s{sSb}, 15360
    s_cmp_eq_u32 s{sU0}, 3
    s_cselect_b32 s{sSa}, 61440, s{sSa}
    s_cselect_b32 s{sSb}, 5120, s{sSb}
    s_lshl_b32 s{sRe}, s{sU1}, 8
    s_add_u32 s{sSa}, s{sSa}, s{sRe}
    v_and_b32 v1, 15, v0
    v_lshrrev_b32 v2, 4, v0
    v_lshlrev_b32 v3, 4, v1
    v_lshl_add_u32 v3, v2, 10, v3
    v_add_u32 v116, s{sSa}, v3
    v_add_u32 v117, s{sSb}, v116
    v_add_u32 v118, s{sSb}, v117
    v_add_u32 v119, s{sSb}, v118
    """)
    for i in range(4): k(f"v_add_u32 v{120+i}, 81920, v{116+i}")
    k(f"""
    s_lshl_b32 s{sRl}, s{sU0}, 4
    s_add_u32 s{sRl}, s{sRl}, s{sU1}
    s_mul_i32 s{sRl}, s{sRl}, 1280
    v_lshrrev_b32 v4, 2, v1
    v_mul_u32_u24 v4, {4*1280}, v4
    v_and_b32 v5, 3, v0
    v_lshl_add_u32 v4, v5, 3, v4
    v_lshl_add_u32 v{vO}, v2, 5, v4
    v_add_u32 v{vO}, s{sRl}, v{vO}
    s_mul_i32 s{sU1}, s{sTb}, {64*1280}
    s_mul_i32 s{sRl}, s{sNb}, 160
    s_add_u32 s{sU1}, s{sU1}, s{sRl}
    s_sub_u32 s{sOut+2}, {S*D*2}, s{sU1}
    s_mov_b32 s{sOut+3}, 0x00020000
    s_waitcnt lgkmcnt(0)
    s_add_u32 s{sOut}, s{sOut}, s{sU1}
    s_addc_u32 s{sOut+1}, s{sOut+1}, 0
    s_barrier
    """)
    def unit(reg, addr, off):
        return [f"ds_read_b128 v[{reg+4*w}:{reg+4*w+3}], v{addr+w} offset:{off}" for w in range(8)]
    def summ(reg, left):
        out = []
        for w in range(1, 8):
            if w in (1, 3, 5, 7): out.append(f"s_waitcnt lgkmcnt({min(15, left + 7 - w)})")
            if w in (2, 4, 6): pass
            out += [f"v_pk_add_f32 v[{reg+2*h}:{reg+2*h+1}], v[{reg+2*h}:{reg+2*h+1}], v[{reg+4*w+2*h}:{reg+4*w+2*h+1}]" for h in range(2)]
        return out
    U0, U1, U2 = 8, 40, 72
    for x in unit(U0, 116, 0) + unit(U1, 116, 256): k(x)
    def fin(reg, addr, off):
        return [f"v_cvt_pk_bf16_f32 v{reg}, v{reg}, v{reg+1}", f"v_cvt_pk_bf16_f32 v{reg+1}, v{reg+2}, v{reg+3}",
                f"buffer_store_dwordx2 v[{reg}:{reg+1}], v{addr}, s[{sOut}:{sOut+3}], 0 offen offset:{off}"]
    def adds(reg, left):
        out = []
        for w in range(1, 8):
            out.append(f"s_waitcnt lgkmcnt({left + 7 - w})")
            out += [f"v_pk_add_f32 v[{reg+2*h}:{reg+2*h+1}], v[{reg+2*h}:{reg+2*h+1}], v[{reg+4*w+2*h}:{reg+4*w+2*h+1}]" for h in range(2)]
        return out
    LB, LE = k.uniq("nob"), k.uniq("rend")
    for x in adds(U0, 8) + fin(U0, vO, 0): k(x)
    k(f"s_cmp_ge_u32 s{sW}, 4\ns_cbranch_scc1 {LB}")
    k(f"""
    s_mul_i32 s{sSa}, s{sW}, 5120
    s_mov_b32 s{sSb}, 15360
    s_cmp_eq_u32 s{sW}, 3
    s_cselect_b32 s{sSa}, 61440, s{sSa}
    s_cselect_b32 s{sSb}, 5120, s{sSb}
    v_lshlrev_b32 v3, 4, v1
    v_lshl_add_u32 v3, v2, 8, v3
    v_add_u32 v108, s{sSa}, v3
    v_add_u32 v109, s{sSb}, v108
    v_add_u32 v110, s{sSb}, v109
    v_add_u32 v111, s{sSb}, v110
    """)
    for i in range(4): k(f"v_add_u32 v{112+i}, 81920, v{108+i}")
    for x in unit(U2, 108, 4096): k(x)
    k(f"""
    s_mul_i32 s{sRl}, s{sW}, {16*1280}
    v_mul_u32_u24 v5, 1280, v2
    v_add3_u32 v5, v5, v4, s{sRl}
    """)
    for x in adds(U1, 8) + fin(U1, vO, 1280): k(x)
    for x in adds(U2, 0) + fin(U2, 5, 128): k(x)
    k(f"s_branch {LE}")
    k.label(LB)
    for x in adds(U1, 0) + fin(U1, vO, 1280): k(x)
    k.label(LE)

def gen_k3(name="p3_kernel", prof=False):
    k = Kern(name, block=512, grid=256, lds=163840, vgpr=256)
    END = name + "_end"
    k(f"""
    s_cmp_ge_u32 s2, 256
    s_cbranch_scc1 {END}
    s_load_dwordx2 s[{sWS}:{sWS+1}], s[0:1], 80
    {stamp(prof, 0)}
    v_lshrrev_b32 v1, 6, v0
    v_and_b32 v0, 63, v0
    s_nop 0
    v_readfirstlane_b32 s{sW}, v1
    s_waitcnt lgkmcnt(0)
    """)
    p3_setup(k)
    vq = VQ()
    for s in range(4):
        vq.add(k, slot_loads(s, s, "a"), ('a', s)); vq.add(k, slot_loads(s, s, "b"), ('b', s))
    vq.add(k, g_loads(), 'g')
    k(stamp(prof, 1))
    for s in range(7):
        compute_slot(k, vq, s, s % 4, nxt=(s + 4 if s < 6 else None), first=(s == 0))
        if s == 0: k(stamp(prof, 2))
    k("s_nop 7")
    scale(k, vq)
    k(stamp(prof, 3))
    k("s_waitcnt vmcnt(0)")
    k(stamp(prof, 4))
    o_phase(k, [3, 0, 1])
    k(stamp(prof, 5))
    reduce_store(k)
    if prof: prof_out(k, 6, sWS, sW)
    k.label(END)
    k("s_endpgm")
    return k

if __name__ == "__main__":
    k = gen_k3()
    for w in range(8):
        for e in check(k, init=dict(wg=77, wave=w), verbose=True): print(e)
```

```python
from build import *
from p1 import gen_k1
from p2 import gen_k2
from p3 import gen_k3
import sys
ref = open('gated_mix__softmax_full_mha__geglu_ffn__prompt.s.ref').read().split("\n")
hdr = "\n".join(l for l in ref[:12]) + "\n"
ks = [gen_k1("p1_kernel", 4), gen_k2("p2_kernel", pattern=1, prio={0: 3, 18: 2, 25: 1, 30: 0}), gen_k3("p3_kernel")]
for k in ks:
    for wg in (3, 77, 200):
        for w in range(8):
            for e in check(k, init=dict(wg=wg, wave=w)): print(e)
build(hdr, ks, [(k, 256) for k in ks], "out_3k")
import shutil
shutil.copy("out_3k.s", "gated_mix__softmax_full_mha__geglu_ffn__prompt.s")
```

```python
import re

class Kern:
    def __init__(self, name, block, grid, lds, vgpr, sgpr=96, accum=None):
        self.name, self.block, self.grid, self.lds = name, block, grid, lds
        self.vgpr, self.sgpr = vgpr, sgpr
        self.accum = accum if accum is not None else ((vgpr + 3) // 4) * 4
        self.lines = []
        self._n = 0
    def __call__(self, s=""):
        for l in s.split("\n"):
            l = l.strip()
            if l:
                self.lines.append(l)
    def label(self, l):
        self.lines.append(l + ":")
    def uniq(self, base):
        self._n += 1
        return f"L_{self.name}_{base}_{self._n}"
    def text(self):
        out = [f".globl {self.name}", ".p2align 8", f".type {self.name},@function", f"{self.name}:"]
        for l in self.lines:
            out.append(l if (l.endswith(":") or l.startswith(".")) else "    " + l)
        return "\n".join(out) + "\n"
    def desc(self):
        return f""".p2align 6
.amdhsa_kernel {self.name}
  .amdhsa_next_free_vgpr {self.vgpr}
  .amdhsa_next_free_sgpr {self.sgpr}
  .amdhsa_accum_offset {self.accum}
  .amdhsa_group_segment_fixed_size 0
  .amdhsa_kernarg_size 88
  .amdhsa_user_sgpr_count 2
  .amdhsa_user_sgpr_kernarg_segment_ptr 1
  .amdhsa_system_sgpr_workgroup_id_x 1
.end_amdhsa_kernel
"""

def vr(a, n=1):
    return f"v{a}" if n == 1 else f"v[{a}:{a+n-1}]"
def sr(a, n=1):
    return f"s{a}" if n == 1 else f"s[{a}:{a+n-1}]"

def assemble_file(header, kerns, launches):
    s = header
    for (k, grid) in launches:
        s += f"; @launch kernel={k.name} grid=({grid},1,1) block=({k.block},1,1) lds={k.lds}\n"
    s += '.amdgcn_target "amdgcn-amd-amdhsa--gfx950"\n.text\n'
    for k in kerns:
        s += k.text()
    s += '.section .rodata,"a"\n'
    for k in kerns:
        s += k.desc()
    return s

class VQ:
    def __init__(self, q=()): self.q = list(q)
    def note(self, ins, tag):
        for x in ins:
            if x and x.startswith(("buffer_", "global_")): self.q.append(tag)
        return ins
    def add(self, k, ins, tag):
        for x in self.note(ins, tag): k(x or "s_nop 0")
    def wait(self, *tags):
        i = max((j for j, t in enumerate(self.q) if t in tags), default=-1)
        if i < 0: return 63
        n = len(self.q) - 1 - i
        self.q = self.q[i + 1:]
        return n

PROF_S = 64
WS_PROF = 0x8000000
def stamp(on, i):
    if not on: return ""
    if on == "rt": return f"s_memrealtime s[{PROF_S+2*i}:{PROF_S+2*i+1}]"
    return f"s_memtime s[{PROF_S+2*i}:{PROF_S+2*i+1}]\ns_memrealtime s[{PROF_S+16+2*i}:{PROF_S+17+2*i}]"
def prof_out(k, i, sWS, sW, v=100, mode=True, area=0):
    k("s_waitcnt vmcnt(0)")
    k(stamp(mode, i))
    k(f"""s_lshl_b32 s40, s2, 4
    s_add_u32 s40, s40, s{sW}
    s_lshl_b32 s40, s40, 6
    s_add_u32 s40, s40, {WS_PROF + area * 0x100000}
    s_add_u32 s44, s{sWS}, s40
    s_addc_u32 s45, s{sWS+1}, 0
    s_mov_b32 s46, 64
    s_mov_b32 s47, 0x00020000
    s_mov_b64 exec, 1
    v_mov_b32 v{v}, 0
    s_waitcnt lgkmcnt(0)""")
    for j in range(16):
        k(f"v_mov_b32 v{v+1}, s{PROF_S+2*j}")
        k(f"buffer_store_dword v{v+1}, v{v}, s[44:47], 0 offen offset:{4*j}")
    k("s_waitcnt vmcnt(0)")

_REG = re.compile(r"^(-|\|)?(?:abs\()?([vsa])(?:(\d+)|\[(\d+):(\d+)\])\)?\|?$")
def regs_of(op):
    op = op.strip()
    if op == "vcc": return [("s", "vcc_lo"), ("s", "vcc_hi")]
    if op in ("vcc_lo", "vcc_hi"): return [("s", op)]
    if op == "exec": return [("s", "exec_lo"), ("s", "exec_hi")]
    if op in ("exec_lo", "exec_hi", "m0"): return [("s", op)]
    m = _REG.match(op)
    if not m: return []
    f = m.group(2)
    if m.group(3) is not None: return [(f, int(m.group(3)))]
    return [(f, i) for i in range(int(m.group(4)), int(m.group(5)) + 1)]

TRANS = ("v_exp_", "v_log_", "v_rcp_", "v_rsq_", "v_sqrt_", "v_sin_", "v_cos_")

class Ins:
    def __init__(self, text, idx):
        self.text, self.idx = text, idx
        code = text.split(";")[0].strip()
        self.note = text.split(";", 1)[1] if ";" in text else ""
        parts = code.split(None, 1)
        self.op = parts[0]
        rest = parts[1] if len(parts) > 1 else ""
        ops, depth, cur = [], 0, ""
        for ch in rest:
            if ch in "[(": depth += 1
            if ch in "])": depth -= 1
            if ch == "," and depth == 0:
                ops.append(cur.strip()); cur = ""
            else: cur += ch
        if cur.strip(): ops.append(cur.strip())
        self.mods = ""
        if ops:
            last = ops[-1].split(None, 1)
            if len(last) > 1 and not self.op.startswith("s_waitcnt"):
                ops[-1] = last[0]; self.mods = last[1]
        self.ops = ops
        self.classify()
    def classify(self):
        op, ops = self.op, self.ops
        R = lambda l: [r for o in l for r in regs_of(o)]
        self.kind = "other"; self.dst = []; self.src = []
        self.passes = 0
        if op.startswith("v_mfma") or op.startswith("v_smfmac"):
            self.kind = "mfma"
            self.dst = R(ops[:1]); self.srcA = R(ops[1:2]); self.srcB = R(ops[2:3]); self.srcC = R(ops[3:4])
            self.src = self.srcA + self.srcB + self.srcC
            self.passes = 8 if "32x32" in op else 4
        elif op.startswith("v_"):
            self.kind = "valu"
            nd = 1
            if op.startswith(("v_add_co", "v_sub_co", "v_addc_co", "v_subb_co", "v_subrev_co", "v_div_scale", "v_mad_u64_u32")): nd = 2
            if op.startswith(("v_permlane32_swap", "v_permlane16_swap", "v_swap")):
                self.dst = R(ops); self.src = R(ops)
            else:
                self.dst = R(ops[:nd]); self.src = R(ops[nd:])
                if op.startswith(("v_fmac", "v_pk_fmac", "v_dot2c", "v_mac", "v_writelane")) or "UNUSED_PRESERVE" in self.mods or ("dpp" in op or "row_" in self.mods or "quad_perm" in self.mods):
                    self.src += self.dst
                if op.startswith("v_cmpx"): self.dst += regs_of("exec")
            if op == "v_nop": self.kind = "other"
        elif op.startswith("ds_"):
            self.kind = "ds"
            if op.startswith(("ds_read", "ds_bpermute", "ds_permute", "ds_swizzle")) or "_rtn" in op:
                self.dst = R(ops[:1]); self.src = R(ops[1:])
            else:
                self.src = R(ops)
        elif op.startswith("buffer_") or op.startswith("global_"):
            self.kind = "vmem"
            self.lds = (" lds" in " " + self.mods) or "_lds_" in op
            if op.startswith(("buffer_wbl2", "buffer_inv")):
                pass
            elif "load" in op and not self.lds:
                self.dst = R(ops[:1]); self.src = R(ops[1:])
            elif "atomic" in op and "sc0" in self.mods and op.startswith("buffer_"):
                self.dst = R(ops[:1]); self.src = R(ops)
            elif "atomic" in op and "sc0" in self.mods:
                self.dst = R(ops[:1]); self.src = R(ops[1:])
            else:
                self.src = R(ops)
            if self.lds: self.src += regs_of("m0")
            self.store_data = []
            if "store" in op and ("x3" in op or "x4" in op):
                self.store_data = R(ops[:1]) if op.startswith("buffer_") else R(ops[1:2])
        elif op.startswith(("s_load", "s_buffer_load", "s_memtime", "s_memrealtime", "s_atomic")):
            self.kind = "smem"
            self.dst = R(ops[:1]); self.src = R(ops[1:])
        elif op.startswith("s_"):
            self.kind = "salu"
            if op.startswith(("s_cmp", "s_cbranch", "s_branch", "s_waitcnt", "s_barrier", "s_nop", "s_endpgm", "s_setprio", "s_sleep", "s_bitcmp", "s_setreg")):
                self.src = R(ops)
            else:
                self.dst = R(ops[:1]); self.src = R(ops[1:])
                if "saveexec" in op: self.dst += regs_of("exec")
        self.trans = op.startswith(TRANS)

def _imm(x):
    try:
        if x.startswith("0x") or x.startswith("-0x"): return int(x, 16) & 0xffffffff
        return int(x) & 0xffffffff
    except Exception:
        return None

def check(kern, init=None, branch=None, maxsteps=400000, verbose=False):
    init = dict(init or {}); branch = dict(branch or {})
    ins, labels = [], {}
    for l in kern.lines:
        if l.endswith(":"): labels[l[:-1]] = len(ins)
        elif l.startswith(".") or l.startswith(";"): continue
        else: ins.append(Ins(l, len(ins)))
    S = {}
    if "wg" in init: S[2] = init["wg"]
    scc = None
    errs = []
    t = 0
    lastw = {}
    mfma_c = []
    stores = []
    vmq, lgq = [], []
    pc, steps = 0, 0
    seen = set()
    def err(msg, i, j=None):
        key = (msg, i.idx, j.idx if j else None)
        if key not in seen:
            seen.add(key)
            errs.append(f"{kern.name}: {msg}: [{i.idx}] {i.text}" + (f"   <- [{j.idx}] {j.text}" if j else ""))
    def val(o):
        r = regs_of(o)
        if len(r) == 1 and r[0][0] == "s": return S.get(r[0][1])
        if r: return None
        return _imm(o)
    counts = {}
    while pc < len(ins) and steps < maxsteps:
        i = ins[pc]; steps += 1
        counts[i.kind] = counts.get(i.kind, 0) + 1
        touched = set(i.src) | set(i.dst)
        for q, nm in ((vmq, "vmcnt"), (lgq, "lgkmcnt")):
            for (d, j) in q:
                if d & touched:
                    if i.kind in ("ds", "vmem") and i.kind == j.kind and not (d & set(i.src)):
                        continue
                    err(f"register of outstanding load used before {nm} wait", i, j)
        def need(regs, n, pred, msg):
            for r in regs:
                w = lastw.get(r)
                if w and pred(w[1]) and t - w[0] < n:
                    err(f"{msg} needs {n} wait states, has {t - w[0]}", i, w[1])
        isv = lambda j: j.kind == "valu"
        ism = lambda j: j.kind == "mfma"
        if i.kind == "mfma":
            need(i.src, 2, isv, "VALU->MFMA")
            for r in i.srcA + i.srcB:
                w = lastw.get(r)
                if w and ism(w[1]) and t - w[0] < w[1].passes + 4: err("MFMA D->MFMA A/B", i, w[1])
            for r in i.srcC:
                w = lastw.get(r)
                if w and ism(w[1]) and not (w[1].dst == i.srcC and w[1].passes == i.passes) and t - w[0] < w[1].passes + 2:
                    err("MFMA D->MFMA C overlap", i, w[1])
            need(regs_of("exec"), 4, isv, "VALU exec->MFMA")
        if i.kind in ("valu", "vmem", "ds"):
            for r in set(i.src) | set(i.dst):
                w = lastw.get(r)
                if w and ism(w[1]) and t - w[0] < w[1].passes + 4:
                    err(f"MFMA D->VALU/mem needs {w[1].passes+4}, has {t-w[0]}", i, w[1])
        if i.kind == "valu":
            for (tm, j) in mfma_c:
                if t - tm < j.passes - 1 and set(j.srcC) & set(i.dst): err("MFMA C WAR", i, j)
            if not i.trans: need(i.src, 1, lambda j: j.trans, "trans->VALU")
            sg = [r for r in i.src if r[0] == "s"]
            need(sg, 2, isv, "VALU sgpr->VALU const")
            if i.op.startswith(("v_readfirstlane", "v_readlane")):
                need([r for r in i.src if r[0] == "v"], 1, isv, "VALU->readlane")
                need(sg, 4, isv, "VALU sgpr->lane select")
            if i.op.startswith("v_permlane"): need(i.src, 2, isv, "VALU->permlane")
            if "dpp" in i.op or "row_" in i.mods or "quad_perm" in i.mods: need([r for r in i.src if r[0] == "v"], 2, isv, "VALU->DPP")
            need(i.src, 1, lambda j: j.kind == "valu" and ("sdwa" in j.op or ("op_sel:" in j.mods and not j.op.startswith("v_pk_"))), "SDWA/opsel->VALU")
            for (tm, rg, j) in stores:
                if t - tm < 2 and rg & set(i.dst): err("store data WAR", i, j)
        elif i.dst:
            for (tm, rg, j) in stores:
                if t - tm < 1 and rg & set(i.dst): err("store data WAR", i, j)
        if i.kind == "vmem":
            need([r for r in i.src if r[0] == "s"], 5, isv, "VALU sgpr->VMEM")
            if i.lds: need(regs_of("m0"), 1, lambda j: j.kind == "salu", "M0->LDS DMA")
        if i.kind == "salu" and i.op.startswith("s_cbranch_vcc"):
            pass
        nxt = pc + 1
        op, o = i.op, i.ops
        dt = 1
        if op == "s_nop": dt = int(o[0]) + 1
        if op == "s_endpgm": break
        if op == "s_waitcnt":
            txt = i.text.split(";")[0]
            m = re.search(r"vmcnt\((\d+)\)", txt)
            if m:
                n = int(m.group(1));
                while len(vmq) > n: vmq.pop(0)
            m = re.search(r"lgkmcnt\((\d+)\)", txt)
            if m:
                n = int(m.group(1))
                if n > 0 and any(j.kind == "smem" for _, j in lgq): err("counted lgkmcnt with SMEM outstanding", i)
                while len(lgq) > n: lgq.pop(0)
        if i.kind == "vmem" and not op.startswith(("buffer_inv",)):
            vmq.append((set(i.dst), i))
            if len(vmq) > 63: err("more than 63 vmem outstanding (counter saturates; fine only if waits account for it)", i)
            if getattr(i, "store_data", None): stores.append((t + 1, set(i.store_data), i)); stores = stores[-4:]
        if i.kind in ("ds", "smem"):
            lgq.append((set(i.dst), i))
        if i.kind in ("valu", "mfma", "salu"):
            for r in i.dst: lastw[r] = (t + dt, i)
        else:
            for r in i.dst: lastw.pop(r, None)
        if i.kind == "mfma":
            mfma_c.append((t + 1, i)); mfma_c = mfma_c[-4:]
        for r in i.dst:
            if r[0] == "s" and i.kind != "salu": S.pop(r[1], None)
        if i.kind == "salu":
            d = i.dst[0][1] if (i.dst and len(regs_of(o[0])) == 1) else None
            a = val(o[1]) if len(o) > 1 else None
            b = val(o[2]) if len(o) > 2 else None
            both = a is not None and b is not None
            M = 0xffffffff
            res = None
            if op in ("s_mov_b32", "s_movk_i32"): res = a
            elif op in ("s_add_u32", "s_add_i32"):
                res = (a + b) & M if both else None; scc = ((a + b) >> 32) if both else None
            elif op in ("s_sub_u32", "s_sub_i32"):
                res = (a - b) & M if both else None; scc = int(a < b) if both else None
            elif op == "s_addk_i32":
                c = S.get(d); res = (c + a) & M if c is not None and a is not None else None; scc = None
            elif op == "s_mul_i32": res = (a * b) & M if both else None
            elif op == "s_mul_hi_u32": res = (a * b) >> 32 if both else None
            elif op == "s_lshl_b32": res = (a << (b & 31)) & M if both else None; scc = None if res is None else int(res != 0)
            elif op == "s_lshr_b32": res = a >> (b & 31) if both else None; scc = None if res is None else int(res != 0)
            elif op == "s_and_b32": res = a & b if both else None; scc = None if res is None else int(res != 0)
            elif op == "s_or_b32": res = a | b if both else None; scc = None if res is None else int(res != 0)
            elif op == "s_xor_b32": res = a ^ b if both else None; scc = None if res is None else int(res != 0)
            elif op == "s_min_u32": res = min(a, b) if both else None; scc = None
            elif op == "s_cselect_b32": res = None if scc is None else (a if scc else b)
            elif op.startswith("s_cmp_") or op.startswith("s_cmpk_"):
                x, y = val(o[0]), val(o[1])
                if x is None or y is None: scc = None
                else:
                    c = op.split("_")[2]
                    if op.endswith("i32"):
                        x = x - (1 << 32) if x >> 31 else x; y = y - (1 << 32) if y >> 31 else y
                    scc = int({"eq": x == y, "lg": x != y, "lt": x < y, "le": x <= y, "gt": x > y, "ge": x >= y}[c])
            elif op == "s_branch": nxt = labels[o[0]]
            elif op in ("s_cbranch_scc0", "s_cbranch_scc1"):
                tk = branch.get(o[0], False) if scc is None else (scc == int(op[-1]))
                if tk: nxt = labels[o[0]]
            elif op.startswith("s_cbranch"):
                if branch.get(o[0], False): nxt = labels[o[0]]
            elif op in ("s_waitcnt", "s_barrier", "s_nop", "s_setprio", "s_sleep"): pass
            else:
                if not op.startswith(("s_mov_b64", "s_getreg", "s_setreg")): scc = None
            if i.dst:
                for r in i.dst: S.pop(r[1], None)
                if d is not None and res is not None: S[d] = res
        m = re.search(r"@set s(\d+)=(\w+)", i.note)
        if m and m.group(2) in init: S[int(m.group(1))] = init[m.group(2)]
        t += dt
        pc = nxt
    if steps >= maxsteps: errs.append(f"{kern.name}: trace did not end")
    if verbose: print(kern.name, init, "steps", steps, counts)
    return errs

def gen_probe(name, a, b, mult=10):
    k = Kern(name, block=64, grid=1, lds=0, vgpr=32)
    END = name + "_end"
    k(f"""
    s_cmp_ge_u32 s2, 1
    s_cbranch_scc1 {END}
    s_load_dwordx2 s[4:5], s[0:1], 80
    s_memrealtime s[20:21]
    s_waitcnt lgkmcnt(0)
    s_add_u32 s8, s4, {WS_PROF}
    s_addc_u32 s9, s5, 0
    s_mov_b32 s10, 0x1000000
    s_mov_b32 s11, 0x00020000
    v_lshrrev_b32 v1, 3, v0
    v_and_b32 v2, 7, v0
    v_lshlrev_b32 v1, 10, v1
    v_lshl_add_u32 v1, v2, 6, v1
    v_mov_b32 v4, -1
    v_mov_b32 v5, 0
    s_mov_b32 s12, {a[0] * 0x100000 + 4 * a[1]}
    s_mov_b32 s13, {b[0] * 0x100000 + 4 * b[1]}
    s_mov_b32 s14, 32
    {name}_l:
    buffer_load_dword v6, v1, s[8:11], s12 offen
    buffer_load_dword v7, v1, s[8:11], s13 offen
    s_waitcnt vmcnt(0)
    v_min_u32 v4, v4, v6
    v_max_u32 v5, v5, v7
    v_add_u32 v1, 8192, v1
    s_sub_u32 s14, s14, 1
    s_cmp_lg_u32 s14, 0
    s_cbranch_scc1 {name}_l
    s_mov_b32 s15, -1
    s_mov_b32 s16, 0
    s_nop 4
    """)
    for l in range(64):
        k(f"v_readlane_b32 s17, v4, {l}\nv_readlane_b32 s18, v5, {l}\ns_nop 0\ns_min_u32 s15, s15, s17\ns_max_u32 s16, s16, s18")
    k(f"""
    s_sub_u32 s16, s16, s15
    s_min_u32 s16, s16, 10000
    s_mul_i32 s16, s16, {mult}
    s_add_u32 s16, s16, 1000
    {name}_s:
    s_memrealtime s[22:23]
    s_waitcnt lgkmcnt(0)
    s_sub_u32 s22, s22, s20
    s_cmp_lt_u32 s22, s16
    s_cbranch_scc1 {name}_s
    """)
    k.label(END)
    k("s_endpgm")
    return k
```

```python
from asmlib import *
from layout import *
import p1, p2, p3
from p1 import *
from p3 import sA, sB, sOut, sTb, sNb, sSa, sSb, sU0, sU1, sRe, sRl, vL, vL2, BUFA, BUFB, vG3

sTS = 96
sSY = 100
vIni = 255
vPo = 248
SPIN = 1 << 16

def spin_loop(k, name, load, cond, back, sCount=34):
    L = name + "_l"
    k.label(name)
    k(f"s_mov_b32 s{sCount}, {SPIN}")
    k.label(L)
    for x in load: k(x)
    k("s_waitcnt vmcnt(0)")
    for x in cond: k(x)
    k(f"""
    s_sub_u32 s{sCount}, s{sCount}, 1
    s_cbranch_scc1 {back}
    s_cbranch_vccnz {L}
    s_branch {back}
    """)

def gen(name, NW=5, prof=False, area=0, n0=4, bars=(3, 9), prio={0: 3, 18: 2, 25: 1, 30: 0}, pattern=1, gsplit=12, xbar=24, pf0=14, warm=True, pbar=(), arr=3, paced=True, itail=True, obar=True):
    k = Kern(name, block=512, grid=256, lds=163840, vgpr=256, sgpr=102)
    END = name + "_end"
    tails = []
    st = lambda i: stamp(prof, i)
    sl = lambda i: [st(i)] if prof else []
    k(f"s_cmp_ge_u32 s2, 256\ns_cbranch_scc1 {END}")
    p1_setup(k, prof)
    LZ = k.uniq("noz")
    k(f"""
    s_add_u32 s{sSY}, s{sWS}, {WS_SYNC}
    s_addc_u32 s{sSY+1}, s{sWS+1}, 0
    s_or_b32 s{sT[0]}, s2, s{sW}
    s_cbranch_scc1 {LZ}
    v_mul_u32_u24 v5, {SY_STRIDE}, v0
    v_mov_b32 v6, 0
    s_mov_b64 exec, {hex((1 << SY_N) - 1)}
    global_store_dword v5, v6, s[{sSY}:{sSY+1}]{SC1}
    s_mov_b64 exec, -1
    {LZ}:
    """)
    def pro(extra=None):
        def f(k, vq):
            k(f"s_mov_b32 s{sTS}, s{sCb}\ns_mov_b32 s{sTS+1}, s{sTg}\ns_mov_b32 s{sTS+2}, s{sCg}")
            p2.p2_ids(k)
            p2.o_addr(k, 44, vPo + 4, vPo + 5, 13, 14)
            k(f"s_mov_b32 s{sCb}, s{sTS}\ns_mov_b32 s{sTg}, s{sTS+1}\ns_mov_b32 s{sCg}, s{sTS+2}")
            for r in range(4): k(f"v_mov_b32 v{vPo+r}, -1")
            if extra: extra(k)
        return f
    LI = lambda: k.uniq("noi")
    def hooks(side):
        l = LI()
        h = {1: [(None, [f"s_or_b32 s{sT[0]}, s2, s{sW}", f"s_cbranch_scc1 {l}", f"v_mov_b32 v13, 0", f"v_mov_b32 v14, 1", "s_mov_b64 exec, 1",
                         f" global_store_dword v13, v14, s[{sDBG}:{sDBG+1}]{SC1}", "s_mov_b64 exec, -1", l + ":"])],
             2: [('po', [f"buffer_store_dwordx4 v[{vPo}:{vPo+3}], v{vPo+4}, s[44:47], 0 offen{SC1}"]),
                 ('po', [f"buffer_store_dwordx2 v[{vPo}:{vPo+1}], v{vPo+5}, s[44:47], 0 offen{SC1}"])],
             8: [('ini', [f"v_mov_b32 v{vIni}, 0", f"global_load_dword v{vIni}, v{vIni}, s[{sDBG}:{sDBG+1}]{SC1}"])]}
        if side:
            g, gl = side_loads()
            s0 = max(max(s for s in range(20) if s % NW == j) for j in (0, 1))
            h[s0] = [('side', x) for x in g]
            h[s0 - 1] = [('side', x) for x in gl[:5]]
            h[s0] += [('side', x) for x in gl[5:]]
        return h
    def init_check():
        nm, back = k.uniq("ispin"), k.uniq("iback")
        k(f"v_cmp_ne_u32 vcc, 1, v{vIni}\ns_cbranch_vccnz {nm}")
        k.label(back)
        tails.append(lambda: spin_loop(k, nm, [f"v_mov_b32 v{vIni}, 0", f"global_load_dword v{vIni}, v{vIni}, s[{sDBG}:{sDBG+1}]{SC1}"],
                                       [f"v_cmp_ne_u32 vcc, 1, v{vIni}"], back))
    def qkv_wait():
        L, X = k.uniq("qspin"), k.uniq("qdone")
        k(f"""
        s_lshr_b32 s{p2.sT0}, s{p2.sHead}, 4
        s_add_u32 s{p2.sT0}, s{p2.sT0}, {SY_FLAG}
        v_lshl_add_u32 v5, v0, 1, s{p2.sT0}
        v_mul_u32_u24 v5, {SY_STRIDE}, v5
        s_mov_b32 s34, {SPIN}
        s_mov_b64 exec, 7
        {L}:
        global_load_dword v6, v5, s[{sSY}:{sSY+1}]{SC1}
        s_waitcnt vmcnt(0)
        v_cmp_ne_u32 vcc, 1, v6
        s_sub_u32 s34, s34, 1
        s_cbranch_scc1 {X}
        s_cbranch_vccnz {L}
        {X}:
        s_mov_b64 exec, -1
        """)
    LQ, LV, L20, LJ = name + "_qkv", name + "_v", name + "_f20", name + "_att"
    k(f"s_cmp_ge_u32 s{sCb}, 10\ns_cbranch_scc1 {LQ}")
    ffn_wave_params(k)
    k(f"s_cmp_lg_u32 s{sMode}, 0\ns_cbranch_scc1 {L20}")
    for var in ('F24', 'F20'):
        if var == 'F20': k.label(L20)
        p1_loop(k, var, NW, prof, True, hooks(False), pro(), pbar, False, paced)
        h_store_setup(k, var)
        g = gelu_math(k, var)
        n = len(g) // (12 if var == 'F24' else 10)
        hs = h_stores(var)
        def rest():
            for x in g[n * gsplit:]: k(x)
            k("s_nop 1")
            for x in hs: k(x)
            k(st(15))
            p2.p2_init_regs(k)
            p3.p3_setup(k)
        for x in g[:n * gsplit]: k(x)
        late = n * gsplit < len(g)
        if not late: rest()
        init_check()
        p2.p2_setup(k)
        qkv_wait()
        k(st(3))
        p2.p2_first_loads(k, n0)
        if late: rest()
        k(p2.first_wait(n0, sum(x.startswith("buffer") for x in hs) if late else 0, bars) + " lgkmcnt(0)")
        k(f"s_branch {LJ}")
    k.label(LQ)
    k(f"s_cmp_ge_u32 s{sCb}, 14\ns_cbranch_scc1 {LV}")
    LS = name + "_side"
    p1_loop(k, 'QK', NW, prof, True, hooks(True), pro(side_params), pbar, False, paced, qk_tail() if itail else None)
    if not itail:
        k("s_nop 7")
        qk_epilogue(k)
    k(f"s_branch {LS}")
    k.label(LV)
    p1_loop(k, 'V', NW, prof, True, hooks(True), pro(side_params), pbar, False, paced, v_tail() if itail else None)
    if not itail:
        k("s_nop 7")
        v_epilogue(k)
    k.label(LS)
    init_check()
    LA, LF = k.uniq("noarr"), k.uniq("noflag")
    k(f"""
    s_sub_u32 s{sT[0]}, s{sCb}, 10
    s_mul_i32 s{sT[0]}, s{sT[0]}, {SY_STRIDE}
    v_mov_b32 v11, s{sT[0]}
    v_mov_b32 v12, 1
    v_mov_b32 v13, 0
    s_waitcnt vmcnt(0)
    s_barrier
    {st(15)}
    s_cmp_lg_u32 s{sW}, 0
    s_cbranch_scc1 {LA}
    s_mov_b64 exec, 1
    global_atomic_add v13, v11, v12, s[{sSY}:{sSY+1}] sc0 sc1
    s_mov_b64 exec, -1
    {LA}:
    """)
    side_compute(k)
    k(f"""
    s_waitcnt vmcnt(0)
    v_cmp_eq_u32 vcc, 15, v13
    v_add_u32 v11, {SY_FLAG * SY_STRIDE}, v11
    s_cbranch_vccz {LF}
    s_mov_b64 exec, 1
    global_store_dword v11, v12, s[{sSY}:{sSY+1}]{SC1}
    s_mov_b64 exec, -1
    {LF}:
    """)
    side_stores(k)
    k("s_barrier")
    p2.p2_setup(k)
    p2.p2_init_regs(k)
    p3.p3_setup(k)
    qkv_wait()
    k(st(3))
    p2.p2_first_loads(k, n0)
    k(p2.first_wait(n0, 0, bars) + " lgkmcnt(0)")
    k.label(LJ)
    LD = k.uniq("nodone")
    arrive = [f"s_cmp_lg_u32 s{sW}, 0", f"s_cbranch_scc1 {LD}", f"s_and_b32 s{sU0}, s2, 15", f"s_add_u32 s{sU0}, s{sU0}, {SY_P1}", f"s_mul_i32 s{sU0}, s{sU0}, {SY_STRIDE}",
              f"v_mov_b32 v5, s{sU0}", "v_mov_b32 v6, 1", "s_mov_b64 exec, 1", f"global_atomic_add v5, v6, s[{sSY}:{sSY+1}]{SC1}", "s_mov_b64 exec, -1", LD + ":"]
    pload = [f"global_load_dword v6, v5, s[{sSY}:{sSY+1}]{SC1}"]
    pcond = ["v_cmp_ne_u32 vcc, 16, v6"]
    nm, back = k.uniq("pspin"), k.uniq("pback")
    tails.append(lambda: spin_loop(k, nm, ["s_sleep 4"] + pload, pcond, back))
    extra = {}
    def put(u, tag, g): extra.setdefault(u, []).append((tag, g))
    put(pf0 - 2, 'p1', ["v_and_b32 v5, 15, v0", f"v_add_u32 v5, {SY_P1}, v5", f"v_mul_u32_u24 v5, {SY_STRIDE}, v5"] + pload)
    put(pf0, None, lambda vq: [f"s_waitcnt vmcnt({vq.wait('p1')})"] + pcond + [f"s_cbranch_vccnz {nm}", back + ":"] + sl(6))
    seq = []
    for s in range(4):
        if s < 3:
            l = p3.slot_loads(s, s, "a"); i = len(l) - 4
            seq += [(('a', s), l[:i + 1])] + [(('a', s), [x]) for x in l[i + 1:]]
        l = p3.slot_loads(s, s, "b"); i = len(l) - 5
        seq += [(('b', s), l[:i + 1])] + [(('b', s), [x]) for x in l[i + 1:]]
    if warm:
        w = [f"s_lshr_b32 s{sU0}, s2, 3", f"s_cmp_lt_u32 s{sW}, 4", f"s_cselect_b32 s{sTS}, s{sA}, s{sB}", f"s_cselect_b32 s{sTS+1}, s{sA+1}, s{sB+1}",
             f"s_cselect_b32 s{sTS+2}, s{sA+2}, s{sB+2}", f"s_mov_b32 s{sTS+3}, 0x00020000",
             f"s_lshr_b32 s{sU1}, s{sU0}, 3", f"s_lshl_b32 s{sU1}, s{sU1}, 2", f"s_add_u32 s{sU1}, s{sU1}, s{sW}", f"s_lshl_b32 s{sU1}, s{sU1}, 13", f"s_add_u32 s{sU1}, s{sU1}, {22*4096}",
             f"s_and_b32 s{sU0}, s{sU0}, 7", f"s_lshl_b32 s{sU0}, s{sU0}, 1", f"s_and_b32 s34, s{sW}, 1", f"s_add_u32 s{sU0}, s{sU0}, s34", f"s_lshl_b32 s{sU0}, s{sU0}, 13",
             f"s_add_u32 s{sU0}, s{sU0}, {54*5120 - 131072}", f"s_cmp_lt_u32 s{sW}, 4", f"s_cselect_b32 s34, s{sU1}, s{sU0}",
             f"v_lshlrev_b32 v5, 7, v0", f"buffer_load_dword v125, v5, s[{sTS}:{sTS+3}], s34 offen{SC1}"]
        seq += [('w', w), ('w', [f"buffer_load_dword v126, v5, s[{sTS}:{sTS+3}], s34 offen offset:64{SC1}"])]
    seq += p2.g_load()
    u = pf0 + 1
    per = -(-len(seq) // (xbar - u))
    for i, (tag, g) in enumerate(seq): put(u + i // per, tag, g)
    seq = []
    for i, s in enumerate((7, 8, 9)):
        for nt in range(5):
            g = []
            if nt == 0: g += p3.so_b(s)
            if nt in (0, 4): g += [f"s_add_u32 m0, s{sRe}, {5120 * i + 1024 * nt}", None]
            g += [f"buffer_load_dwordx4 v{vL if nt < 4 else vL2}, s[{sB}:{sB+3}], s{sSb} offen offset:{1024 * (nt & 3)}{SC1} lds"]
            seq.append((('l', s), g))
    u = xbar + 1
    per = -(-len(seq) // (31 - u))
    for i, (tag, g) in enumerate(seq): put(u + i // per, tag, g)
    ab = {bars[-1]: sl(5), xbar: sl(7)}
    ab[arr] = arrive + ab.get(arr, [])
    vq = p2.p2_loop(k, n0=n0, bars=bars, prio=prio, extra=extra, prof=prof, pattern=pattern, xbars=(xbar,), afterbar=ab, stamps=(4, 8))
    fb = p2.p2_finish(k, vq.wait('g2'), sRl)
    vq.q += ['o', 'o']
    if obar: k('s_barrier')
    k(st(9))
    tails.append(fb)
    vq.add(k, p3.slot_loads(3, 3, "a"), ('a', 3))
    vq.add(k, p3.g_loads(), 'g')
    k(f"v_add_u32 v{p3.vRe}, s{sRe}, v{vL}")
    def lds_b(buf, i):
        return [f"ds_read_b128 v[{BUFB[buf]+4*nt}:{BUFB[buf]+4*nt+3}], v{p3.vRe} offset:{5120*i + 1024*nt}" for nt in range(5)]
    for s in range(7):
        p3.compute_slot(k, vq, s, s % 4, nxt=(s + 4 if s < 6 else None), part=("ab" if s < 3 else "a"), first=(s == 0))
        if 3 <= s < 6:
            for x in lds_b(s % 4, s - 3): k(x)
        if s == 3: k(st(10))
    k("s_nop 7")
    p3.scale(k, vq)
    k(st(11))
    oregs = [BUFA[b] + r for b in (3, 0, 1) for r in range(16)]
    chk = [f"v_max3_u32 v5, v{oregs[0]}, v{oregs[1]}, v{oregs[2]}"] + [f"v_max3_u32 v5, v5, v{a}, v{b}" for a, b in zip(oregs[3::2], oregs[4::2])] + \
          [f"v_max_u32 v5, v5, v{oregs[-1]}", "v_cmp_eq_u32 vcc, -1, v5"]
    nm2, back2 = k.uniq("ospin"), k.uniq("oback")
    k("s_waitcnt vmcnt(0) lgkmcnt(0)")
    for x in chk: k(x)
    k(f"s_cbranch_vccnz {nm2}")
    k.label(back2)
    k(st(12))
    tails.append(lambda: spin_loop(k, nm2, [x for s, b in ((7, 3), (8, 0), (9, 1)) for x in p3.slot_loads(s, b, "a")], chk, back2))
    p3.o_phase(k, [3, 0, 1])
    k(st(13))
    p3.reduce_store(k)
    if prof: prof_out(k, 14, sWS, sW, area=area, mode=prof)
    k.label(END)
    k("s_endpgm")
    for t in tails: t()
    return k

if __name__ == "__main__":
    k = gen("f_kernel"); seen = set()
    for wg in (0, 3, 77, 71, 200, 255, 196):
        for w in (0, 3, 4, 7):
            for e in check(k, init=dict(wg=wg, wave=w), verbose=(w == 0)):
                if e not in seen: seen.add(e); print(e)
```

```python
from asmlib import *
from layout import *
import struct
def f32hex(x): return "0x%08x" % struct.unpack("<I", struct.pack("<f", x))[0]

sWS, sDBG, sW = 4, 6, 3
sX, sWt, sO = 8, 12, 16
sRb, sCb, sTg, sCg = 20, 21, 22, 23
sT = [24, 25, 26, 27, 28, 29, 30, 31]
sM0x, sM0w = 32, [33, 34, 35]
sSoX, sSoW, sStr = 36, 37, 38
sFb0, sMode, sSt2 = 39, 40, 41
sC = 42
sPtr = 48
X_SLOT, W_BASE, W_SLOT, W_UP = 16384, 49152, 22528, 11264
vDx, vDw = 1, [2, 3, 4]
vXa = [[5, 6], [7, 8]]
vWa, vWb = [9, 10], [11, 12]
FR = [16, 56]
ACC = 96
HP = 192
SC1 = " sc1"

def p1_setup(k, prof=False):
    t = sT
    lo = sum(CB_TABLE[i] << (4 * i) for i in range(8)); hi = sum(CB_TABLE[8 + i] << (4 * i) for i in range(8))
    k(f"""
    s_load_dwordx16 s[{sPtr}:{sPtr+15}], s[0:1], 0
    s_load_dwordx2 s[{sWS}:{sWS+1}], s[0:1], 80
    s_load_dwordx2 s[{sDBG}:{sDBG+1}], s[0:1], 72
    {stamp(prof, 0)}
    v_lshrrev_b32 v1, 6, v0
    v_and_b32 v0, 63, v0
    s_and_b32 s{t[0]}, s2, 1
    v_readfirstlane_b32 s{sW}, v1
    s_lshl_b32 s{t[0]}, s{t[0]}, 3
    s_lshr_b32 s{t[1]}, s2, 3
    s_and_b32 s{t[2]}, s{t[1]}, 7
    s_add_u32 s{sRb}, s{t[0]}, s{t[2]}
    s_lshr_b32 s{t[1]}, s{t[1]}, 3
    s_and_b32 s{t[0]}, s2, 2
    s_lshl_b32 s{t[0]}, s{t[0]}, 1
    s_add_u32 s{t[1]}, s{t[1]}, s{t[0]}
    s_lshl_b32 s{t[1]}, s{t[1]}, 2
    s_and_b32 s{t[0]}, s2, 4
    s_mov_b32 s{t[2]}, {hex(hi)}
    s_cmp_eq_u32 s{t[0]}, 0
    s_cselect_b32 s{t[0]}, {hex(lo)}, s{t[2]}
    s_lshr_b32 s{t[0]}, s{t[0]}, s{t[1]}
    s_and_b32 s{sCb}, s{t[0]}, 15
    s_and_b32 s{sTg}, s{sW}, 1
    s_lshr_b32 s{sCg}, s{sW}, 1
    """)
    k(f"""
    s_lshl_b32 s{sM0x}, s{sW}, 10
    s_lshl_b32 s{t[0]}, s{sW}, 2
    v_lshrrev_b32 v5, 4, v0
    v_add_u32 v5, s{t[0]}, v5
    v_xor_b32 v5, v5, v0
    v_and_b32 v5, 7, v5
    v_lshlrev_b32 v5, 4, v5
    v_lshrrev_b32 v6, 3, v0
    s_mul_i32 s{t[0]}, s{sW}, {8*1280}
    v_mul_u32_u24 v6, 1280, v6
    v_add3_u32 v{vDx}, v5, v6, s{t[0]}
    s_mul_i32 s{t[1]}, s{sRb}, {128*1280}
    s_mov_b32 s{sX+2}, {128*1280}
    s_mov_b32 s{sX+3}, 0x00020000
    s_mov_b32 s{sWt+3}, 0x00020000
    s_mov_b32 s{sO+3}, 0x00020000
    """)
    LQ, LJ = k.uniq("qkvpar"), k.uniq("parj")
    k(f"""
    s_cmp_ge_u32 s{sCb}, 10
    s_cbranch_scc1 {LQ}
    s_mul_i32 s{sFb0}, s{sCb}, 11
    s_cmp_eq_u32 s{sCb}, 9
    s_cselect_b32 s{sFb0}, 98, s{sFb0}
    s_mov_b32 s{t[2]}, 2979
    s_mov_b32 s{t[3]}, 22
    s_mov_b32 s{t[4]}, 3456
    s_lshl_b32 s{t[5]}, s{sFb0}, 5
    s_and_b32 s{t[6]}, s{sW}, 3
    s_mov_b32 s{t[7]}, 4
    s_mov_b32 s{sC}, 22
    s_lshr_b32 s{sC+1}, s{sW}, 2
    s_mul_i32 s{sC+1}, s{sC+1}, {W_UP}
    s_mov_b32 s{sWt+2}, {640*3456}
    s_cmp_lt_u32 s{sW}, 4
    s_waitcnt lgkmcnt(0)
    s_cselect_b32 s{sWt}, s{sPtr+8}, s{sPtr+10}
    s_cselect_b32 s{sWt+1}, s{sPtr+9}, s{sPtr+11}
    s_branch {LJ}
    {LQ}:
    s_mov_b32 s{t[2]}, 1561
    s_mov_b32 s{t[3]}, 42
    s_mov_b32 s{t[4]}, 3840
    s_sub_u32 s{t[5]}, s{sCb}, 10
    s_mul_i32 s{t[5]}, s{t[5]}, 640
    s_mov_b32 s{t[6]}, s{sW}
    s_mov_b32 s{t[7]}, 8
    s_mov_b32 s{sC}, 40
    s_mov_b32 s{sC+1}, 0
    s_mov_b32 s{sWt+2}, {640*3840}
    s_waitcnt lgkmcnt(0)
    s_mov_b32 s{sWt}, s{sPtr+2}
    s_mov_b32 s{sWt+1}, s{sPtr+3}
    {LJ}:
    s_add_u32 s{sX}, s{sPtr}, s{t[1]}
    s_addc_u32 s{sX+1}, s{sPtr+1}, 0
    s_lshl_b32 s{sStr}, s{t[4]}, 5
    s_mov_b32 s{sSoX}, 0
    s_mov_b32 s{sSoW}, 0
    s_mov_b32 m0, s{sM0x}
    s_mov_b32 s{t[0]}, {64*1280}
    buffer_load_dwordx4 v{vDx}, s[{sX}:{sX+3}], 0 offen lds
    s_add_u32 m0, s{sM0x}, 8192
    v_mov_b32 v13, 0x7fff0000
    buffer_load_dwordx4 v{vDx}, s[{sX}:{sX+3}], s{t[0]} offen lds
    """)
    for i in range(3):
        k(f"""
        s_lshl_b32 s{t[0]}, s{t[6]}, 6
        v_add_u32 v5, s{t[0]}, v0
        v_mul_u32_u24 v6, s{t[2]}, v5
        v_lshrrev_b32 v6, 16, v6
        v_mul_u32_u24 v7, s{t[3]}, v6
        v_sub_u32 v7, v5, v7
        v_and_b32 v8, 0x13, v6
        v_and_b32 v9, 4, v6
        v_lshl_or_b32 v8, v9, 1, v8
        v_and_b32 v9, 8, v6
        v_lshrrev_b32 v9, 1, v9
        v_or_b32 v8, v8, v9
        v_mul_u32_u24 v8, s{t[4]}, v8
        v_cmp_gt_u32 vcc, s{sC}, v7
        v_lshl_add_u32 v8, v7, 4, v8
        v_add_u32 v8, s{t[5]}, v8
        v_cndmask_b32 v8, v13, v8, vcc
        v_cmp_gt_u32 vcc, 32, v6
        s_lshl_b32 s{t[0]}, s{t[6]}, 10
        s_add_u32 s{t[0]}, s{t[0]}, s{sC+1}
        v_cndmask_b32 v{vDw[i]}, v13, v8, vcc
        s_lshl_b32 s{t[1]}, s{t[6]}, 1
        s_cmp_lt_u32 s{t[1]}, s{t[3]}
        s_cselect_b32 s{sM0w[i]}, s{t[0]}, {163840 - W_BASE}
        s_add_u32 m0, s{sM0w[i]}, {W_BASE}
        s_add_u32 s{t[6]}, s{t[6]}, s{t[7]}
        buffer_load_dwordx4 v{vDw[i]}, s[{sWt}:{sWt+3}], 0 offen lds
        """)

def dma_group(n, NW):
    out = []
    if n >= 20: return out
    out.append([f"s_add_u32 s{sSoW}, s{sSoW}, s{sStr}"])
    for i in range(3):
        out.append([f"s_add_u32 m0, s{sM0w[i]}, {W_BASE + (n % NW) * W_SLOT}", None, f"buffer_load_dwordx4 v{vDw[i]}, s[{sWt}:{sWt+3}], s{sSoW} offen lds"])
    if n % 2 == 0:
        c = n // 2
        for h in range(2):
            out.append([f"s_add_u32 m0, s{sM0x}, {(c % 3) * X_SLOT + h * 8192}", f"s_mov_b32 s{sSoX}, {h * 64 * 1280 + c * 128}",
                        f"buffer_load_dwordx4 v{vDx}, s[{sX}:{sX+3}], s{sSoX} offen lds"])
    return out
def ndma(n): return 0 if n >= 20 else (5 if n % 2 == 0 else 3)

def p1_addr(k, var):
    t = sT
    pitch = 352 if var[0] == 'F' else 672
    k(f"""
    v_and_b32 v13, 15, v0
    v_lshrrev_b32 v14, 4, v0
    v_lshrrev_b32 v15, 1, v13
    v_xor_b32 v15, v15, v14
    v_lshlrev_b32 v15, 4, v15
    v_lshl_add_u32 v15, v13, 7, v15
    s_lshl_b32 s{t[0]}, s{sTg}, 13
    """)
    if var == 'F20':
        k(f"""
        s_cmp_eq_u32 s{sMode}, 2
        s_cselect_b32 s{t[1]}, 4096, 0
        s_add_u32 s{t[0]}, s{t[0]}, s{t[1]}
        """)
    k(f"""
    v_add_u32 v{vXa[0][0]}, s{t[0]}, v15
    v_xor_b32 v{vXa[0][1]}, 4096, v{vXa[0][0]}
    v_xor_b32 v{vXa[1][0]}, 64, v{vXa[0][0]}
    v_xor_b32 v{vXa[1][1]}, 64, v{vXa[0][1]}
    v_lshrrev_b32 v13, 2, v0
    v_and_b32 v15, 7, v13
    v_and_b32 v13, 8, v13
    v_lshl_or_b32 v15, v13, 1, v15
    v_mul_u32_u24 v15, {pitch}, v15
    v_and_b32 v13, 3, v0
    v_mul_u32_u24 v13, {40 if var == 'QK' else 8}, v13
    """)
    if var[0] == 'F':
        k(f"""
        s_lshl_b32 s{t[0]}, s{t[2]}, 5
        s_add_u32 s{t[0]}, s{t[0]}, {W_BASE}
        s_lshl_b32 s{t[1]}, s{t[3]}, 5
        s_add_u32 s{t[1]}, s{t[1]}, {W_BASE}
        v_add3_u32 v{vWa[0]}, v13, v15, s{t[0]}
        v_add3_u32 v{vWb[0]}, v13, v15, s{t[1]}
        v_add_u32 v{vWa[1]}, {2*W_SLOT}, v{vWa[0]}
        v_add_u32 v{vWb[1]}, {2*W_SLOT}, v{vWb[0]}
        """)
    else:
        k(f"""
        s_mul_i32 s{t[0]}, s{sCg}, 160
        s_add_u32 s{t[0]}, s{t[0]}, {W_BASE}
        v_add3_u32 v{vWa[0]}, v13, v15, s{t[0]}
        v_add_u32 v{vWa[1]}, {2*W_SLOT}, v{vWa[0]}
        """)

def frag_reads(var, s, NW):
    fs = FR[s & 1]
    out = []
    for tt in range(4):
        out.append(f"ds_read_b128 v[{fs+4*tt}:{fs+4*tt+3}], v{vXa[s & 1][tt >> 1]} offset:{((s // 2) % 3) * X_SLOT + (tt & 1) * 2048}")
    slot = s % NW
    hb = 1 if slot >= 2 else 0
    so = (slot - 2 * hb) * W_SLOT
    w0 = fs + 16
    if var[0] == 'F':
        for sl in range(3):
            for up in range(2):
                r = w0 + 4 * (2 * sl + up)
                a = vWa[hb] if sl < 2 else vWb[hb]
                for j in range(2):
                    out.append(f"ds_read_b64_tr_b16 v[{r+2*j}:{r+2*j+1}], v{a} offset:{so + up * W_UP + (32 if sl == 1 else 0) + j * 8 * 352}")
    else:
        for tl in range(5):
            r = w0 + 4 * tl
            for j in range(2):
                out.append(f"ds_read_b64_tr_b16 v[{r+2*j}:{r+2*j+1}], v{vWa[hb]} offset:{so + tl * (8 if var == 'QK' else 32) + j * 8 * 672}")
    return out

def acc_reg(var, tt, c):
    return ACC + 4 * (tt * (6 if var[0] == 'F' else 5) + c)
def mfmas(var, s):
    fs = FR[s & 1]
    out = []
    nc = 6 if var[0] == 'F' else 5
    for tt in range(4):
        for c in range(nc):
            if var == 'F20' and tt >= 2 and c >= 4: continue
            d = acc_reg(var, tt, c)
            X, W = f"v[{fs+4*tt}:{fs+4*tt+3}]", f"v[{fs+16+4*c}:{fs+19+4*c}]"
            a, b = (X, W) if var == 'V' else (W, X)
            out.append(f"v_mfma_f32_16x16x32_bf16 v[{d}:{d+3}], {a}, {b}, " + ("0" if s == 0 else f"v[{d}:{d+3}]"))
    return out

def p1_loop(k, var, NW, prof=False, compute=True, hooks=None, pro=None, pbar=(0, 1), fine=True, paced=False, tail=None):
    hooks = hooks or {}
    vq = VQ([0] * 5)
    nxt = 2 if paced else NW
    for n in range(1, nxt):
        if n - 1 in pbar: k("s_barrier")
        for g in dma_group(n, NW): vq.add(k, g, n)
    p1_addr(k, var)
    if pro: pro(k, vq)
    k(f"s_waitcnt vmcnt({vq.wait(0)})")
    k("s_barrier")
    k(stamp(prof, 1))
    for x in frag_reads(var, 0, NW): k(x)
    if paced:
        for g in dma_group(2, NW): vq.add(k, g, 2)
        nxt = 3
    for s in range(20):
        k(f"s_waitcnt vmcnt({vq.wait(s + 1)}) lgkmcnt(0)")
        k("s_barrier")
        if prof == "rt" and fine and s % 2 == 1: k(stamp(prof, 2 + s // 2))
        m = mfmas(var, s) if compute else []
        r = frag_reads(var, s + 1, NW) if (s < 19 and compute) else []
        g = []
        for _ in range(2):
            if nxt <= s + NW and nxt < 20:
                y = dma_group(nxt, NW)
                g += [(nxt, y[0] + y[1])] + [(nxt, z) for z in y[2:]]
                nxt += 1
        g += [(tag, y) for (tag, y) in hooks.get(s, [])]
        seq = []
        ri = gi = 0
        slots = len(m) - (len(r) + 1) // 2
        every = 2 if slots >= 2 * len(g) else 1
        for i, x in enumerate(m):
            seq.append(x)
            if ri < len(r):
                seq += r[ri:ri + 2]; ri += 2
            elif gi < len(g) and (i % every == 0):
                seq += vq.note(g[gi][1], g[gi][0]); gi += 1
        for y in g[gi:]: seq += vq.note(y[1], y[0])
        if s == 19 and tail:
            seq, nc = [], len(m) // 4
            for i, x in enumerate(m):
                seq.append(x)
                tt, c = divmod(i, nc)
                if tt >= 2:
                    e = tail[tt - 2]
                    seq += e[c * len(e) // nc:(c + 1) * len(e) // nc]
                elif i == 0: seq += tail[4]
            seq += tail[2] + tail[3]
        for x in seq: k(x or "s_nop 0")
    k(stamp(prof, 12 if (prof == 'rt' and fine) else 2))
    return vq

def ffn_wave_params(k):
    t = sT
    L10, LJ = k.uniq("b10"), k.uniq("bj")
    k(f"""
    s_cmp_ge_u32 s{sCb}, 8
    s_cbranch_scc1 {L10}
    s_mul_i32 s{t[2]}, s{sCg}, 3
    s_add_u32 s{t[3]}, s{t[2]}, 2
    s_add_u32 s{t[0]}, s{sCb}, 40
    s_lshl_b32 s{t[0]}, s{t[0]}, 3
    s_add_u32 s{t[0]}, s{t[0]}, s{sCg}
    s_lshl_b32 s{t[4]}, s{sCg}, 1
    s_add_u32 s{t[4]}, s{t[4]}, 2
    s_lshr_b32 s{t[1]}, s{sCb}, 1
    s_add_u32 s{t[1]}, s{t[1]}, 50
    s_lshl_b32 s{t[1]}, s{t[1]}, 3
    s_and_b32 s{t[5]}, s{sCb}, 1
    s_add_u32 s{t[1]}, s{t[1]}, s{t[5]}
    s_sub_u32 s{sMode}, s{sCg}, 1
    s_cmp_lt_u32 s{sCg}, 2
    s_cselect_b32 s{t[2]}, s{t[2]}, s{t[4]}
    s_cselect_b32 s{t[3]}, s{t[3]}, 10
    s_cselect_b32 s{sSt2}, s{t[0]}, s{t[1]}
    s_cselect_b32 s{sMode}, 0, s{sMode}
    s_branch {LJ}
    {L10}:
    s_lshl_b32 s{t[2]}, s{sCg}, 1
    s_lshr_b32 s{t[0]}, s{sCg}, 1
    s_add_u32 s{t[3]}, s{t[0]}, 8
    s_add_u32 s{sSt2}, s{sCb}, 40
    s_lshl_b32 s{sSt2}, s{sSt2}, 3
    s_add_u32 s{sSt2}, s{sSt2}, s{t[0]}
    s_and_b32 s{sMode}, s{sCg}, 1
    s_add_u32 s{sMode}, s{sMode}, 1
    {LJ}:
    s_lshl_b32 s{sSt2}, s{sSt2}, 9
    """)

def gelu_math(k, var):
    c1 = -2.0 * 1.4426950408889634 * (2.0 / 3.141592653589793) ** 0.5
    k(f"""
    s_mov_b32 s{sC}, {f32hex(c1)}
    s_mov_b32 s{sC+1}, {f32hex(c1)}
    s_mov_b32 s{sC+2}, {f32hex(c1 * 0.044715)}
    s_mov_b32 s{sC+3}, {f32hex(c1 * 0.044715)}
    v_mov_b32 v10, s{sC}
    v_mov_b32 v11, s{sC}
    """)
    items = []
    for tt in range(4):
        for sl in range(2): items.append((tt, sl, HP + 4 * tt + 2 * sl))
    for tt in range(4 if var == 'F24' else 2): items.append((tt, 2, HP + 16 + 2 * tt))
    P = lambda r: f"v[{r}:{r+1}]"
    def stage(n, ph):
        tt, sl, dst = items[n]
        g, u = acc_reg(var, tt, 2 * sl), acc_reg(var, tt, 2 * sl + 1)
        z = 16 + 4 * (n % 4)
        if ph == 0:
            return [f"v_pk_mul_f32 {P(z+2*h)}, {P(g+2*h)}, {P(g+2*h)}" for h in range(2)] + \
                   [f"v_pk_fma_f32 {P(z+2*h)}, {P(z+2*h)}, s[{sC+2}:{sC+3}], v[10:11]" for h in range(2)] + \
                   [f"v_pk_mul_f32 {P(z+2*h)}, {P(z+2*h)}, {P(g+2*h)}" for h in range(2)]
        if ph == 1:
            return [f"v_exp_f32 v{z+i}, v{z+i}" for i in range(4)] + [f"v_pk_mul_f32 {P(u+2*h)}, {P(u+2*h)}, {P(g+2*h)}" for h in range(2)] + \
                   [f"v_pk_add_f32 {P(z+2*h)}, {P(z+2*h)}, 1.0 op_sel_hi:[1,0]" for h in range(2)]
        return [f"v_rcp_f32 v{z+i}, v{z+i}" for i in range(4)] + ["s_nop 0"] + [f"v_pk_mul_f32 {P(u+2*h)}, {P(u+2*h)}, {P(z+2*h)}" for h in range(2)] + \
               [f"v_cvt_pk_bf16_f32 v{dst+h}, v{u+2*h}, v{u+2*h+1}" for h in range(2)]
    out = []
    for n in range(len(items)):
        for ph in range(3): out += stage(n, ph)
    return out

def h_store_setup(k, var):
    t = sT
    k(f"""
    s_lshl_b32 s{t[0]}, s{sRb}, 1
    s_add_u32 s{t[0]}, s{t[0]}, s{sTg}
    s_mul_i32 s{t[0]}, s{t[0]}, {A2_BLK}
    s_add_u32 s{t[0]}, s{t[0]}, {WS_A2}
    s_add_u32 s{sO}, s{sWS}, s{t[0]}
    s_addc_u32 s{sO+1}, s{sWS+1}, 0
    s_mov_b32 s{sO+2}, {A2_BLK}
    s_lshl_b32 s{t[0]}, s{sCb}, 2
    s_add_u32 s{t[0]}, s{t[0]}, s{sCg}
    s_lshl_b32 s{t[0]}, s{t[0]}, 12
    s_cmp_eq_u32 s{sMode}, 2
    s_cselect_b32 s{t[1]}, 2048, 0
    s_add_u32 s{t[0]}, s{t[0]}, s{t[1]}
    s_add_u32 s{t[1]}, s{t[1]}, s{sSt2}
    v_lshlrev_b32 v13, 4, v0
    v_add_u32 v{HP+24}, s{t[0]}, v13
    v_xor_b32 v{HP+25}, 2048, v{HP+24}
    v_and_b32 v{HP+26}, 512, v13
    v_add3_u32 v{HP+26}, v{HP+26}, v13, s{t[1]}
    """)
def h_stores(var):
    out = []
    for pr in range(2 if var == 'F24' else 1):
        for h in range(2): out.append(f"v_permlane32_swap_b32 v{HP+16+4*pr+h}, v{HP+18+4*pr+h}")
    for tt in range(4):
        out.append(f"buffer_store_dwordx4 v[{HP+4*tt}:{HP+4*tt+3}], v{HP+24+(tt>>1)}, s[{sO}:{sO+3}], 0 offen offset:{(tt&1)*1024}{SC1}")
    for pr in range(2 if var == 'F24' else 1):
        out.append(f"buffer_store_dwordx4 v[{HP+16+4*pr}:{HP+19+4*pr}], v{HP+26}, s[{sO}:{sO+3}], 0 offen offset:{pr*2048}{SC1}")
    return out

def qk_epilogue(k):
    t = sT
    LK, LJ = k.uniq("isk"), k.uniq("qkj")
    k(f"""
    s_and_b32 s{t[3]}, s{sCb}, 1
    s_lshl_b32 s{t[3]}, s{t[3]}, 2
    s_add_u32 s{t[3]}, s{t[3]}, s{sCg}
    s_lshl_b32 s{t[3]}, s{t[3]}, 8
    s_lshl_b32 s{t[4]}, s{sRb}, 2
    s_add_u32 s{t[3]}, s{t[3]}, s{t[4]}
    s_lshl_b32 s{t[4]}, s{sTg}, 1
    s_add_u32 s{t[3]}, s{t[3]}, s{t[4]}
    v_and_b32 v13, 15, v0
    v_lshrrev_b32 v14, 4, v0
    s_cmp_ge_u32 s{sCb}, 12
    s_cbranch_scc1 {LK}
    s_mov_b32 s{t[0]}, {WS_Q}
    s_mov_b32 s{t[1]}, {Q_TILE}
    s_mov_b32 s{t[5]}, 16
    s_mov_b32 s{sC}, {f32hex(QSCALE)}
    s_mov_b32 s{sC+1}, {f32hex(QSCALE)}
    """)
    for r in range(0, 80, 2): k(f"v_pk_mul_f32 v[{ACC+r}:{ACC+r+1}], v[{ACC+r}:{ACC+r+1}], s[{sC}:{sC+1}]")
    k(f"""
    s_branch {LJ}
    {LK}:
    s_mov_b32 s{t[0]}, {WS_KV}
    s_mov_b32 s{t[1]}, {KV_TILE}
    s_mov_b32 s{t[5]}, 8
    v_and_b32 v15, 8, v13
    v_add_u32 v13, v13, v15
    {LJ}:
    s_mul_i32 s{t[3]}, s{t[3]}, s{t[1]}
    s_add_u32 s{t[0]}, s{t[0]}, s{t[3]}
    s_add_u32 s{sO}, s{sWS}, s{t[0]}
    s_addc_u32 s{sO+1}, s{sWS+1}, 0
    s_lshl_b32 s{t[2]}, s{t[1]}, 6
    s_lshl_b32 s{sO+2}, s{t[1]}, 8
    v_mul_u32_u24 v14, s{t[2]}, v14
    v_add_u32 v15, s{t[5]}, v13
    v_lshl_add_u32 v5, v13, 4, v14
    v_lshl_add_u32 v6, v15, 4, v14
    v_lshl_add_u32 v7, v13, 3, v14
    v_lshl_add_u32 v8, v15, 3, v14
    """)
    for tt in range(4):
        o = 16 + 12 * tt
        for c in range(5):
            a = acc_reg('QK', tt, c)
            for h in range(2): k(f"v_cvt_pk_bf16_f32 v{o+2*c+h}, v{a+2*h}, v{a+2*h+1}")
        so = "0" if tt < 2 else f"s{t[1]}"
        k(f"buffer_store_dwordx4 v[{o}:{o+3}], v{5+(tt&1)}, s[{sO}:{sO+3}], {so} offen{SC1}")
        k(f"buffer_store_dwordx4 v[{o+4}:{o+7}], v{5+(tt&1)}, s[{sO}:{sO+3}], {so} offen offset:512{SC1}")
        k(f"buffer_store_dwordx2 v[{o+8}:{o+9}], v{7+(tt&1)}, s[{sO}:{sO+3}], {so} offen offset:1024{SC1}")

def v_epilogue(k):
    t = sT
    k(f"""
    s_and_b32 s{t[3]}, s{sCb}, 1
    s_lshl_b32 s{t[3]}, s{t[3]}, 2
    s_add_u32 s{t[3]}, s{t[3]}, s{sCg}
    s_lshl_b32 s{t[3]}, s{t[3]}, 8
    s_lshl_b32 s{t[4]}, s{sRb}, 2
    s_add_u32 s{t[3]}, s{t[3]}, s{t[4]}
    s_lshl_b32 s{t[4]}, s{sTg}, 1
    s_add_u32 s{t[3]}, s{t[3]}, s{t[4]}
    s_mul_i32 s{t[3]}, s{t[3]}, {KV_TILE}
    s_add_u32 s{t[3]}, s{t[3]}, {WS_KV}
    s_add_u32 s{sO}, s{sWS}, s{t[3]}
    s_addc_u32 s{sO+1}, s{sWS+1}, 0
    s_mov_b32 s{sO+2}, {4*KV_HEAD}
    s_mov_b32 s{t[0]}, {KV_HEAD - 320}
    v_lshrrev_b32 v14, 4, v0
    v_mul_u32_u24 v14, 320, v14
    v_and_b32 v13, 15, v0
    """)
    for c in range(5):
        k(f"""
        v_add_u32 v15, {16*c}, v13
        v_mul_u32_u24 v{5+c}, 3277, v15
        v_lshrrev_b32 v{5+c}, 16, v{5+c}
        v_mul_u32_u24 v{5+c}, s{t[0]}, v{5+c}
        v_lshl_add_u32 v15, v15, 4, v14
        v_add_u32 v{5+c}, v{5+c}, v15
        """)
    n = 0
    for pr in range(2):
        for c in range(5):
            o = 16 + 4 * n; n += 1
            for b in range(2):
                a = acc_reg('V', 2 * pr + b, c)
                for h in range(2): k(f"v_cvt_pk_bf16_f32 v{o+2*b+h}, v{a+2*h}, v{a+2*h+1}")
            k(f"buffer_store_dwordx4 v[{o}:{o+3}], v{5+c}, s[{sO}:{sO+3}], 0 offen offset:{1280 + pr*KV_TILE}{SC1}")

def qk_tail():
    t = sT
    pre = f"""
    s_and_b32 s{t[3]}, s{sCb}, 1
    s_lshl_b32 s{t[3]}, s{t[3]}, 2
    s_add_u32 s{t[3]}, s{t[3]}, s{sCg}
    s_lshl_b32 s{t[3]}, s{t[3]}, 8
    s_lshl_b32 s{t[4]}, s{sRb}, 2
    s_add_u32 s{t[3]}, s{t[3]}, s{t[4]}
    s_lshl_b32 s{t[4]}, s{sTg}, 1
    s_add_u32 s{t[3]}, s{t[3]}, s{t[4]}
    v_and_b32 v13, 15, v0
    v_lshrrev_b32 v14, 4, v0
    s_mov_b32 s{t[0]}, {WS_Q}
    s_mov_b32 s{t[1]}, {Q_TILE}
    s_mov_b32 s{sC}, {f32hex(QSCALE)}
    s_cmp_ge_u32 s{sCb}, 12
    s_cselect_b32 s{t[0]}, {WS_KV}, s{t[0]}
    s_cselect_b32 s{t[1]}, {KV_TILE}, s{t[1]}
    s_cselect_b32 s{t[5]}, 8, 16
    s_cselect_b32 s{t[6]}, 8, 0
    s_cselect_b32 s{sC}, 1.0, s{sC}
    s_mov_b32 s{sC+1}, s{sC}
    v_and_b32 v15, s{t[6]}, v13
    v_add_u32 v13, v13, v15
    s_mul_i32 s{t[3]}, s{t[3]}, s{t[1]}
    s_add_u32 s{t[0]}, s{t[0]}, s{t[3]}
    s_add_u32 s{sO}, s{sWS}, s{t[0]}
    s_addc_u32 s{sO+1}, s{sWS+1}, 0
    s_lshl_b32 s{t[2]}, s{t[1]}, 6
    s_lshl_b32 s{sO+2}, s{t[1]}, 8
    v_mul_u32_u24 v14, s{t[2]}, v14
    v_add_u32 v15, s{t[5]}, v13
    v_lshl_add_u32 v5, v13, 4, v14
    v_lshl_add_u32 v6, v15, 4, v14
    v_lshl_add_u32 v7, v13, 3, v14
    v_lshl_add_u32 v8, v15, 3, v14
    """
    out = []
    for tt in range(4):
        o = 16 + 12 * tt
        e = []
        for c in range(5):
            a = acc_reg('QK', tt, c)
            e += [f"v_pk_mul_f32 v[{a+2*h}:{a+2*h+1}], v[{a+2*h}:{a+2*h+1}], s[{sC}:{sC+1}]" for h in range(2)]
            e += [f"v_cvt_pk_bf16_f32 v{o+2*c+h}, v{a+2*h}, v{a+2*h+1}" for h in range(2)]
            so = "0" if tt < 2 else f"s{t[1]}"
            if c == 1: e.append(f"buffer_store_dwordx4 v[{o}:{o+3}], v{5+(tt&1)}, s[{sO}:{sO+3}], {so} offen{SC1}")
            if c == 3: e.append(f"buffer_store_dwordx4 v[{o+4}:{o+7}], v{5+(tt&1)}, s[{sO}:{sO+3}], {so} offen offset:512{SC1}")
            if c == 4: e.append(f"buffer_store_dwordx2 v[{o+8}:{o+9}], v{7+(tt&1)}, s[{sO}:{sO+3}], {so} offen offset:1024{SC1}")
        out.append(e)
    return out + [[x.strip() for x in pre.strip().split("\n")]]

def v_tail():
    t = sT
    pre = f"""
    s_and_b32 s{t[3]}, s{sCb}, 1
    s_lshl_b32 s{t[3]}, s{t[3]}, 2
    s_add_u32 s{t[3]}, s{t[3]}, s{sCg}
    s_lshl_b32 s{t[3]}, s{t[3]}, 8
    s_lshl_b32 s{t[4]}, s{sRb}, 2
    s_add_u32 s{t[3]}, s{t[3]}, s{t[4]}
    s_lshl_b32 s{t[4]}, s{sTg}, 1
    s_add_u32 s{t[3]}, s{t[3]}, s{t[4]}
    s_mul_i32 s{t[3]}, s{t[3]}, {KV_TILE}
    s_add_u32 s{t[3]}, s{t[3]}, {WS_KV}
    s_add_u32 s{sO}, s{sWS}, s{t[3]}
    s_addc_u32 s{sO+1}, s{sWS+1}, 0
    s_mov_b32 s{sO+2}, {4*KV_HEAD}
    s_mov_b32 s{t[0]}, {KV_HEAD - 320}
    v_lshrrev_b32 v14, 4, v0
    v_mul_u32_u24 v14, 320, v14
    v_and_b32 v13, 15, v0
    """
    for c in range(5):
        pre += f"""v_add_u32 v15, {16*c}, v13
        v_mul_u32_u24 v{5+c}, 3277, v15
        v_lshrrev_b32 v{5+c}, 16, v{5+c}
        v_mul_u32_u24 v{5+c}, s{t[0]}, v{5+c}
        v_lshl_add_u32 v15, v15, 4, v14
        v_add_u32 v{5+c}, v{5+c}, v15
        """
    out = []
    for tt in range(4):
        pr, b = divmod(tt, 2)
        e = []
        for c in range(5):
            o = 16 + 4 * (5 * pr + c)
            a = acc_reg('V', tt, c)
            e += [f"v_cvt_pk_bf16_f32 v{o+2*b+h}, v{a+2*h}, v{a+2*h+1}" for h in range(2)]
            if b: e.append(f"buffer_store_dwordx4 v[{o}:{o+3}], v{5+c}, s[{sO}:{sO+3}], 0 offen offset:{1280 + pr*KV_TILE}{SC1}")
        out.append(e)
    return out + [[x.strip() for x in pre.strip().split("\n")]]

def side_jobs(k):
    t = sT
    LN, LG = k.uniq("nojob"), k.uniq("nogate")
    sJ, sA, sB1, sB2_, sCj = t[0], t[1], t[2], t[3], t[4]
    sSt, sCq = sFb0, sMode
    L = [k.uniq(f"ty{i}") for i in range(5)]
    k(f"""
    s_sub_u32 s{sJ}, s{sCb}, 10
    s_lshl_b32 s{sJ}, s{sJ}, 4
    s_add_u32 s{sJ}, s{sJ}, s{sRb}
    s_lshl_b32 s{sJ}, s{sJ}, 3
    s_add_u32 s{sJ}, s{sJ}, s{sW}
    s_cmp_ge_u32 s{sJ}, 740
    s_cbranch_scc1 {LN}
    s_mul_i32 s{sSt}, s{sJ}, 6554
    s_lshr_b32 s{sSt}, s{sSt}, 16
    s_mul_i32 s{sCq}, s{sSt}, 10
    s_sub_u32 s{sCq}, s{sJ}, s{sCq}
    s_mov_b32 s{sB1}, 4
    s_mov_b32 s{sCj}, 8
    s_cmp_ge_u32 s{sSt}, 70
    s_cbranch_scc1 {L[4]}
    s_cmp_ge_u32 s{sSt}, 54
    s_cbranch_scc1 {L[3]}
    s_cmp_ge_u32 s{sSt}, 50
    s_cbranch_scc1 {L[2]}
    s_cmp_ge_u32 s{sSt}, 40
    s_cbranch_scc1 {L[1]}
    s_lshr_b32 s{t[5]}, s{sSt}, 2
    s_and_b32 s{t[6]}, s{sSt}, 3
    s_mul_i32 s{sA}, s{t[5]}, 11
    s_cmp_eq_u32 s{t[5]}, 9
    s_cselect_b32 s{sA}, 98, s{sA}
    s_lshl_b32 s{t[7]}, s{t[6]}, 1
    s_add_u32 s{sA}, s{sA}, s{t[7]}
    s_min_u32 s{t[6]}, s{t[6]}, 2
    s_cmp_lt_u32 s{t[5]}, 8
    s_cselect_b32 s{t[6]}, s{t[6]}, 0
    s_add_u32 s{sA}, s{sA}, s{t[6]}
    s_lshl_b32 s{sA}, s{sA}, 4
    s_mov_b32 s{sB2_}, 8
    s_mov_b32 s{sCj}, 16
    s_branch {L[0]}
    {L[1]}:
    s_sub_u32 s{t[5]}, s{sSt}, 40
    s_mul_i32 s{sA}, s{t[5]}, 11
    s_cmp_eq_u32 s{t[5]}, 9
    s_cselect_b32 s{sA}, 98, s{sA}
    s_cmp_lt_u32 s{t[5]}, 8
    s_cselect_b32 s{t[6]}, 2, 8
    s_cselect_b32 s{sB2_}, 48, 16
    s_add_u32 s{sA}, s{sA}, s{t[6]}
    s_lshl_b32 s{sA}, s{sA}, 4
    s_branch {L[0]}
    {L[2]}:
    s_sub_u32 s{t[5]}, s{sSt}, 50
    s_mul_i32 s{sA}, s{t[5]}, {22*16}
    s_add_u32 s{sA}, s{sA}, 160
    s_mov_b32 s{sB2_}, {11*16}
    s_branch {L[0]}
    {L[3]}:
    s_sub_u32 s{t[5]}, s{sSt}, 54
    s_mul_i32 s{sA}, s{t[5]}, 40
    s_mov_b32 s{sB2_}, 20
    s_branch {L[0]}
    {L[4]}:
    s_sub_u32 s{t[5]}, s{sSt}, 70
    s_mul_i32 s{sA}, s{t[5]}, 160
    s_add_u32 s{sA}, s{sA}, 16
    s_mov_b32 s{sB1}, 40
    s_mov_b32 s{sB2_}, 80
    s_mov_b32 s{sCj}, 20
    {L[0]}:
    s_mov_b32 s{t[5]}, {1728*1280}
    s_cmp_ge_u32 s{sSt}, 54
    s_cselect_b32 s{sWt}, s{sPtr+4}, s{sPtr+12}
    s_cselect_b32 s{sWt+1}, s{sPtr+5}, s{sPtr+13}
    s_cselect_b32 s{sWt+2}, {640*1280}, s{t[5]}
    v_lshrrev_b32 v5, 5, v0
    v_mul_u32_u24 v5, s{sCj}, v5
    v_lshrrev_b32 v6, 3, v0
    v_and_b32 v6, 3, v6
    v_add_u32 v5, v5, v6
    v_mul_u32_u24 v5, 1280, v5
    v_and_b32 v6, 7, v0
    v_lshl_add_u32 v5, v6, 4, v5
    s_lshl_b32 s{t[5]}, s{sCq}, 7
    v_add_u32 v5, s{t[5]}, v5
    s_mul_i32 s{sA}, s{sA}, 1280
    s_mul_i32 s{sB1}, s{sB1}, 1280
    s_mul_i32 s{sB2_}, s{sB2_}, 1280
    s_lshl_b32 s{t[5]}, s{sW}, 12
    s_mov_b32 m0, s{t[5]}
    s_add_u32 s{t[6]}, s{sA}, s{sB1}
    buffer_load_dwordx4 v5, s[{sWt}:{sWt+3}], s{sA} offen lds
    s_add_u32 m0, m0, 1024
    s_add_u32 s{sA}, s{sA}, s{sB2_}
    buffer_load_dwordx4 v5, s[{sWt}:{sWt+3}], s{t[6]} offen lds
    s_add_u32 m0, m0, 1024
    s_add_u32 s{t[6]}, s{t[6]}, s{sB2_}
    buffer_load_dwordx4 v5, s[{sWt}:{sWt+3}], s{sA} offen lds
    s_add_u32 m0, m0, 1024
    s_mov_b32 s{sO+2}, {8*B2_BLK}
    buffer_load_dwordx4 v5, s[{sWt}:{sWt+3}], s{t[6]} offen lds
    s_add_u32 s{sO}, s{sWS}, {WS_B2}
    s_addc_u32 s{sO+1}, s{sWS+1}, 0
    v_lshrrev_b32 v6, 4, v0
    v_lshlrev_b32 v6, 10, v6
    v_lshrrev_b32 v7, 2, v0
    v_and_b32 v7, 3, v7
    v_lshl_add_u32 v6, v7, 7, v6
    v_and_b32 v7, 3, v0
    v_lshl_add_u32 v6, v7, 3, v6
    v_add_u32 v6, s{t[5]}, v6
    v_lshlrev_b32 v7, 4, v0
    s_lshl_b32 s{sCq}, s{sCq}, 2
    s_mul_i32 s{sSt}, s{sSt}, 5120
    s_waitcnt vmcnt(0)
    """)
    for i in range(4):
        for j in range(2): k(f"ds_read_b64_tr_b16 v[{16+4*i+2*j}:{17+4*i+2*j}], v6 offset:{32*i + 512*j}")
    for i in range(4):
        k(f"""
        s_mul_i32 s{t[5]}, s{sCq}, 13108
        s_lshr_b32 s{t[5]}, s{t[5]}, 16
        s_mul_i32 s{t[5]}, s{t[5]}, {B2_BLK - 5120}
        s_lshl_b32 s{t[6]}, s{sCq}, 10
        s_add_u32 s{t[5]}, s{t[5]}, s{t[6]}
        s_add_u32 s{t[5]}, s{t[5]}, s{sSt}
        s_add_u32 s{sCq}, s{sCq}, 1
        s_waitcnt lgkmcnt({6-2*i})
        buffer_store_dwordx4 v[{16+4*i}:{19+4*i}], v7, s[{sO}:{sO+3}], s{t[5]} offen{SC1}
        """)
    k.label(LN)
    k(f"""
    s_cmp_lt_u32 s{sCb}, 12
    s_cbranch_scc1 {LG}
    s_sub_u32 s{t[0]}, s{sCb}, 12
    s_lshl_b32 s{t[0]}, s{t[0]}, 3
    s_add_u32 s{t[0]}, s{t[0]}, s{sW}
    s_lshl_b32 s{t[0]}, s{t[0]}, 2
    v_lshrrev_b32 v5, 4, v0
    v_add_u32 v5, s{t[0]}, v5
    v_and_b32 v6, 15, v0
    v_lshlrev_b32 v6, 4, v6
    v_mul_u32_u24 v8, 1280, v5
    v_add_u32 v8, v8, v6
    s_mov_b32 s{sWt}, s{sPtr+14}
    s_mov_b32 s{sWt+1}, s{sPtr+15}
    s_mov_b32 s{sWt+2}, 1280
    """)
    for i in range(5):
        k(f"buffer_load_dwordx4 v[{32+4*i}:{35+4*i}], v8, s[{sX}:{sX+3}], 0 offen offset:{256*i}")
        k(f"buffer_load_dwordx4 v[{52+4*i}:{55+4*i}], v6, s[{sWt}:{sWt+3}], 0 offen offset:{256*i}")
    k(f"""
    s_lshl_b32 s{t[1]}, s{sRb}, 9
    s_add_u32 s{t[1]}, s{t[1]}, {WS_G}
    s_add_u32 s{sO}, s{sWS}, s{t[1]}
    s_addc_u32 s{sO+1}, s{sWS+1}, 0
    s_mov_b32 s{sO+2}, 512
    v_lshlrev_b32 v5, 2, v5
    v_lshlrev_b32 v6, 16, v6
    v_add_u32 v5, v5, v6
    v_mov_b32 v9, 0
    v_mov_b32 v10, 0
    s_waitcnt vmcnt(0)
    """)
    for r in range(20): k(f"v_dot2_f32_bf16 v{9+(r&1)}, v{32+r}, v{52+r}, v{9+(r&1)}")
    k("s_nop 3\nv_add_f32 v9, v9, v10")
    for sh in (8, 4, 2, 1): k(f"s_nop 1\nv_add_f32_dpp v9, v9, v9 row_ror:{sh} row_mask:0xf bank_mask:0xf")
    k(f"""
    v_mul_f32 v9, {f32hex(-1.4426950408889634)}, v9
    v_exp_f32 v9, v9
    s_nop 0
    v_add_f32 v9, 1.0, v9
    v_rcp_f32 v9, v9
    s_nop 0
    buffer_store_dword v9, v5, s[{sO}:{sO+3}], 0 offen{SC1}
    """)
    k.label(LG)

SG = 176
vSd, vSx, vSw, vSg = 216, 217, 218, 219
sJa, sJb, sJc = 56, 57, 58
def side_params(k):
    t = sT
    sJ, sA, sB1, sB2_, sCj = t[0], t[1], t[2], t[3], t[4]
    sSt, sCq = sFb0, sMode
    L = [k.uniq(f"ty{i}") for i in range(5)]
    k(f"""
    s_sub_u32 s{sJ}, s{sCb}, 10
    s_lshl_b32 s{sJ}, s{sJ}, 4
    s_add_u32 s{sJ}, s{sJ}, s{sRb}
    s_lshl_b32 s{sJ}, s{sJ}, 3
    s_add_u32 s{sJ}, s{sJ}, s{sW}
    s_min_u32 s{sJ}, s{sJ}, 740
    s_mul_i32 s{sSt}, s{sJ}, 6554
    s_lshr_b32 s{sSt}, s{sSt}, 16
    s_mul_i32 s{sCq}, s{sSt}, 10
    s_sub_u32 s{sCq}, s{sJ}, s{sCq}
    s_mov_b32 s{sB1}, 4
    s_mov_b32 s{sCj}, 8
    s_cmp_ge_u32 s{sSt}, 70
    s_cbranch_scc1 {L[4]}
    s_cmp_ge_u32 s{sSt}, 54
    s_cbranch_scc1 {L[3]}
    s_cmp_ge_u32 s{sSt}, 50
    s_cbranch_scc1 {L[2]}
    s_cmp_ge_u32 s{sSt}, 40
    s_cbranch_scc1 {L[1]}
    s_lshr_b32 s{t[5]}, s{sSt}, 2
    s_and_b32 s{t[6]}, s{sSt}, 3
    s_mul_i32 s{sA}, s{t[5]}, 11
    s_cmp_eq_u32 s{t[5]}, 9
    s_cselect_b32 s{sA}, 98, s{sA}
    s_lshl_b32 s{t[7]}, s{t[6]}, 1
    s_add_u32 s{sA}, s{sA}, s{t[7]}
    s_min_u32 s{t[6]}, s{t[6]}, 2
    s_cmp_lt_u32 s{t[5]}, 8
    s_cselect_b32 s{t[6]}, s{t[6]}, 0
    s_add_u32 s{sA}, s{sA}, s{t[6]}
    s_lshl_b32 s{sA}, s{sA}, 4
    s_mov_b32 s{sB2_}, 8
    s_mov_b32 s{sCj}, 16
    s_branch {L[0]}
    {L[1]}:
    s_sub_u32 s{t[5]}, s{sSt}, 40
    s_mul_i32 s{sA}, s{t[5]}, 11
    s_cmp_eq_u32 s{t[5]}, 9
    s_cselect_b32 s{sA}, 98, s{sA}
    s_cmp_lt_u32 s{t[5]}, 8
    s_cselect_b32 s{t[6]}, 2, 8
    s_cselect_b32 s{sB2_}, 48, 16
    s_add_u32 s{sA}, s{sA}, s{t[6]}
    s_lshl_b32 s{sA}, s{sA}, 4
    s_branch {L[0]}
    {L[2]}:
    s_sub_u32 s{t[5]}, s{sSt}, 50
    s_mul_i32 s{sA}, s{t[5]}, {22*16}
    s_add_u32 s{sA}, s{sA}, 160
    s_mov_b32 s{sB2_}, {11*16}
    s_branch {L[0]}
    {L[3]}:
    s_sub_u32 s{t[5]}, s{sSt}, 54
    s_mul_i32 s{sA}, s{t[5]}, 40
    s_mov_b32 s{sB2_}, 20
    s_branch {L[0]}
    {L[4]}:
    s_sub_u32 s{t[5]}, s{sSt}, 70
    s_mul_i32 s{sA}, s{t[5]}, 160
    s_add_u32 s{sA}, s{sA}, 16
    s_mov_b32 s{sB1}, 40
    s_mov_b32 s{sB2_}, 80
    s_mov_b32 s{sCj}, 20
    {L[0]}:
    v_lshrrev_b32 v13, 5, v0
    v_mul_u32_u24 v13, s{sCj}, v13
    v_lshrrev_b32 v14, 3, v0
    v_and_b32 v14, 3, v14
    v_add_u32 v13, v13, v14
    v_mul_u32_u24 v13, 1280, v13
    v_and_b32 v14, 7, v0
    v_lshl_add_u32 v13, v14, 4, v13
    s_lshl_b32 s{t[5]}, s{sCq}, 7
    v_add_u32 v{vSd}, s{t[5]}, v13
    s_mul_i32 s{sJa}, s{sA}, 1280
    s_mul_i32 s{sJb}, s{sB1}, 1280
    s_mul_i32 s{sJc}, s{sB2_}, 1280
    s_cmp_ge_u32 s{sSt}, {NSTEP}
    s_cselect_b32 s{sJa}, 0x7f000000, s{sJa}
    s_sub_u32 s{t[0]}, s{sCb}, 12
    s_lshl_b32 s{t[0]}, s{t[0]}, 3
    s_add_u32 s{t[0]}, s{t[0]}, s{sW}
    s_lshl_b32 s{t[0]}, s{t[0]}, 2
    s_cmp_lt_u32 s{sCb}, 12
    s_cselect_b32 s{t[0]}, 4096, s{t[0]}
    v_lshrrev_b32 v13, 4, v0
    v_add_u32 v13, s{t[0]}, v13
    v_and_b32 v14, 15, v0
    v_lshlrev_b32 v{vSw}, 4, v14
    v_mul_u32_u24 v{vSx}, 1280, v13
    v_add_u32 v{vSx}, v{vSx}, v{vSw}
    v_lshlrev_b32 v13, 2, v13
    v_lshl_add_u32 v{vSg}, v{vSw}, 16, v13
    """)
def side_loads():
    t = sT
    sSt = sFb0
    g = [[f"s_mov_b32 s{t[5]}, {1728*1280}", f"s_cmp_ge_u32 s{sSt}, 54",
          f"s_cselect_b32 s{sWt}, s{sPtr+4}, s{sPtr+12}", f"s_cselect_b32 s{sWt+1}, s{sPtr+5}, s{sPtr+13}", f"s_cselect_b32 s{sWt+2}, {640*1280}, s{t[5]}",
          f"s_lshl_b32 s{t[5]}, s{sW}, 12", f"s_add_u32 m0, s{t[5]}, {W_BASE}", f"s_add_u32 s{t[6]}, s{sJa}, s{sJb}",
          f"buffer_load_dwordx4 v{vSd}, s[{sWt}:{sWt+3}], s{sJa} offen lds"],
         ["s_add_u32 m0, m0, 1024", f"s_add_u32 s{sJa}, s{sJa}, s{sJc}", f"buffer_load_dwordx4 v{vSd}, s[{sWt}:{sWt+3}], s{t[6]} offen lds"],
         ["s_add_u32 m0, m0, 1024", f"s_add_u32 s{t[6]}, s{t[6]}, s{sJc}", f"buffer_load_dwordx4 v{vSd}, s[{sWt}:{sWt+3}], s{sJa} offen lds"],
         ["s_add_u32 m0, m0, 1024", None, f"buffer_load_dwordx4 v{vSd}, s[{sWt}:{sWt+3}], s{t[6]} offen lds"]]
    h = []
    for i in range(5):
        h.append([f"buffer_load_dwordx4 v[{SG+4*i}:{SG+3+4*i}], v{vSx}, s[{sX}:{sX+3}], 0 offen offset:{256*i}"])
        h.append([f"global_load_dwordx4 v[{SG+20+4*i}:{SG+23+4*i}], v{vSw}, s[{sPtr+14}:{sPtr+15}] offset:{256*i}"])
    return g, h
def side_compute(k):
    t = sT
    k(f"""
    s_lshl_b32 s{t[5]}, s{sW}, 12
    s_add_u32 s{t[5]}, s{t[5]}, {W_BASE}
    v_lshrrev_b32 v6, 4, v0
    v_lshlrev_b32 v6, 10, v6
    v_lshrrev_b32 v7, 2, v0
    v_and_b32 v7, 3, v7
    v_lshl_add_u32 v6, v7, 7, v6
    v_and_b32 v7, 3, v0
    v_lshl_add_u32 v6, v7, 3, v6
    v_add_u32 v6, s{t[5]}, v6
    v_lshlrev_b32 v7, 4, v0
    v_mov_b32 v9, 0
    v_mov_b32 v10, 0
    """)
    for i in range(4):
        for j in range(2): k(f"ds_read_b64_tr_b16 v[{16+4*i+2*j}:{17+4*i+2*j}], v6 offset:{32*i + 512*j}")
    for r in range(20): k(f"v_dot2_f32_bf16 v{9+(r&1)}, v{SG+r}, v{SG+20+r}, v{9+(r&1)}")
    k("s_nop 3\nv_add_f32 v9, v9, v10")
    for sh in (8, 4, 2, 1): k(f"s_nop 1\nv_add_f32_dpp v9, v9, v9 row_ror:{sh} row_mask:0xf bank_mask:0xf")
    k(f"""
    v_mul_f32 v9, {f32hex(-1.4426950408889634)}, v9
    v_exp_f32 v9, v9
    s_nop 0
    v_add_f32 v9, 1.0, v9
    v_rcp_f32 v9, v9
    s_waitcnt lgkmcnt(0)
    """)
def side_stores(k):
    t = sT
    sSt, sCq = sFb0, sMode
    LN = k.uniq("nojob")
    k(f"""
    s_lshl_b32 s{t[1]}, s{sRb}, 9
    s_add_u32 s{t[1]}, s{t[1]}, {WS_G}
    s_add_u32 s{sO}, s{sWS}, s{t[1]}
    s_addc_u32 s{sO+1}, s{sWS+1}, 0
    s_mov_b32 s{sO+2}, 512
    s_cmp_ge_u32 s{sSt}, {NSTEP}
    buffer_store_dword v9, v{vSg}, s[{sO}:{sO+3}], 0 offen{SC1}
    s_cbranch_scc1 {LN}
    s_mov_b32 s{sO+2}, {8*B2_BLK}
    s_add_u32 s{sO}, s{sWS}, {WS_B2}
    s_addc_u32 s{sO+1}, s{sWS+1}, 0
    s_lshl_b32 s{sCq}, s{sCq}, 2
    s_mul_i32 s{sSt}, s{sSt}, 5120
    """)
    for i in range(4):
        k(f"""
        s_mul_i32 s{t[5]}, s{sCq}, 13108
        s_lshr_b32 s{t[5]}, s{t[5]}, 16
        s_mul_i32 s{t[5]}, s{t[5]}, {B2_BLK - 5120}
        s_lshl_b32 s{t[6]}, s{sCq}, 10
        s_add_u32 s{t[5]}, s{t[5]}, s{t[6]}
        s_add_u32 s{t[5]}, s{t[5]}, s{sSt}
        s_add_u32 s{sCq}, s{sCq}, 1
        buffer_store_dwordx4 v[{16+4*i}:{19+4*i}], v7, s[{sO}:{sO+3}], s{t[5]} offen{SC1}
        """)
    k.label(LN)

def gen_k1(name="p1_kernel", NW=5, prof=False, compute=True, area=0):
    k = Kern(name, block=512, grid=256, lds=163840, vgpr=256)
    END = name + "_end"
    k(f"s_cmp_ge_u32 s2, 256\ns_cbranch_scc1 {END}")
    p1_setup(k, prof)
    LQ, LV, L20, LD = name + "_qkv", name + "_v", name + "_f20", name + "_done"
    k(f"s_cmp_ge_u32 s{sCb}, 10\ns_cbranch_scc1 {LQ}")
    ffn_wave_params(k)
    k(f"s_cmp_lg_u32 s{sMode}, 0\ns_cbranch_scc1 {L20}")
    for var in ('F24', 'F20'):
        if var == 'F20': k.label(L20)
        p1_loop(k, var, NW, prof, compute)
        h_store_setup(k, var)
        for x in gelu_math(k, var): k(x)
        k(stamp(prof, 13 if prof == 'rt' else 3))
        k("s_nop 1")
        for x in h_stores(var): k(x)
        k(f"s_branch {LD}")
    k.label(LQ)
    k(f"s_cmp_ge_u32 s{sCb}, 14\ns_cbranch_scc1 {LV}")
    LS = name + "_side"
    p1_loop(k, 'QK', NW, prof, compute)
    k("s_nop 7")
    qk_epilogue(k)
    k(f"s_branch {LS}")
    k.label(LV)
    p1_loop(k, 'V', NW, prof, compute)
    k("s_nop 7")
    v_epilogue(k)
    k.label(LS)
    k(stamp(prof, 13 if prof == 'rt' else 3))
    side_jobs(k)
    k.label(LD)
    if prof: prof_out(k, 14 if prof == 'rt' else 4, sWS, sW, mode=prof, area=area)
    k.label(END)
    k("s_endpgm")
    return k

if __name__ == "__main__":
    k = gen_k1()
    for wg in range(0, 256, 9):
        for w in (0, 3, 5, 7):
            for e in check(k, init=dict(wg=wg, wave=w), verbose=(wg < 30 and w == 5)): print(e)
```

```python
from asmlib import *
from layout import *
from p1 import f32hex, sWS, sDBG, sW, SC1

vKa, vKt, vVa = 2, 3, 4
S0, S1, OA, OB, P = 16, 32, 48, 64, 80
QA, QB = 88, 94
Kb = [100, 106]
Vs0 = 112
Vs1 = [116, 120]
vG = 124
sKV, sQ, sA2 = 8, 12, 16
sHead, sQb, sQg, sKh, sT0, sT1, sCnt = 21, 22, 23, 24, 25, 26, 27
sMask = 28
sTile = 30
vD = 14

def p2_ids(k):
    k(f"""
    s_and_b32 s{sT0}, s2, 7
    s_lshr_b32 s{sT1}, s2, 3
    s_lshl_b32 s{sHead}, s{sT0}, 2
    s_and_b32 s{sT0}, s{sT1}, 3
    s_add_u32 s{sHead}, s{sHead}, s{sT0}
    s_lshr_b32 s{sQb}, s{sT1}, 2
    s_and_b32 s{sQg}, s{sW}, 3
    s_lshr_b32 s{sKh}, s{sW}, 2
    s_lshl_b32 s{sTile}, s{sQb}, 2
    s_add_u32 s{sTile}, s{sTile}, s{sQg}
    """)
def p2_setup(k):
    p2_ids(k)
    k(f"""
    v_lshlrev_b32 v{vD}, 4, v0
    v_and_b32 v5, 31, v0
    v_lshlrev_b32 v{vKt}, 3, v5
    v_lshrrev_b32 v6, 5, v0
    v_mul_u32_u24 v{vVa}, 320, v6
    v_lshl_add_u32 v{vVa}, v5, 4, v{vVa}
    v_lshlrev_b32 v7, 20, v6
    v_add_u32 v7, v7, v{vKt}
    s_mul_i32 s{sT0}, s{sHead}, {KV_HEAD}
    s_lshl_b32 s{sT1}, s{sHead}, 5
    s_add_u32 s{sT1}, s{sT1}, s{sTile}
    s_mul_i32 s{sT1}, s{sT1}, {2*Q_TILE}
    s_add_u32 s{sT1}, s{sT1}, {WS_Q}
    s_mov_b32 s{sKV+2}, {KV_HEAD}
    s_mov_b32 s{sKV+3}, 0x00020000
    s_mov_b32 s{sQ+2}, {2*Q_TILE}
    s_mov_b32 s{sQ+3}, 0x00020000
    s_add_u32 s{sKV}, s{sWS}, s{sT0}
    s_addc_u32 s{sKV+1}, s{sWS+1}, 0
    s_add_u32 s{sQ}, s{sWS}, s{sT1}
    s_addc_u32 s{sQ+1}, s{sWS+1}, 0
    s_mul_i32 s{sT0}, s{sKh}, 81920
    s_lshl_b32 s{sT1}, s{sQg}, 10
    s_add_u32 s{sCnt}, s{sT0}, s{sT1}
    v_add_u32 v{vKa}, s{sT0}, v{vD}
    v_add_u32 v{vKt}, s{sT0}, v{vKt}
    v_add_u32 v{vVa}, s{sT0}, v{vVa}
    """)

def kv_dma(i):
    return [f"s_add_u32 m0, s{sCnt}, {4096*i}", None, f"buffer_load_dwordx4 v{vD}, s[{sKV}:{sKV+3}], m0 offen{SC1} lds"]

def p2_first_loads(k, n0):
    k(f"""
    buffer_load_dwordx4 v[{QA}:{QA+3}], v{vD}, s[{sQ}:{sQ+3}], 0 offen{SC1}
    buffer_load_dwordx2 v[{QA+4}:{QA+5}], v7, s[{sQ}:{sQ+3}], 0 offen offset:1024{SC1}
    """)
    for i in range(n0):
        for x in kv_dma(i): k(x or "s_nop 0")
        if i == 0:
            k(f"""
            buffer_load_dwordx4 v[{QB}:{QB+3}], v{vD}, s[{sQ}:{sQ+3}], 0 offen offset:1280{SC1}
            buffer_load_dwordx2 v[{QB+4}:{QB+5}], v7, s[{sQ}:{sQ+3}], 0 offen offset:2304{SC1}
            """)

def p2_init_regs(k):
    k(f"""
    s_mov_b32 s{sMask}, 0x000fffff
    s_mov_b32 s{sMask+1}, 0x000fffff
    v_and_b32 v10, 27, v0
    v_cmp_eq_u32 vcc, 24, v10
    v_mov_b32 v10, 0x3f803f80
    """)
    for r in range(32): k(f"v_mov_b32 v{OA+r}, 0")
    for r in range(8): k(f"v_mov_b32 v{P+r}, 0")
    for r in range(12): k(f"v_cndmask_b32 v{Vs0+r}, 0, v10, vcc")

def qk(Sd, Kr, Q):
    return [f"v_mfma_f32_32x32x16_bf16 v[{Sd}:{Sd+15}], v[{Kr}:{Kr+3}], v[{Q}:{Q+3}], 0",
            f"v_mfma_f32_32x32x8_bf16 v[{Sd}:{Sd+15}], v[{Kr+4}:{Kr+5}], v[{Q+4}:{Q+5}], v[{Sd}:{Sd+15}]"]
def pv(O, V, Pr):
    return f"v_mfma_f32_32x32x16_bf16 v[{O}:{O+15}], v[{V}:{V+3}], v[{Pr}:{Pr+3}], v[{O}:{O+15}]"

def need(upto_tile):
    by = min((upto_tile + 1) * KV_TILE + 1280, 81920)
    return (by + 4095) // 4096 - 1
def first_wait(n0, later, bars):
    return f"s_waitcnt vmcnt({n0 - 1 - need(bars[0]) + later})"

def p2_loop(k, n0=4, bars=(3, 9), rate=2, prio=None, extra=None, prof=False, pattern=0, xbars=(), afterbar=None, stamps=(2, 3)):
    afterbar = afterbar or {}
    extra = extra or {}
    base = [0]
    def rdK(buf, t):
        t -= base[0]
        return [f"ds_read_b128 v[{Kb[buf]}:{Kb[buf]+3}], v{vKa} offset:{t*KV_TILE}",
                f"ds_read_b64 v[{Kb[buf]+4}:{Kb[buf]+5}], v{vKt} offset:{t*KV_TILE+1024}"]
    def rdV(buf, t):
        t -= base[0]
        return [f"s_mov_b64 exec, s[{sMask}:{sMask+1}]",
                f"ds_read_b128 v[{Vs0}:{Vs0+3}], v{vVa} offset:{t*KV_TILE+1280}",
                f"ds_read_b128 v[{Vs1[buf]}:{Vs1[buf]+3}], v{vVa} offset:{t*KV_TILE+1280+640}",
                "s_mov_b64 exec, -1"]
    vq = VQ(range(need(bars[0]) + 1, n0))
    nxt = [n0]
    def wait_for(piece):
        assert piece < nxt[0], piece
        return vq.wait(piece)
    bars = list(bars)
    k("s_barrier")
    k(stamp(prof, stamps[0]))
    for x in rdK(0, 0) + rdK(1, 1) + rdV(0, 0): k(x)
    k("s_waitcnt lgkmcnt(4)")
    for x in qk(S0, Kb[0], QA): k(x)
    k("s_nop 11")
    def slot(Sx, M, pre4=[], post4=[], pre=[], mid=[[], [], []]):
        e = lambda r: f"v_exp_f32 v{Sx+r}, v{Sx+r}"
        c = lambda r: f"v_cvt_pk_bf16_f32 v{P+r//2}, v{Sx+r}, v{Sx+r+1}"
        if pattern == 0:
            seq = pre + [M[0], e(0), e(1), e(2), c(0), e(3)] + mid[0] + [
                   M[1], e(4), c(2), e(5), e(6), c(4), e(7)] + mid[1] + [
                   M[2], e(8), c(6), e(9), e(10), c(8), e(11)] + mid[2] + pre4 + [M[3]] + post4 + [
                   e(12), c(10), e(13), e(14), e(15), c(12), c(14)]
        else:
            seq = pre + [M[0], e(0), e(1), e(2), e(3), c(0)] + mid[0] + [
                   M[1], e(4), e(5), c(2), e(6), e(7), c(4)] + mid[1] + [
                   M[2], e(8), e(9), c(6), e(10), e(11), c(8)] + mid[2] + pre4 + [M[3]] + post4 + [
                   e(12), e(13), c(10), e(14), e(15), c(12), c(14)]
        for x in seq: k(x)
    pad = ["s_nop 0"] if pattern else []
    k(".p2align 3")
    for u in range(32):
        p = u & 1
        mids = [[[], [], []], [[], [], []]]
        groups = []
        for _ in range(rate):
            if nxt[0] < 20:
                groups.append((nxt[0], kv_dma(nxt[0]))); nxt[0] += 1
        groups += extra.get(u, [])
        places = [(0, 0), (0, 1), (0, 2), (1, 0), (1, 1), (1, 2)]
        order = []
        for j, (pid, g) in enumerate(groups):
            sl, m = places[j * 6 // len(groups)]
            order.append((sl, m, j, pid, g))
        order.sort(key=lambda x: x[:3])
        pre = [f"s_setprio {prio[u]}"] + pad if (prio and u in prio) else []
        if u == 16:
            pre += [f"v_add_u32 v{r}, {16*KV_TILE}, v{r}" for r in (vKa, vKt, vVa)]
            base[0] = 16
        def emit(sl):
            for (s_, m, j, pid, g) in order:
                if s_ == sl:
                    if callable(g): g = g(vq)
                    mids[sl][m] += [x or "s_nop 0" for x in vq.note(g, pid)]
        emit(0)
        qB = qk(S1, Kb[p], QB)
        slot(S0, [qB[0], qB[1], pv(OB, Vs1[p ^ 1], P + 4), pv(OA, Vs0, P)], pre4=["s_waitcnt lgkmcnt(0)"] + pad, pre=pre, mid=mids[0])
        emit(1)
        qA = qk(S0, Kb[p ^ 1], QA)
        post = []
        if u in bars:
            i = bars.index(u)
            up = bars[i + 1] if i + 1 < len(bars) else 32
            post += [f"s_waitcnt vmcnt({wait_for(need(up))})", "s_barrier"]
        elif u in xbars:
            post += ["s_barrier"] + pad
        post += afterbar.get(u, [])
        if u < 30: post += rdK(p, u + 2)
        if u < 31: post += rdV(p ^ 1, u + 1)
        if u == 31: qA = ["s_nop 0", "s_nop 0"]
        slot(S1, [qA[0], qA[1], pv(OA, Vs1[p], P + 4), pv(OB, Vs0, P)], post4=post, mid=mids[1])
    k("s_nop 1")
    k(pv(OB, Vs1[1], P + 4))
    if prio: k("s_setprio 0")
    k(stamp(prof, stamps[1]))
    return vq

def g_load():
    return [('g2', [f"s_lshl_b32 s{sT0}, s{sTile}, 8", f"s_lshl_b32 s{sT1}, s{sKh}, 7", f"s_add_u32 s{sT0}, s{sT0}, s{sT1}", f"s_add_u32 s{sT0}, s{sT0}, {WS_G}",
             f"s_add_u32 s{sQ}, s{sWS}, s{sT0}", f"s_addc_u32 s{sQ+1}, s{sWS+1}, 0", f"s_mov_b32 s{sQ+2}, 128",
             f"v_and_b32 v{vG}, 31, v0", f"v_lshlrev_b32 v{vG}, 2, v{vG}",
             f"buffer_load_dword v{vG}, v{vG}, s[{sQ}:{sQ+3}], 0 offen{SC1}"])]

def o_addr(k, sD, vOm, vOt, va, vb):
    k(f"""
    s_mul_i32 s{sT1}, s{sTile}, {A2_BLK}
    s_add_u32 s{sT1}, s{sT1}, {WS_A2}
    s_add_u32 s{sD}, s{sWS}, s{sT1}
    s_addc_u32 s{sD+1}, s{sWS+1}, 0
    s_mov_b32 s{sD+2}, {A2_BLK}
    s_mov_b32 s{sD+3}, 0x00020000
    s_lshr_b32 s{sT0}, s{sHead}, 1
    s_add_u32 s{sT0}, s{sT0}, {STEP_O}
    s_lshl_b32 s{sT0}, s{sT0}, 1
    s_add_u32 s{sT0}, s{sT0}, s{sKh}
    s_lshl_b32 s{sT0}, s{sT0}, 2
    s_and_b32 s{sT1}, s{sHead}, 1
    s_add_u32 s{sT0}, s{sT0}, s{sT1}
    s_lshl_b32 s{sT0}, s{sT0}, 9
    v_and_b32 v{va}, 15, v0
    v_lshlrev_b32 v{va}, 4, v{va}
    v_and_b32 v{vb}, 16, v0
    v_lshl_add_u32 v{va}, v{vb}, 6, v{va}
    v_and_b32 v{vb}, 32, v0
    v_lshl_add_u32 v{vOm}, v{vb}, 3, v{va}
    v_add_u32 v{vOm}, s{sT0}, v{vOm}
    s_lshr_b32 s{sT0}, s{sHead}, 3
    s_add_u32 s{sT0}, s{sT0}, {STEP_OT}
    s_lshl_b32 s{sT0}, s{sT0}, 1
    s_add_u32 s{sT0}, s{sT0}, s{sKh}
    s_lshl_b32 s{sT0}, s{sT0}, 11
    s_lshl_b32 s{sT1}, s{sT1}, 3
    s_add_u32 s{sT0}, s{sT0}, s{sT1}
    s_and_b32 s{sT1}, s{sHead}, 6
    s_lshl_b32 s{sT1}, s{sT1}, 7
    s_add_u32 s{sT0}, s{sT0}, s{sT1}
    v_lshl_add_u32 v{vOt}, v{vb}, 19, v{va}
    v_add_u32 v{vOt}, s{sT0}, v{vOt}
    """)

def p2_finish(k, gwait, sLate=None):
    vX, vR = 5, 6
    vOm, vOt = 8, 9
    o_addr(k, sA2, vOm, vOt, 10, 11)
    if sLate is None:
        k(f"s_lshl_b32 s{sT0}, s{sW}, 12\ns_xor_b32 s{sT1}, s{sT0}, 16384")
    else:
        k(f"""
        s_mov_b32 s{sT0}, s{sLate}
        s_add_u32 s{sT1}, s{sT0}, 81920
        s_sub_u32 s{sCnt}, s{sT0}, 81920
        s_cmp_eq_u32 s{sKh}, 0
        s_cselect_b32 s{sT1}, s{sT1}, s{sCnt}
        """)
    k(f"""
    v_add_u32 v{vX}, s{sT1}, v{vD}
    v_add_u32 v{vR}, s{sT0}, v{vD}
    s_waitcnt lgkmcnt(0)
    s_barrier
    s_cmp_eq_u32 s{sKh}, 0
    """)
    L1, L2 = k.uniq("kh0"), k.uniq("sent")
    k(f"s_cbranch_scc1 {L1}")
    def send(O):
        for j in range(3): k(f"ds_write_b128 v{vX}, v[{O+4*j}:{O+4*j+3}] offset:{1024*j}")
        k(f"ds_write_b32 v{vX}, v{O+12} offset:3072")
    send(OA)
    k("s_nop 7")
    for r in range(6): k(f"v_mov_b32 v{QA+r}, v{QB+r}")
    for r in range(13): k(f"v_mov_b32 v{OA+r}, v{OB+r}")
    k(f"s_branch {L2}")
    k.label(L1)
    k("s_nop 7")
    send(OB)
    k.label(L2)
    k("s_waitcnt lgkmcnt(0)\ns_barrier")
    for j in range(3): k(f"ds_read_b128 v[{S0+4*j}:{S0+4*j+3}], v{vR} offset:{1024*j}")
    k(f"ds_read_b32 v{S0+12}, v{vR} offset:3072")
    k(f"""
    s_mov_b32 s{sT0}, {f32hex(2.0**-24)}
    s_mov_b32 s{sT1}, {f32hex(2.0**64)}
    s_waitcnt lgkmcnt(0)
    """)
    for r in range(13): k(f"v_add_f32 v{OA+r}, v{OA+r}, v{S0+r}")
    k(f"v_mul_f32 v11, 0, v{OA}")
    for r in range(1, 12): k(f"v_fma_f32 v11, v{OA+r}, 0, v11")
    k(f"""
    v_add_f32 v11, v11, v{OA+12}
    v_cmp_nle_f32 vcc, s{sT0}, v11
    v_cmp_nle_f32 s[32:33], v11, s{sT1}
    s_nop 1
    s_or_b64 vcc, vcc, s[32:33]
    """)
    SLOW, FIN = k.name + "_slow", k.name + "_fin"
    k(f"s_cbranch_vccnz {SLOW}")
    k.label(FIN)
    k(f"v_rcp_f32 v11, v{OA+12}")
    k(f"s_waitcnt vmcnt({gwait})")
    k(f"v_mul_f32 v11, v11, v{vG}")
    for r in range(12): k(f"v_mul_f32 v{OA+r}, v{OA+r}, v11")
    for r in range(6): k(f"v_cvt_pk_bf16_f32 v{P+r}, v{OA+2*r}, v{OA+2*r+1}")
    k(f"""
    buffer_store_dwordx4 v[{P}:{P+3}], v{vOm}, s[{sA2}:{sA2+3}], 0 offen{SC1}
    buffer_store_dwordx2 v[{P+4}:{P+5}], v{vOt}, s[{sA2}:{sA2+3}], 0 offen{SC1}
    """)
    def fallback():
        k.label(SLOW)
        vM = 12
        k(f"""
        v_and_b32 v5, 31, v0
        v_lshlrev_b32 v{vKt}, 3, v5
        v_lshrrev_b32 v6, 5, v0
        v_mul_u32_u24 v{vVa}, 320, v6
        v_lshl_add_u32 v{vVa}, v5, 4, v{vVa}
        v_mov_b32 v{vM}, 0xff800000
        s_mov_b32 s{sCnt}, 0
        """)
        def ldK():
            k(f"buffer_load_dwordx4 v[{Kb[0]}:{Kb[0]+3}], v{vD}, s[{sKV}:{sKV+3}], s{sCnt} offen{SC1}")
            k(f"buffer_load_dwordx2 v[{Kb[0]+4}:{Kb[0]+5}], v{vKt}, s[{sKV}:{sKV+3}], s{sCnt} offen offset:1024{SC1}")
        LP1, LP2 = k.name + "_slow1", k.name + "_slow2"
        k.label(LP1)
        ldK()
        k("s_waitcnt vmcnt(0)")
        for x in qk(S0, Kb[0], QA): k(x)
        k("s_nop 15")
        for r in range(0, 16, 2): k(f"v_max3_f32 v{vM}, v{S0+r}, v{S0+r+1}, v{vM}")
        k(f"""
        s_add_u32 s{sCnt}, s{sCnt}, {KV_TILE}
        s_cmp_lt_u32 s{sCnt}, {KV_HEAD}
        s_cbranch_scc1 {LP1}
        v_mov_b32 v13, v{vM}
        s_nop 1
        v_permlane32_swap_b32 v{vM}, v13
        v_max_f32 v{vM}, v{vM}, v13
        s_mov_b32 s{sCnt}, 0
        """)
        for r in range(16): k(f"v_mov_b32 v{OA+r}, 0")
        k.label(LP2)
        ldK()
        k(f"""
        s_mov_b64 exec, s[{sMask}:{sMask+1}]
        buffer_load_dwordx4 v[{Vs0}:{Vs0+3}], v{vVa}, s[{sKV}:{sKV+3}], s{sCnt} offen offset:1280{SC1}
        buffer_load_dwordx4 v[{Vs1[0]}:{Vs1[0]+3}], v{vVa}, s[{sKV}:{sKV+3}], s{sCnt} offen offset:1920{SC1}
        s_mov_b64 exec, -1
        s_waitcnt vmcnt(0)
        """)
        for x in qk(S0, Kb[0], QA): k(x)
        k("s_nop 15")
        for r in range(16): k(f"v_sub_f32 v{S0+r}, v{S0+r}, v{vM}")
        for r in range(16): k(f"v_exp_f32 v{S0+r}, v{S0+r}")
        k("s_nop 0")
        for r in range(8): k(f"v_cvt_pk_bf16_f32 v{P+r}, v{S0+2*r}, v{S0+2*r+1}")
        k("s_nop 1")
        k(pv(OA, Vs0, P)); k(pv(OA, Vs1[0], P + 4))
        k(f"""
        s_add_u32 s{sCnt}, s{sCnt}, {KV_TILE}
        s_cmp_lt_u32 s{sCnt}, {KV_HEAD}
        s_cbranch_scc1 {LP2}
        s_nop 15
        s_branch {FIN}
        """)
    return fallback

def gen_k2(name="p2_kernel", prof=False, area=0, **kw):
    k = Kern(name, block=512, grid=256, lds=163840, vgpr=128)
    END = name + "_end"
    k(f"""
    s_cmp_ge_u32 s2, 256
    s_cbranch_scc1 {END}
    s_load_dwordx2 s[{sWS}:{sWS+1}], s[0:1], 80
    {stamp(prof, 0)}
    v_lshrrev_b32 v1, 6, v0
    v_and_b32 v0, 63, v0
    s_nop 0
    v_readfirstlane_b32 s{sW}, v1
    s_waitcnt lgkmcnt(0)
    """)
    p2_setup(k)
    n0 = kw.get("n0", 4)
    p2_first_loads(k, n0)
    p2_init_regs(k)
    k(stamp(prof, 1))
    k(first_wait(n0, 0, kw.get("bars", (3, 9))))
    q = p2_loop(k, extra={20: g_load()}, prof=prof, **kw)
    fb = p2_finish(k, 0)
    if prof: prof_out(k, 4, sWS, sW, area=area)
    k.label(END)
    k("s_endpgm")
    fb()
    return k

if __name__ == "__main__":
    k = gen_k2()
    for w in (0, 5):
        for br in ({}, {k.name + "_slow": True}):
            for e in check(k, init=dict(wg=3, wave=w), branch=br, verbose=True): print(e)
```

```python
from asmlib import *
from layout import *
from p1 import f32hex, sWS, sDBG, sW, SC1

sA, sB, sOut = 36, 40, 44
sTb, sNb = 48, 49
sSa, sSb = 50, 51
sU0, sU1 = 52, 53
sRe, sRl = 54, 55
ACC3 = 16
BUFA = [128, 164, 200, 96]
BUFB = [144, 180, 216, 236]
vG3 = 112
vL, vL2, vRe, vRl = 14, 15, 12, 13
BIG = 0x7ff00000

def p3_setup(k):
    k(f"""
    s_load_dwordx2 s[{sOut}:{sOut+1}], s[0:1], 64
    s_and_b32 s{sU0}, s2, 6
    s_lshl_b32 s{sU0}, s{sU0}, 2
    s_lshr_b32 s{sU1}, s2, 3
    s_and_b32 s{sTb}, s{sU1}, 7
    s_add_u32 s{sTb}, s{sTb}, s{sU0}
    s_and_b32 s{sU0}, s2, 1
    s_lshl_b32 s{sU0}, s{sU0}, 2
    s_lshr_b32 s{sNb}, s{sU1}, 3
    s_add_u32 s{sNb}, s{sNb}, s{sU0}
    s_mul_i32 s{sU0}, s{sTb}, {A2_BLK}
    s_add_u32 s{sU0}, s{sU0}, {WS_A2}
    s_add_u32 s{sA}, s{sWS}, s{sU0}
    s_addc_u32 s{sA+1}, s{sWS+1}, 0
    s_mov_b32 s{sA+2}, {A2_BLK}
    s_mov_b32 s{sA+3}, 0x00020000
    s_mul_i32 s{sU0}, s{sNb}, {B2_BLK}
    s_add_u32 s{sU0}, s{sU0}, {WS_B2}
    s_add_u32 s{sB}, s{sWS}, s{sU0}
    s_addc_u32 s{sB+1}, s{sWS+1}, 0
    s_mov_b32 s{sB+2}, {B2_BLK}
    s_mov_b32 s{sB+3}, 0x00020000
    s_lshr_b32 s{sU0}, s{sW}, 2
    s_mul_i32 s{sU0}, s{sU0}, 81920
    s_and_b32 s{sU1}, s{sW}, 3
    s_mul_i32 s{sRe}, s{sU1}, 15360
    s_add_u32 s{sRe}, s{sRe}, s{sU0}
    s_mul_i32 s{sRl}, s{sU1}, 5120
    s_add_u32 s{sRl}, s{sRl}, s{sU0}
    s_add_u32 s{sRl}, s{sRl}, 61440
    v_lshlrev_b32 v{vL}, 4, v0
    v_add_u32 v{vL2}, 4096, v{vL}
    """)

def step_expr(slot, s):
    if slot < 7:
        return [f"s_add_u32 s{s}, s{sW}, {8*slot}", f"s_cmp_lt_u32 s{s}, {STEP_O}"]
    if slot < 9:
        return [f"s_add_u32 s{s}, s{sW}, {STEP_O + 8*(slot-7)}", f"s_cmp_lt_u32 s{s}, {NSTEP}"]
    return [f"s_add_u32 s{s}, s{sW}, {STEP_OT - 4}", f"s_cmp_ge_u32 s{s}, {STEP_OT}"]
def always(slot): return slot not in (6, 9)
def so_a(slot):
    e = step_expr(slot, sSa)
    if always(slot): return [e[0], f"s_lshl_b32 s{sSa}, s{sSa}, 12"]
    return e + [f"s_cselect_b32 s{sSa}, s{sSa}, {BIG >> 12}", f"s_lshl_b32 s{sSa}, s{sSa}, 12"]
def so_b(slot):
    e = step_expr(slot, sSb)
    if always(slot): return [e[0], f"s_mul_i32 s{sSb}, s{sSb}, 5120"]
    return e + [f"s_cselect_b32 s{sSb}, s{sSb}, 1024", f"s_mul_i32 s{sSb}, s{sSb}, 5120"]
def ld_a(buf, tt):
    r = BUFA[buf] + 4 * tt
    return f"buffer_load_dwordx4 v[{r}:{r+3}], v{vL}, s[{sA}:{sA+3}], s{sSa} offen offset:{1024*tt}{SC1}"
def ld_b(buf, nt):
    r = BUFB[buf] + 4 * nt
    return f"buffer_load_dwordx4 v[{r}:{r+3}], v{vL if nt < 4 else vL2}, s[{sB}:{sB+3}], s{sSb} offen offset:{1024*(nt&3)}{SC1}"
def slot_loads(slot, buf, part="ab"):
    out = []
    if "a" in part: out += so_a(slot) + [ld_a(buf, tt) for tt in range(4)]
    if "b" in part: out += so_b(slot) + [ld_b(buf, nt) for nt in range(5)]
    return out
def acc(tt, nt): return ACC3 + 4 * (5 * tt + nt)
def mm(buf, tt, nt, first=False):
    d, a, b = acc(tt, nt), BUFA[buf] + 4 * tt, BUFB[buf] + 4 * nt
    return f"v_mfma_f32_16x16x32_bf16 v[{d}:{d+3}], v[{a}:{a+3}], v[{b}:{b+3}], " + ("0" if first else f"v[{d}:{d+3}]")
def g_loads():
    return [f"s_lshl_b32 s{sU0}, s{sTb}, 8", f"s_add_u32 s{sU0}, s{sU0}, {WS_G}",
            f"s_add_u32 s{sU0}, s{sWS}, s{sU0}", f"s_addc_u32 s{sU1}, s{sWS+1}, 0",
            f"v_and_b32 v{vG3}, 0x30, v0"] + \
           [f"global_load_dwordx4 v[{vG3+4*tt}:{vG3+4*tt+3}], v{vG3}, s[{sU0}:{sU1}] offset:{64*tt}{SC1}" for tt in (3, 2, 1, 0)]

def compute_slot(k, vq, slot, buf, nxt=None, part="ab", first=False):
    k(f"s_waitcnt vmcnt({vq.wait(('a', slot), ('b', slot))})")
    SK = None
    if not always(slot):
        SK = k.uniq("skip")
        for x in step_expr(slot, sU0): k(x)
        k(f"s_cbranch_scc0 {SK}")
        assert nxt is None
    for tt in range(4):
        for nt in range(5):
            k(mm(buf, tt, nt, first))
            if nxt is not None:
                if "a" in part and tt == 0 and nt == 2:
                    for x in so_a(nxt): k(x)
                if "b" in part and tt == 2 and nt == 2:
                    for x in so_b(nxt): k(x)
                if "a" in part and tt > 0 and nt == 1: vq.add(k, [ld_a(buf, tt - 1)], ('a', nxt))
                if "b" in part and tt == 3 and nt > 1: vq.add(k, [ld_b(buf, nt - 2)], ('b', nxt))
    if nxt is not None:
        if "a" in part: vq.add(k, [ld_a(buf, 3)], ('a', nxt))
        if "b" in part: vq.add(k, [ld_b(buf, 3), ld_b(buf, 4)], ('b', nxt))
    if SK: k.label(SK)

def scale(k, vq):
    k(f"s_waitcnt vmcnt({vq.wait('g')})")
    for r in range(16): k(f"v_sub_f32 v{vG3+r}, 1.0, v{vG3+r}")
    for tt in range(4):
        for nt in range(5):
            for h in range(2):
                a, g = acc(tt, nt) + 2 * h, vG3 + 4 * tt + 2 * h
                k(f"v_pk_mul_f32 v[{a}:{a+1}], v[{a}:{a+1}], v[{g}:{g+1}]")

def o_phase(k, bufs):
    LB, LJ = k.uniq("clsb"), k.uniq("clsj")
    k(f"s_cmp_ge_u32 s{sW}, 4\ns_cbranch_scc1 {LB}")
    for cls in (0, 1):
        if cls:
            k.label(LB)
            k(f"v_lshlrev_b32 v{vRl}, 2, v0\nv_add_u32 v{vRe}, s{sRe}, v{vRl}\nv_add_u32 v{vRl}, s{sRl}, v{vRl}")
        else:
            k(f"s_mov_b32 m0, s{sRe}")
        def wr(q):
            r = ACC3 + 4 * q
            if cls == 0:
                pre = [f"s_sub_u32 m0, s{sRl}, {60*256}", "s_nop 0"] if q == 15 else []
                return pre + [f"ds_write_addtid_b32 v{r+j} offset:{256*(4*q+j)}" for j in range(4)]
            a, o = (vRe, 4 * q) if q < 15 else (vRl, 4 * q - 60)
            return [f"ds_write2st64_b32 v{a}, v{r+j}, v{r+j+1} offset0:{o+j} offset1:{o+j+1}" for j in (0, 2)]
        use = bufs[:2 + cls]
        D = 2
        seq = []
        for q0 in range(0, 20, 2):
            for b in use:
                for q in (q0, q0 + 1): seq.append(mm(b, q // 5, q % 5))
            if q0 >= 4: seq += wr(q0 - 4) + wr(q0 - 3)
        seq += wr(16) + wr(17) + ["s_nop 3"] + wr(18) + wr(19)
        for x in seq: k(x)
        if not cls: k(f"s_branch {LJ}")
    k.label(LJ)

def reduce_store(k, omod=''):
    R = 88
    vA, vO = 124, 125
    def region(w, j):
        return (w >> 2) * 81920 + ((w & 3) * 15360 + 256 * j if j < 60 else 61440 + (w & 3) * 5120 + 256 * (j - 60))
    k(f"""
    s_lshr_b32 s{sU0}, s{sW}, 1
    s_and_b32 s{sU1}, s{sW}, 1
    s_lshl_b32 s{sU1}, s{sU1}, 1
    s_mul_i32 s{sSa}, s{sU0}, 5120
    s_mov_b32 s{sSb}, 15360
    s_cmp_eq_u32 s{sU0}, 3
    s_cselect_b32 s{sSa}, 61440, s{sSa}
    s_cselect_b32 s{sSb}, 5120, s{sSb}
    s_lshl_b32 s{sRe}, s{sU1}, 8
    s_add_u32 s{sSa}, s{sSa}, s{sRe}
    v_and_b32 v1, 15, v0
    v_lshrrev_b32 v2, 4, v0
    v_lshlrev_b32 v3, 4, v1
    v_lshl_add_u32 v3, v2, 10, v3
    v_add_u32 v116, s{sSa}, v3
    v_add_u32 v117, s{sSb}, v116
    v_add_u32 v118, s{sSb}, v117
    v_add_u32 v119, s{sSb}, v118
    """)
    for i in range(4): k(f"v_add_u32 v{120+i}, 81920, v{116+i}")
    k(f"""
    s_lshl_b32 s{sRl}, s{sU0}, 4
    s_add_u32 s{sRl}, s{sRl}, s{sU1}
    s_mul_i32 s{sRl}, s{sRl}, 1280
    v_lshrrev_b32 v4, 2, v1
    v_mul_u32_u24 v4, {4*1280}, v4
    v_and_b32 v5, 3, v0
    v_lshl_add_u32 v4, v5, 3, v4
    v_lshl_add_u32 v{vO}, v2, 5, v4
    v_add_u32 v{vO}, s{sRl}, v{vO}
    s_mul_i32 s{sU1}, s{sTb}, {64*1280}
    s_mul_i32 s{sRl}, s{sNb}, 160
    s_add_u32 s{sU1}, s{sU1}, s{sRl}
    s_sub_u32 s{sOut+2}, {S*D*2}, s{sU1}
    s_mov_b32 s{sOut+3}, 0x00020000
    s_waitcnt lgkmcnt(0)
    s_add_u32 s{sOut}, s{sOut}, s{sU1}
    s_addc_u32 s{sOut+1}, s{sOut+1}, 0
    s_barrier
    """)
    def unit(reg, addr, off):
        return [f"ds_read_b128 v[{reg+4*w}:{reg+4*w+3}], v{addr+w} offset:{off}" for w in range(8)]
    def summ(reg, left):
        out = []
        for w in range(1, 8):
            if w in (1, 3, 5, 7): out.append(f"s_waitcnt lgkmcnt({min(15, left + 7 - w)})")
            if w in (2, 4, 6): pass
            out += [f"v_pk_add_f32 v[{reg+2*h}:{reg+2*h+1}], v[{reg+2*h}:{reg+2*h+1}], v[{reg+4*w+2*h}:{reg+4*w+2*h+1}]" for h in range(2)]
        return out
    U0, U1, U2 = 16, 48, 128
    for x in unit(U0, 116, 0) + unit(U1, 116, 256): k(x)
    def fin(reg, addr, off):
        return [f"v_cvt_pk_bf16_f32 v{reg}, v{reg}, v{reg+1}", f"v_cvt_pk_bf16_f32 v{reg+1}, v{reg+2}, v{reg+3}",
                f"buffer_store_dwordx2 v[{reg}:{reg+1}], v{addr}, s[{sOut}:{sOut+3}], 0 offen offset:{off}{omod}"]
    def adds(reg, left):
        out = []
        for w in range(1, 8):
            out.append(f"s_waitcnt lgkmcnt({left + 7 - w})")
            out += [f"v_pk_add_f32 v[{reg+2*h}:{reg+2*h+1}], v[{reg+2*h}:{reg+2*h+1}], v[{reg+4*w+2*h}:{reg+4*w+2*h+1}]" for h in range(2)]
        return out
    LB, LE = k.uniq("nob"), k.uniq("rend")
    for x in adds(U0, 8) + fin(U0, vO, 0): k(x)
    k(f"s_cmp_ge_u32 s{sW}, 4\ns_cbranch_scc1 {LB}")
    k(f"""
    s_mul_i32 s{sSa}, s{sW}, 5120
    s_mov_b32 s{sSb}, 15360
    s_cmp_eq_u32 s{sW}, 3
    s_cselect_b32 s{sSa}, 61440, s{sSa}
    s_cselect_b32 s{sSb}, 5120, s{sSb}
    v_lshlrev_b32 v3, 4, v1
    v_lshl_add_u32 v3, v2, 8, v3
    v_add_u32 v108, s{sSa}, v3
    v_add_u32 v109, s{sSb}, v108
    v_add_u32 v110, s{sSb}, v109
    v_add_u32 v111, s{sSb}, v110
    """)
    for i in range(4): k(f"v_add_u32 v{112+i}, 81920, v{108+i}")
    for x in unit(U2, 108, 4096): k(x)
    k(f"""
    s_mul_i32 s{sRl}, s{sW}, {16*1280}
    v_mul_u32_u24 v5, 1280, v2
    v_add3_u32 v5, v5, v4, s{sRl}
    """)
    for x in adds(U1, 8) + fin(U1, vO, 1280): k(x)
    for x in adds(U2, 0) + fin(U2, 5, 128): k(x)
    k(f"s_branch {LE}")
    k.label(LB)
    for x in adds(U1, 0) + fin(U1, vO, 1280): k(x)
    k.label(LE)

def gen_k3(name="p3_kernel", prof=False, area=0):
    k = Kern(name, block=512, grid=256, lds=163840, vgpr=256)
    END = name + "_end"
    k(f"""
    s_cmp_ge_u32 s2, 256
    s_cbranch_scc1 {END}
    s_load_dwordx2 s[{sWS}:{sWS+1}], s[0:1], 80
    {stamp(prof, 0)}
    v_lshrrev_b32 v1, 6, v0
    v_and_b32 v0, 63, v0
    s_nop 0
    v_readfirstlane_b32 s{sW}, v1
    s_waitcnt lgkmcnt(0)
    """)
    p3_setup(k)
    vq = VQ()
    for s in range(4):
        vq.add(k, slot_loads(s, s, "a"), ('a', s)); vq.add(k, slot_loads(s, s, "b"), ('b', s))
    vq.add(k, g_loads(), 'g')
    k(stamp(prof, 1))
    for s in range(7):
        compute_slot(k, vq, s, s % 4, nxt=(s + 4 if s < 6 else None), first=(s == 0))
        if s == 0: k(stamp(prof, 2))
    k("s_nop 7")
    scale(k, vq)
    k(stamp(prof, 3))
    k("s_waitcnt vmcnt(0)")
    k(stamp(prof, 4))
    o_phase(k, [3, 0, 1])
    k(stamp(prof, 5))
    reduce_store(k)
    if prof: prof_out(k, 6, sWS, sW, area=area)
    k.label(END)
    k("s_endpgm")
    return k

if __name__ == "__main__":
    k = gen_k3()
    for w in range(8):
        for e in check(k, init=dict(wg=77, wave=w), verbose=True): print(e)
```

```python
from build import *
from fused import gen
from t_f import cyc_s, cyc_t
import shutil, sys
NAME = "gated_mix__softmax_full_mha__geglu_ffn__prompt"
ref = open(f'cdna_kernels/{NAME}.s.ref').read().split("\n")
hdr = "\n".join(l for l in ref[:12]) + "\n"
def emit(dst, kw):
    k = gen(NAME + "_kernel", **kw)
    seen = set()
    for wg in (0, 3, 77, 71, 68, 200, 255, 196):
        for w in (0, 3, 4, 7):
            for e in check(k, init=dict(wg=wg, wave=w)):
                if e not in seen: seen.add(e); print(e)
    s = assemble_file(hdr, [k], [])
    s = s.replace('.amdgcn_target', f"; @launch grid=({k.grid},1,1) block=({k.block},1,1) lds={k.lds}\n.amdgcn_target", 1)
    s = s.replace("L_" + k.name, "L").replace(k.name + "_", "K_")
    open(dst, "w").write(s)
    print(dst, len(s))
if __name__ == "__main__":
    dst = sys.argv[1] if len(sys.argv) > 1 else f"cdna_kernels/{NAME}.s"
    kw = eval("dict(" + (sys.argv[2] if len(sys.argv) > 2 else "") + ")")
    emit(dst, kw)
```

```python
from asmlib import *
from layout import *
import p1, p2, p3
from p1 import *
from p3 import sA, sB, sOut, sTb, sNb, sSa, sSb, sU0, sU1, sRe, sRl, vL, vL2, BUFA, BUFB, vG3

sTS = 96
sSY = 100
vIni = 255
vPo = 248
SPIN = 1 << 16

def spin_loop(k, name, load, cond, back, sCount=34):
    L = name + "_l"
    k.label(name)
    k(f"s_mov_b32 s{sCount}, {SPIN}")
    k.label(L)
    for x in load: k(x)
    k("s_waitcnt vmcnt(0)")
    for x in cond: k(x)
    k(f"""
    s_sub_u32 s{sCount}, s{sCount}, 1
    s_cbranch_scc1 {back}
    s_cbranch_vccnz {L}
    s_branch {back}
    """)

def gen(name, NW=5, prof=False, area=0, n0=4, bars=(3, 9), prio={0: 3, 18: 2, 25: 1, 30: 0}, pattern=1, gsplit=12, xbar=24, pf0=14, warm=True, pbar=(), arr=3, paced=True, itail=True, obar=True, fine=False, pref=None):
    k = Kern(name, block=512, grid=256, lds=163840, vgpr=256, sgpr=102)
    END = name + "_end"
    tails = []
    st = lambda i: stamp(prof, i) if not (fine and i < 13) else ''
    sl = lambda i: [st(i)] if (prof and st(i)) else []
    k(f"s_cmp_ge_u32 s2, 256\ns_cbranch_scc1 {END}")
    p1_setup(k, prof)
    if pref: pref_setup(k, pref[0])
    LZ = k.uniq("noz")
    k(f"""
    s_add_u32 s{sSY}, s{sWS}, {WS_SYNC}
    s_addc_u32 s{sSY+1}, s{sWS+1}, 0
    s_or_b32 s{sT[0]}, s2, s{sW}
    s_cbranch_scc1 {LZ}
    v_mul_u32_u24 v5, {SY_STRIDE}, v0
    v_mov_b32 v6, 0
    s_mov_b64 exec, {hex((1 << SY_N) - 1)}
    global_store_dword v5, v6, s[{sSY}:{sSY+1}]{SC1}
    s_mov_b64 exec, -1
    {LZ}:
    """)
    def pro(extra=None):
        def f(k, vq):
            if pref:
                for g in pref_loads(extra is None, *pref[1:]).get(-1, []): vq.add(k, g, 'pf')
            k(f"s_mov_b32 s{sTS}, s{sCb}\ns_mov_b32 s{sTS+1}, s{sTg}\ns_mov_b32 s{sTS+2}, s{sCg}")
            p2.p2_ids(k)
            p2.o_addr(k, 44, vPo + 4, vPo + 5, 13, 14)
            k(f"s_mov_b32 s{sCb}, s{sTS}\ns_mov_b32 s{sTg}, s{sTS+1}\ns_mov_b32 s{sCg}, s{sTS+2}")
            for r in range(4): k(f"v_mov_b32 v{vPo+r}, -1")
            if extra: extra(k)
        return f
    LI = lambda: k.uniq("noi")
    def hooks(side):
        l = LI()
        h = {1: [(None, [f"s_or_b32 s{sT[0]}, s2, s{sW}", f"s_cbranch_scc1 {l}", f"v_mov_b32 v13, 0", f"v_mov_b32 v14, 1", "s_mov_b64 exec, 1",
                         f" global_store_dword v13, v14, s[{sDBG}:{sDBG+1}]{SC1}", "s_mov_b64 exec, -1", l + ":"])],
             2: [('po', [f"buffer_store_dwordx4 v[{vPo}:{vPo+3}], v{vPo+4}, s[44:47], 0 offen{SC1}"]),
                 ('po', [f"buffer_store_dwordx2 v[{vPo}:{vPo+1}], v{vPo+5}, s[44:47], 0 offen{SC1}"])],
             8: [('ini', [f"v_mov_b32 v{vIni}, 0", f"global_load_dword v{vIni}, v{vIni}, s[{sDBG}:{sDBG+1}]{SC1}"])]}
        if pref:
            for when, gs in pref_loads(not side, *pref[1:]).items():
                if when >= 0: h.setdefault(when, []).extend(('pf', g) for g in gs)
        if side:
            g, gl = side_loads()
            s0 = max(max(s for s in range(20) if s % NW == j) for j in (0, 1))
            h[s0] = [('side', x) for x in g]
            h[s0 - 1] = [('side', x) for x in gl[:5]]
            h[s0] += [('side', x) for x in gl[5:]]
        return h
    def init_check():
        nm, back = k.uniq("ispin"), k.uniq("iback")
        k(f"v_cmp_ne_u32 vcc, 1, v{vIni}\ns_cbranch_vccnz {nm}")
        k.label(back)
        tails.append(lambda: spin_loop(k, nm, [f"v_mov_b32 v{vIni}, 0", f"global_load_dword v{vIni}, v{vIni}, s[{sDBG}:{sDBG+1}]{SC1}"],
                                       [f"v_cmp_ne_u32 vcc, 1, v{vIni}"], back))
    def qkv_wait():
        L, X = k.uniq("qspin"), k.uniq("qdone")
        k(f"""
        s_lshr_b32 s{p2.sT0}, s{p2.sHead}, 4
        s_add_u32 s{p2.sT0}, s{p2.sT0}, {SY_FLAG}
        v_lshl_add_u32 v5, v0, 1, s{p2.sT0}
        v_mul_u32_u24 v5, {SY_STRIDE}, v5
        s_mov_b32 s34, {SPIN}
        s_mov_b64 exec, 7
        {L}:
        global_load_dword v6, v5, s[{sSY}:{sSY+1}]{SC1}
        s_waitcnt vmcnt(0)
        v_cmp_ne_u32 vcc, 1, v6
        s_sub_u32 s34, s34, 1
        s_cbranch_scc1 {X}
        s_cbranch_vccnz {L}
        {X}:
        s_mov_b64 exec, -1
        """)
    LQ, LV, L20, LJ = name + "_qkv", name + "_v", name + "_f20", name + "_att"
    k(f"s_cmp_ge_u32 s{sCb}, 10\ns_cbranch_scc1 {LQ}")
    ffn_wave_params(k)
    k(f"s_cmp_lg_u32 s{sMode}, 0\ns_cbranch_scc1 {L20}")
    for var in ('F24', 'F20'):
        if var == 'F20': k.label(L20)
        p1_loop(k, var, NW, prof, True, hooks(False), pro(), pbar, fine, paced)
        h_store_setup(k, var)
        g = gelu_math(k, var)
        n = len(g) // (12 if var == 'F24' else 10)
        hs = h_stores(var)
        def rest():
            for x in g[n * gsplit:]: k(x)
            k("s_nop 1")
            for x in hs: k(x)
            k(st(15) if not fine else '')
            p2.p2_init_regs(k)
            p3.p3_setup(k)
        for x in g[:n * gsplit]: k(x)
        late = n * gsplit < len(g)
        if not late: rest()
        init_check()
        p2.p2_setup(k)
        qkv_wait()
        k(st(3))
        p2.p2_first_loads(k, n0)
        if late: rest()
        k(p2.first_wait(n0, sum(x.startswith("buffer") for x in hs) if late else 0, bars) + " lgkmcnt(0)")
        k(f"s_branch {LJ}")
    k.label(LQ)
    k(f"s_cmp_ge_u32 s{sCb}, 14\ns_cbranch_scc1 {LV}")
    LS = name + "_side"
    p1_loop(k, 'QK', NW, prof, True, hooks(True), pro(side_params), pbar, fine, paced, qk_tail() if itail else None)
    if not itail:
        k("s_nop 7")
        qk_epilogue(k)
    k(f"s_branch {LS}")
    k.label(LV)
    p1_loop(k, 'V', NW, prof, True, hooks(True), pro(side_params), pbar, fine, paced, v_tail() if itail else None)
    if not itail:
        k("s_nop 7")
        v_epilogue(k)
    k.label(LS)
    init_check()
    LA, LF = k.uniq("noarr"), k.uniq("noflag")
    k(f"""
    s_sub_u32 s{sT[0]}, s{sCb}, 10
    s_mul_i32 s{sT[0]}, s{sT[0]}, {SY_STRIDE}
    v_mov_b32 v11, s{sT[0]}
    v_mov_b32 v12, 1
    v_mov_b32 v13, 0
    s_waitcnt vmcnt(0)
    s_barrier
    {st(15) if not fine else ''}
    s_cmp_lg_u32 s{sW}, 0
    s_cbranch_scc1 {LA}
    s_mov_b64 exec, 1
    global_atomic_add v13, v11, v12, s[{sSY}:{sSY+1}] sc0 sc1
    s_mov_b64 exec, -1
    {LA}:
    """)
    side_compute(k)
    k(f"""
    s_waitcnt vmcnt(0)
    v_cmp_eq_u32 vcc, 15, v13
    v_add_u32 v11, {SY_FLAG * SY_STRIDE}, v11
    s_cbranch_vccz {LF}
    s_mov_b64 exec, 1
    global_store_dword v11, v12, s[{sSY}:{sSY+1}]{SC1}
    s_mov_b64 exec, -1
    {LF}:
    """)
    side_stores(k)
    k("s_barrier")
    p2.p2_setup(k)
    p2.p2_init_regs(k)
    p3.p3_setup(k)
    qkv_wait()
    k(st(3))
    p2.p2_first_loads(k, n0)
    k(p2.first_wait(n0, 0, bars) + " lgkmcnt(0)")
    k.label(LJ)
    LD = k.uniq("nodone")
    arrive = [f"s_cmp_lg_u32 s{sW}, 0", f"s_cbranch_scc1 {LD}", f"s_and_b32 s{sU0}, s2, 15", f"s_add_u32 s{sU0}, s{sU0}, {SY_P1}", f"s_mul_i32 s{sU0}, s{sU0}, {SY_STRIDE}",
              f"v_mov_b32 v5, s{sU0}", "v_mov_b32 v6, 1", "s_mov_b64 exec, 1", f"global_atomic_add v5, v6, s[{sSY}:{sSY+1}]{SC1}", "s_mov_b64 exec, -1", LD + ":"]
    pload = [f"global_load_dword v6, v5, s[{sSY}:{sSY+1}]{SC1}"]
    pcond = ["v_cmp_ne_u32 vcc, 16, v6"]
    nm, back = k.uniq("pspin"), k.uniq("pback")
    tails.append(lambda: spin_loop(k, nm, ["s_sleep 4"] + pload, pcond, back))
    extra = {}
    def put(u, tag, g): extra.setdefault(u, []).append((tag, g))
    put(pf0 - 2, 'p1', ["v_and_b32 v5, 15, v0", f"v_add_u32 v5, {SY_P1}, v5", f"v_mul_u32_u24 v5, {SY_STRIDE}, v5"] + pload)
    put(pf0, None, lambda vq: [f"s_waitcnt vmcnt({vq.wait('p1')})"] + pcond + [f"s_cbranch_vccnz {nm}", back + ":"] + sl(6))
    seq = []
    for s in range(4):
        if s < 3:
            l = p3.slot_loads(s, s, "a"); i = len(l) - 4
            seq += [(('a', s), l[:i + 1])] + [(('a', s), [x]) for x in l[i + 1:]]
        l = p3.slot_loads(s, s, "b"); i = len(l) - 5
        seq += [(('b', s), l[:i + 1])] + [(('b', s), [x]) for x in l[i + 1:]]
    if warm:
        w = [f"s_lshr_b32 s{sU0}, s2, 3", f"s_cmp_lt_u32 s{sW}, 4", f"s_cselect_b32 s{sTS}, s{sA}, s{sB}", f"s_cselect_b32 s{sTS+1}, s{sA+1}, s{sB+1}",
             f"s_cselect_b32 s{sTS+2}, s{sA+2}, s{sB+2}", f"s_mov_b32 s{sTS+3}, 0x00020000",
             f"s_lshr_b32 s{sU1}, s{sU0}, 3", f"s_lshl_b32 s{sU1}, s{sU1}, 2", f"s_add_u32 s{sU1}, s{sU1}, s{sW}", f"s_lshl_b32 s{sU1}, s{sU1}, 13", f"s_add_u32 s{sU1}, s{sU1}, {22*4096}",
             f"s_and_b32 s{sU0}, s{sU0}, 7", f"s_lshl_b32 s{sU0}, s{sU0}, 1", f"s_and_b32 s34, s{sW}, 1", f"s_add_u32 s{sU0}, s{sU0}, s34", f"s_lshl_b32 s{sU0}, s{sU0}, 13",
             f"s_add_u32 s{sU0}, s{sU0}, {54*5120 - 131072}", f"s_cmp_lt_u32 s{sW}, 4", f"s_cselect_b32 s34, s{sU1}, s{sU0}",
             f"v_lshlrev_b32 v5, 7, v0", f"buffer_load_dword v125, v5, s[{sTS}:{sTS+3}], s34 offen{SC1}"]
        seq += [('w', w), ('w', [f"buffer_load_dword v126, v5, s[{sTS}:{sTS+3}], s34 offen offset:64{SC1}"])]
    seq += p2.g_load()
    u = pf0 + 1
    per = -(-len(seq) // (xbar - u))
    for i, (tag, g) in enumerate(seq): put(u + i // per, tag, g)
    seq = []
    for i, s in enumerate((7, 8, 9)):
        for nt in range(5):
            g = []
            if nt == 0: g += p3.so_b(s)
            if nt in (0, 4): g += [f"s_add_u32 m0, s{sRe}, {5120 * i + 1024 * nt}", None]
            g += [f"buffer_load_dwordx4 v{vL if nt < 4 else vL2}, s[{sB}:{sB+3}], s{sSb} offen offset:{1024 * (nt & 3)}{SC1} lds"]
            seq.append((('l', s), g))
    u = xbar + 1
    per = -(-len(seq) // (31 - u))
    for i, (tag, g) in enumerate(seq): put(u + i // per, tag, g)
    ab = {bars[-1]: sl(5), xbar: sl(7)}
    ab[arr] = arrive + ab.get(arr, [])
    vq = p2.p2_loop(k, n0=n0, bars=bars, prio=prio, extra=extra, prof=prof, pattern=pattern, xbars=(xbar,), afterbar=ab, stamps=(13, 15) if fine else (4, 8))
    fb = p2.p2_finish(k, vq.wait('g2'), sRl)
    vq.q += ['o', 'o']
    if obar: k('s_barrier')
    k(st(9))
    tails.append(fb)
    vq.add(k, p3.slot_loads(3, 3, "a"), ('a', 3))
    vq.add(k, p3.g_loads(), 'g')
    k(f"v_add_u32 v{p3.vRe}, s{sRe}, v{vL}")
    def lds_b(buf, i):
        return [f"ds_read_b128 v[{BUFB[buf]+4*nt}:{BUFB[buf]+4*nt+3}], v{p3.vRe} offset:{5120*i + 1024*nt}" for nt in range(5)]
    for s in range(7):
        p3.compute_slot(k, vq, s, s % 4, nxt=(s + 4 if s < 6 else None), part=("ab" if s < 3 else "a"), first=(s == 0))
        if 3 <= s < 6:
            for x in lds_b(s % 4, s - 3): k(x)
        if s == 3: k(st(10))
    k("s_nop 7")
    p3.scale(k, vq)
    k(st(11))
    oregs = [BUFA[b] + r for b in (3, 0, 1) for r in range(16)]
    chk = [f"v_max3_u32 v5, v{oregs[0]}, v{oregs[1]}, v{oregs[2]}"] + [f"v_max3_u32 v5, v5, v{a}, v{b}" for a, b in zip(oregs[3::2], oregs[4::2])] + \
          [f"v_max_u32 v5, v5, v{oregs[-1]}", "v_cmp_eq_u32 vcc, -1, v5"]
    nm2, back2 = k.uniq("ospin"), k.uniq("oback")
    k("s_waitcnt vmcnt(0) lgkmcnt(0)")
    for x in chk: k(x)
    k(f"s_cbranch_vccnz {nm2}")
    k.label(back2)
    k(st(12))
    tails.append(lambda: spin_loop(k, nm2, [x for s, b in ((7, 3), (8, 0), (9, 1)) for x in p3.slot_loads(s, b, "a")], chk, back2))
    p3.o_phase(k, [3, 0, 1])
    k(st(13) if not fine else '')
    p3.reduce_store(k)
    if prof: prof_out(k, 14, sWS, sW, area=area, mode=prof)
    k.label(END)
    k("s_endpgm")
    for t in tails: t()
    return k

if __name__ == "__main__":
    k = gen("f_kernel"); seen = set()
    for wg in (0, 3, 77, 71, 200, 255, 196):
        for w in (0, 3, 4, 7):
            for e in check(k, init=dict(wg=wg, wave=w), verbose=(w == 0)):
                if e not in seen: seen.add(e); print(e)
```

```python
from asmlib import *
from layout import *
import struct
def f32hex(x): return "0x%08x" % struct.unpack("<I", struct.pack("<f", x))[0]

sWS, sDBG, sW = 4, 6, 3
sX, sWt, sO = 8, 12, 16
sRb, sCb, sTg, sCg = 20, 21, 22, 23
sT = [24, 25, 26, 27, 28, 29, 30, 31]
sM0x, sM0w = 32, [33, 34, 35]
sSoX, sSoW, sStr = 36, 37, 38
sFb0, sMode, sSt2 = 39, 40, 41
sC = 42
sPtr = 48
X_SLOT, W_BASE, W_SLOT, W_UP = 16384, 49152, 22528, 11264
vDx, vDw = 1, [2, 3, 4]
vXa = [[5, 6], [7, 8]]
vWa, vWb = [9, 10], [11, 12]
FR = [16, 56]
ACC = 96
HP = 192
SC1 = " sc1"

def p1_setup(k, prof=False):
    t = sT
    lo = sum(CB_TABLE[i] << (4 * i) for i in range(8)); hi = sum(CB_TABLE[8 + i] << (4 * i) for i in range(8))
    k(f"""
    s_load_dwordx16 s[{sPtr}:{sPtr+15}], s[0:1], 0
    s_load_dwordx2 s[{sWS}:{sWS+1}], s[0:1], 80
    s_load_dwordx2 s[{sDBG}:{sDBG+1}], s[0:1], 72
    {stamp(prof, 0)}
    v_lshrrev_b32 v1, 6, v0
    v_and_b32 v0, 63, v0
    s_and_b32 s{t[0]}, s2, 1
    v_readfirstlane_b32 s{sW}, v1
    s_lshl_b32 s{t[0]}, s{t[0]}, 3
    s_lshr_b32 s{t[1]}, s2, 3
    s_and_b32 s{t[2]}, s{t[1]}, 7
    s_add_u32 s{sRb}, s{t[0]}, s{t[2]}
    s_lshr_b32 s{t[1]}, s{t[1]}, 3
    s_and_b32 s{t[0]}, s2, 2
    s_lshl_b32 s{t[0]}, s{t[0]}, 1
    s_add_u32 s{t[1]}, s{t[1]}, s{t[0]}
    s_lshl_b32 s{t[1]}, s{t[1]}, 2
    s_and_b32 s{t[0]}, s2, 4
    s_mov_b32 s{t[2]}, {hex(hi)}
    s_cmp_eq_u32 s{t[0]}, 0
    s_cselect_b32 s{t[0]}, {hex(lo)}, s{t[2]}
    s_lshr_b32 s{t[0]}, s{t[0]}, s{t[1]}
    s_and_b32 s{sCb}, s{t[0]}, 15
    s_and_b32 s{sTg}, s{sW}, 1
    s_lshr_b32 s{sCg}, s{sW}, 1
    """)
    k(f"""
    s_lshl_b32 s{sM0x}, s{sW}, 10
    s_lshl_b32 s{t[0]}, s{sW}, 2
    v_lshrrev_b32 v5, 4, v0
    v_add_u32 v5, s{t[0]}, v5
    v_xor_b32 v5, v5, v0
    v_and_b32 v5, 7, v5
    v_lshlrev_b32 v5, 4, v5
    v_lshrrev_b32 v6, 3, v0
    s_mul_i32 s{t[0]}, s{sW}, {8*1280}
    v_mul_u32_u24 v6, 1280, v6
    v_add3_u32 v{vDx}, v5, v6, s{t[0]}
    s_mul_i32 s{t[1]}, s{sRb}, {128*1280}
    s_mov_b32 s{sX+2}, {128*1280}
    s_mov_b32 s{sX+3}, 0x00020000
    s_mov_b32 s{sWt+3}, 0x00020000
    s_mov_b32 s{sO+3}, 0x00020000
    """)
    LQ, LJ = k.uniq("qkvpar"), k.uniq("parj")
    k(f"""
    s_cmp_ge_u32 s{sCb}, 10
    s_cbranch_scc1 {LQ}
    s_mul_i32 s{sFb0}, s{sCb}, 11
    s_cmp_eq_u32 s{sCb}, 9
    s_cselect_b32 s{sFb0}, 98, s{sFb0}
    s_mov_b32 s{t[2]}, 2979
    s_mov_b32 s{t[3]}, 22
    s_mov_b32 s{t[4]}, 3456
    s_lshl_b32 s{t[5]}, s{sFb0}, 5
    s_and_b32 s{t[6]}, s{sW}, 3
    s_mov_b32 s{t[7]}, 4
    s_mov_b32 s{sC}, 22
    s_lshr_b32 s{sC+1}, s{sW}, 2
    s_mul_i32 s{sC+1}, s{sC+1}, {W_UP}
    s_mov_b32 s{sWt+2}, {640*3456}
    s_cmp_lt_u32 s{sW}, 4
    s_waitcnt lgkmcnt(0)
    s_cselect_b32 s{sWt}, s{sPtr+8}, s{sPtr+10}
    s_cselect_b32 s{sWt+1}, s{sPtr+9}, s{sPtr+11}
    s_branch {LJ}
    {LQ}:
    s_mov_b32 s{t[2]}, 1561
    s_mov_b32 s{t[3]}, 42
    s_mov_b32 s{t[4]}, 3840
    s_sub_u32 s{t[5]}, s{sCb}, 10
    s_mul_i32 s{t[5]}, s{t[5]}, 640
    s_mov_b32 s{t[6]}, s{sW}
    s_mov_b32 s{t[7]}, 8
    s_mov_b32 s{sC}, 40
    s_mov_b32 s{sC+1}, 0
    s_mov_b32 s{sWt+2}, {640*3840}
    s_waitcnt lgkmcnt(0)
    s_mov_b32 s{sWt}, s{sPtr+2}
    s_mov_b32 s{sWt+1}, s{sPtr+3}
    {LJ}:
    s_add_u32 s{sX}, s{sPtr}, s{t[1]}
    s_addc_u32 s{sX+1}, s{sPtr+1}, 0
    s_lshl_b32 s{sStr}, s{t[4]}, 5
    s_mov_b32 s{sSoX}, 0
    s_mov_b32 s{sSoW}, 0
    s_mov_b32 m0, s{sM0x}
    s_mov_b32 s{t[0]}, {64*1280}
    buffer_load_dwordx4 v{vDx}, s[{sX}:{sX+3}], 0 offen lds
    s_add_u32 m0, s{sM0x}, 8192
    v_mov_b32 v13, 0x7fff0000
    buffer_load_dwordx4 v{vDx}, s[{sX}:{sX+3}], s{t[0]} offen lds
    """)
    for i in range(3):
        k(f"""
        s_lshl_b32 s{t[0]}, s{t[6]}, 6
        v_add_u32 v5, s{t[0]}, v0
        v_mul_u32_u24 v6, s{t[2]}, v5
        v_lshrrev_b32 v6, 16, v6
        v_mul_u32_u24 v7, s{t[3]}, v6
        v_sub_u32 v7, v5, v7
        v_and_b32 v8, 0x13, v6
        v_and_b32 v9, 4, v6
        v_lshl_or_b32 v8, v9, 1, v8
        v_and_b32 v9, 8, v6
        v_lshrrev_b32 v9, 1, v9
        v_or_b32 v8, v8, v9
        v_mul_u32_u24 v8, s{t[4]}, v8
        v_cmp_gt_u32 vcc, s{sC}, v7
        v_lshl_add_u32 v8, v7, 4, v8
        v_add_u32 v8, s{t[5]}, v8
        v_cndmask_b32 v8, v13, v8, vcc
        v_cmp_gt_u32 vcc, 32, v6
        s_lshl_b32 s{t[0]}, s{t[6]}, 10
        s_add_u32 s{t[0]}, s{t[0]}, s{sC+1}
        v_cndmask_b32 v{vDw[i]}, v13, v8, vcc
        s_lshl_b32 s{t[1]}, s{t[6]}, 1
        s_cmp_lt_u32 s{t[1]}, s{t[3]}
        s_cselect_b32 s{sM0w[i]}, s{t[0]}, {163840 - W_BASE}
        s_add_u32 m0, s{sM0w[i]}, {W_BASE}
        s_add_u32 s{t[6]}, s{t[6]}, s{t[7]}
        buffer_load_dwordx4 v{vDw[i]}, s[{sWt}:{sWt+3}], 0 offen lds
        """)

vPf = 240
def pref_setup(k, s0):
    t = sT
    k(f"""
    s_cmp_ge_u32 s{sCb}, 10
    s_cselect_b32 s{t[0]}, 3, 2
    s_cselect_b32 s{t[1]}, 7, 3
    s_cselect_b32 s{t[2]}, 512, {sr(sC+2)}
    s_cselect_b32 s{t[3]}, 1, 2
    s_and_b32 s{t[6]}, s{sW}, s{t[1]}
    s_lshl_b32 s{t[6]}, s{t[6]}, s{t[3]}
    s_add_u32 s{t[6]}, s{t[6]}, {s0}
    s_lshl_b32 s{t[6]}, s{t[6]}, 3
    s_and_b32 s{t[7]}, s{sRb}, 7
    s_add_u32 s{t[6]}, s{t[6]}, s{t[7]}
    s_lshl_b32 s{t[6]}, s{t[6]}, 2
    v_lshrrev_b32 v5, s{t[0]}, v0
    v_and_b32 v6, 3, v5
    v_lshrrev_b32 v5, 2, v5
    v_lshl_add_u32 v5, v5, 5, v6
    v_add_u32 v5, s{t[6]}, v5
    v_mul_u32_u24 v5, s{t[4]}, v5
    v_and_b32 v6, s{t[1]}, v0
    v_lshlrev_b32 v6, 7, v6
    v_min_u32 v6, s{t[2]}, v6
    v_add3_u32 v{vPf}, v5, v6, s{t[5]}
    s_lshr_b32 s{t[0]}, s2, 6
    s_mul_i32 s{t[0]}, s{t[0]}, {32*1280}
    s_lshl_b32 s{t[1]}, s{sW}, 7
    s_add_u32 s{t[0]}, s{t[0]}, s{t[1]}
    s_add_u32 s{t[0]}, s{t[0]}, 256
    v_and_b32 v5, 31, v0
    v_mul_u32_u24 v5, 1280, v5
    v_and_b32 v6, 32, v0
    v_lshlrev_b32 v6, 1, v6
    v_add3_u32 v{vPf+1}, v5, v6, s{t[0]}
    """.replace(f"s_cmp_ge_u32 s{sCb}, 10", f"s_movk_i32 s{sC+2}, 348\ns_cmp_ge_u32 s{sCb}, 10", 1))
def pref_loads(ffn, ww, wx, mod=""):
    t = sT
    out = {}
    def sel(js, ffn):
        if len(js) == 4: return [], "0"
        m = sum(1 << w for w in range(8) if ((w & 3) if ffn else (w >> 1)) in js)
        return [f"s_movk_i32 s{t[0]}, {m}", f"s_bitcmp1_b32 s{t[0]}, s{sW}", f"s_cselect_b32 s{t[0]}, 0, 0x7f000000"], f"s{t[0]}"
    for when in sorted(set(wx) - {None}):
        pre, so = sel([j for j in range(4) if wx[j] == when], False)
        out.setdefault(when, []).append(pre + [f"buffer_load_dword v{vPf+3}, v{vPf+1}, s[{sX}:{sX+3}], {so} offen{mod}"])
    for when in sorted(set(ww) - {None}):
        pre, so = sel([j for j in range(4) if ww[j] == when], ffn)
        out.setdefault(when, []).append(pre + [f"buffer_load_dword v{vPf+2}, v{vPf}, s[{sWt}:{sWt+3}], {so} offen{mod}"])
    out.pop(None, None)
    return out

def dma_group(n, NW):
    out = []
    if n >= 20: return out
    out.append([f"s_add_u32 s{sSoW}, s{sSoW}, s{sStr}"])
    for i in range(3):
        out.append([f"s_add_u32 m0, s{sM0w[i]}, {W_BASE + (n % NW) * W_SLOT}", None, f"buffer_load_dwordx4 v{vDw[i]}, s[{sWt}:{sWt+3}], s{sSoW} offen lds"])
    if n % 2 == 0:
        c = n // 2
        for h in range(2):
            out.append([f"s_add_u32 m0, s{sM0x}, {(c % 3) * X_SLOT + h * 8192}", f"s_mov_b32 s{sSoX}, {h * 64 * 1280 + c * 128}",
                        f"buffer_load_dwordx4 v{vDx}, s[{sX}:{sX+3}], s{sSoX} offen lds"])
    return out
def ndma(n): return 0 if n >= 20 else (5 if n % 2 == 0 else 3)

def p1_addr(k, var):
    t = sT
    pitch = 352 if var[0] == 'F' else 672
    k(f"""
    v_and_b32 v13, 15, v0
    v_lshrrev_b32 v14, 4, v0
    v_lshrrev_b32 v15, 1, v13
    v_xor_b32 v15, v15, v14
    v_lshlrev_b32 v15, 4, v15
    v_lshl_add_u32 v15, v13, 7, v15
    s_lshl_b32 s{t[0]}, s{sTg}, 13
    """)
    if var == 'F20':
        k(f"""
        s_cmp_eq_u32 s{sMode}, 2
        s_cselect_b32 s{t[1]}, 4096, 0
        s_add_u32 s{t[0]}, s{t[0]}, s{t[1]}
        """)
    k(f"""
    v_add_u32 v{vXa[0][0]}, s{t[0]}, v15
    v_xor_b32 v{vXa[0][1]}, 4096, v{vXa[0][0]}
    v_xor_b32 v{vXa[1][0]}, 64, v{vXa[0][0]}
    v_xor_b32 v{vXa[1][1]}, 64, v{vXa[0][1]}
    v_lshrrev_b32 v13, 2, v0
    v_and_b32 v15, 7, v13
    v_and_b32 v13, 8, v13
    v_lshl_or_b32 v15, v13, 1, v15
    v_mul_u32_u24 v15, {pitch}, v15
    v_and_b32 v13, 3, v0
    v_mul_u32_u24 v13, {40 if var == 'QK' else 8}, v13
    """)
    if var[0] == 'F':
        k(f"""
        s_lshl_b32 s{t[0]}, s{t[2]}, 5
        s_add_u32 s{t[0]}, s{t[0]}, {W_BASE}
        s_lshl_b32 s{t[1]}, s{t[3]}, 5
        s_add_u32 s{t[1]}, s{t[1]}, {W_BASE}
        v_add3_u32 v{vWa[0]}, v13, v15, s{t[0]}
        v_add3_u32 v{vWb[0]}, v13, v15, s{t[1]}
        v_add_u32 v{vWa[1]}, {2*W_SLOT}, v{vWa[0]}
        v_add_u32 v{vWb[1]}, {2*W_SLOT}, v{vWb[0]}
        """)
    else:
        k(f"""
        s_mul_i32 s{t[0]}, s{sCg}, 160
        s_add_u32 s{t[0]}, s{t[0]}, {W_BASE}
        v_add3_u32 v{vWa[0]}, v13, v15, s{t[0]}
        v_add_u32 v{vWa[1]}, {2*W_SLOT}, v{vWa[0]}
        """)

def frag_reads(var, s, NW):
    fs = FR[s & 1]
    out = []
    for tt in range(4):
        out.append(f"ds_read_b128 v[{fs+4*tt}:{fs+4*tt+3}], v{vXa[s & 1][tt >> 1]} offset:{((s // 2) % 3) * X_SLOT + (tt & 1) * 2048}")
    slot = s % NW
    hb = 1 if slot >= 2 else 0
    so = (slot - 2 * hb) * W_SLOT
    w0 = fs + 16
    if var[0] == 'F':
        for sl in range(3):
            for up in range(2):
                r = w0 + 4 * (2 * sl + up)
                a = vWa[hb] if sl < 2 else vWb[hb]
                for j in range(2):
                    out.append(f"ds_read_b64_tr_b16 v[{r+2*j}:{r+2*j+1}], v{a} offset:{so + up * W_UP + (32 if sl == 1 else 0) + j * 8 * 352}")
    else:
        for tl in range(5):
            r = w0 + 4 * tl
            for j in range(2):
                out.append(f"ds_read_b64_tr_b16 v[{r+2*j}:{r+2*j+1}], v{vWa[hb]} offset:{so + tl * (8 if var == 'QK' else 32) + j * 8 * 672}")
    return out

def acc_reg(var, tt, c):
    return ACC + 4 * (tt * (6 if var[0] == 'F' else 5) + c)
def mfmas(var, s):
    fs = FR[s & 1]
    out = []
    nc = 6 if var[0] == 'F' else 5
    for tt in range(4):
        for c in range(nc):
            if var == 'F20' and tt >= 2 and c >= 4: continue
            d = acc_reg(var, tt, c)
            X, W = f"v[{fs+4*tt}:{fs+4*tt+3}]", f"v[{fs+16+4*c}:{fs+19+4*c}]"
            a, b = (X, W) if var == 'V' else (W, X)
            out.append(f"v_mfma_f32_16x16x32_bf16 v[{d}:{d+3}], {a}, {b}, " + ("0" if s == 0 else f"v[{d}:{d+3}]"))
    return out

def p1_loop(k, var, NW, prof=False, compute=True, hooks=None, pro=None, pbar=(0, 1), fine=True, paced=False, tail=None):
    hooks = hooks or {}
    vq = VQ([0] * 5)
    nxt = 2 if paced else NW
    for n in range(1, nxt):
        if n - 1 in pbar: k("s_barrier")
        for g in dma_group(n, NW): vq.add(k, g, n)
    p1_addr(k, var)
    if pro: pro(k, vq)
    k(f"s_waitcnt vmcnt({vq.wait(0)})")
    k("s_barrier")
    k(stamp(prof, 1))
    for x in frag_reads(var, 0, NW): k(x)
    if paced:
        for g in dma_group(2, NW): vq.add(k, g, 2)
        nxt = 3
    for s in range(20):
        k(f"s_waitcnt vmcnt({vq.wait(s + 1)}) lgkmcnt(0)")
        k("s_barrier")
        if prof == "rt" and fine and s % 2 == 1: k(stamp(prof, 2 + s // 2))
        m = mfmas(var, s) if compute else []
        r = frag_reads(var, s + 1, NW) if (s < 19 and compute) else []
        g = []
        for _ in range(2):
            if nxt <= s + NW and nxt < 20:
                y = dma_group(nxt, NW)
                g += [(nxt, y[0] + y[1])] + [(nxt, z) for z in y[2:]]
                nxt += 1
        g += [(tag, y) for (tag, y) in hooks.get(s, [])]
        seq = []
        ri = gi = 0
        slots = len(m) - (len(r) + 1) // 2
        every = 2 if slots >= 2 * len(g) else 1
        for i, x in enumerate(m):
            seq.append(x)
            if ri < len(r):
                seq += r[ri:ri + 2]; ri += 2
            elif gi < len(g) and (i % every == 0):
                seq += vq.note(g[gi][1], g[gi][0]); gi += 1
        for y in g[gi:]: seq += vq.note(y[1], y[0])
        if s == 19 and tail:
            seq, nc = [], len(m) // 4
            for i, x in enumerate(m):
                seq.append(x)
                tt, c = divmod(i, nc)
                if tt >= 2:
                    e = tail[tt - 2]
                    seq += e[c * len(e) // nc:(c + 1) * len(e) // nc]
                elif i == 0: seq += tail[4]
            seq += tail[2] + tail[3]
        for x in seq: k(x or "s_nop 0")
    k(stamp(prof, 12 if (prof == 'rt' and fine) else 2))
    return vq

def ffn_wave_params(k):
    t = sT
    L10, LJ = k.uniq("b10"), k.uniq("bj")
    k(f"""
    s_cmp_ge_u32 s{sCb}, 8
    s_cbranch_scc1 {L10}
    s_mul_i32 s{t[2]}, s{sCg}, 3
    s_add_u32 s{t[3]}, s{t[2]}, 2
    s_add_u32 s{t[0]}, s{sCb}, 40
    s_lshl_b32 s{t[0]}, s{t[0]}, 3
    s_add_u32 s{t[0]}, s{t[0]}, s{sCg}
    s_lshl_b32 s{t[4]}, s{sCg}, 1
    s_add_u32 s{t[4]}, s{t[4]}, 2
    s_lshr_b32 s{t[1]}, s{sCb}, 1
    s_add_u32 s{t[1]}, s{t[1]}, 50
    s_lshl_b32 s{t[1]}, s{t[1]}, 3
    s_and_b32 s{t[5]}, s{sCb}, 1
    s_add_u32 s{t[1]}, s{t[1]}, s{t[5]}
    s_sub_u32 s{sMode}, s{sCg}, 1
    s_cmp_lt_u32 s{sCg}, 2
    s_cselect_b32 s{t[2]}, s{t[2]}, s{t[4]}
    s_cselect_b32 s{t[3]}, s{t[3]}, 10
    s_cselect_b32 s{sSt2}, s{t[0]}, s{t[1]}
    s_cselect_b32 s{sMode}, 0, s{sMode}
    s_branch {LJ}
    {L10}:
    s_lshl_b32 s{t[2]}, s{sCg}, 1
    s_lshr_b32 s{t[0]}, s{sCg}, 1
    s_add_u32 s{t[3]}, s{t[0]}, 8
    s_add_u32 s{sSt2}, s{sCb}, 40
    s_lshl_b32 s{sSt2}, s{sSt2}, 3
    s_add_u32 s{sSt2}, s{sSt2}, s{t[0]}
    s_and_b32 s{sMode}, s{sCg}, 1
    s_add_u32 s{sMode}, s{sMode}, 1
    {LJ}:
    s_lshl_b32 s{sSt2}, s{sSt2}, 9
    """)

def gelu_math(k, var):
    c1 = -2.0 * 1.4426950408889634 * (2.0 / 3.141592653589793) ** 0.5
    k(f"""
    s_mov_b32 s{sC}, {f32hex(c1)}
    s_mov_b32 s{sC+1}, {f32hex(c1)}
    s_mov_b32 s{sC+2}, {f32hex(c1 * 0.044715)}
    s_mov_b32 s{sC+3}, {f32hex(c1 * 0.044715)}
    v_mov_b32 v10, s{sC}
    v_mov_b32 v11, s{sC}
    """)
    items = []
    for tt in range(4):
        for sl in range(2): items.append((tt, sl, HP + 4 * tt + 2 * sl))
    for tt in range(4 if var == 'F24' else 2): items.append((tt, 2, HP + 16 + 2 * tt))
    P = lambda r: f"v[{r}:{r+1}]"
    def stage(n, ph):
        tt, sl, dst = items[n]
        g, u = acc_reg(var, tt, 2 * sl), acc_reg(var, tt, 2 * sl + 1)
        z = 16 + 4 * (n % 4)
        if ph == 0:
            return [f"v_pk_mul_f32 {P(z+2*h)}, {P(g+2*h)}, {P(g+2*h)}" for h in range(2)] + \
                   [f"v_pk_fma_f32 {P(z+2*h)}, {P(z+2*h)}, s[{sC+2}:{sC+3}], v[10:11]" for h in range(2)] + \
                   [f"v_pk_mul_f32 {P(z+2*h)}, {P(z+2*h)}, {P(g+2*h)}" for h in range(2)]
        if ph == 1:
            return [f"v_exp_f32 v{z+i}, v{z+i}" for i in range(4)] + [f"v_pk_mul_f32 {P(u+2*h)}, {P(u+2*h)}, {P(g+2*h)}" for h in range(2)] + \
                   [f"v_pk_add_f32 {P(z+2*h)}, {P(z+2*h)}, 1.0 op_sel_hi:[1,0]" for h in range(2)]
        return [f"v_rcp_f32 v{z+i}, v{z+i}" for i in range(4)] + ["s_nop 0"] + [f"v_pk_mul_f32 {P(u+2*h)}, {P(u+2*h)}, {P(z+2*h)}" for h in range(2)] + \
               [f"v_cvt_pk_bf16_f32 v{dst+h}, v{u+2*h}, v{u+2*h+1}" for h in range(2)]
    out = []
    for n in range(len(items)):
        for ph in range(3): out += stage(n, ph)
    return out

def h_store_setup(k, var):
    t = sT
    k(f"""
    s_lshl_b32 s{t[0]}, s{sRb}, 1
    s_add_u32 s{t[0]}, s{t[0]}, s{sTg}
    s_mul_i32 s{t[0]}, s{t[0]}, {A2_BLK}
    s_add_u32 s{t[0]}, s{t[0]}, {WS_A2}
    s_add_u32 s{sO}, s{sWS}, s{t[0]}
    s_addc_u32 s{sO+1}, s{sWS+1}, 0
    s_mov_b32 s{sO+2}, {A2_BLK}
    s_lshl_b32 s{t[0]}, s{sCb}, 2
    s_add_u32 s{t[0]}, s{t[0]}, s{sCg}
    s_lshl_b32 s{t[0]}, s{t[0]}, 12
    s_cmp_eq_u32 s{sMode}, 2
    s_cselect_b32 s{t[1]}, 2048, 0
    s_add_u32 s{t[0]}, s{t[0]}, s{t[1]}
    s_add_u32 s{t[1]}, s{t[1]}, s{sSt2}
    v_lshlrev_b32 v13, 4, v0
    v_add_u32 v{HP+24}, s{t[0]}, v13
    v_xor_b32 v{HP+25}, 2048, v{HP+24}
    v_and_b32 v{HP+26}, 512, v13
    v_add3_u32 v{HP+26}, v{HP+26}, v13, s{t[1]}
    """)
def h_stores(var):
    out = []
    for pr in range(2 if var == 'F24' else 1):
        for h in range(2): out.append(f"v_permlane32_swap_b32 v{HP+16+4*pr+h}, v{HP+18+4*pr+h}")
    for tt in range(4):
        out.append(f"buffer_store_dwordx4 v[{HP+4*tt}:{HP+4*tt+3}], v{HP+24+(tt>>1)}, s[{sO}:{sO+3}], 0 offen offset:{(tt&1)*1024}{SC1}")
    for pr in range(2 if var == 'F24' else 1):
        out.append(f"buffer_store_dwordx4 v[{HP+16+4*pr}:{HP+19+4*pr}], v{HP+26}, s[{sO}:{sO+3}], 0 offen offset:{pr*2048}{SC1}")
    return out

def qk_epilogue(k):
    t = sT
    LK, LJ = k.uniq("isk"), k.uniq("qkj")
    k(f"""
    s_and_b32 s{t[3]}, s{sCb}, 1
    s_lshl_b32 s{t[3]}, s{t[3]}, 2
    s_add_u32 s{t[3]}, s{t[3]}, s{sCg}
    s_lshl_b32 s{t[3]}, s{t[3]}, 8
    s_lshl_b32 s{t[4]}, s{sRb}, 2
    s_add_u32 s{t[3]}, s{t[3]}, s{t[4]}
    s_lshl_b32 s{t[4]}, s{sTg}, 1
    s_add_u32 s{t[3]}, s{t[3]}, s{t[4]}
    v_and_b32 v13, 15, v0
    v_lshrrev_b32 v14, 4, v0
    s_cmp_ge_u32 s{sCb}, 12
    s_cbranch_scc1 {LK}
    s_mov_b32 s{t[0]}, {WS_Q}
    s_mov_b32 s{t[1]}, {Q_TILE}
    s_mov_b32 s{t[5]}, 16
    s_mov_b32 s{sC}, {f32hex(QSCALE)}
    s_mov_b32 s{sC+1}, {f32hex(QSCALE)}
    """)
    for r in range(0, 80, 2): k(f"v_pk_mul_f32 v[{ACC+r}:{ACC+r+1}], v[{ACC+r}:{ACC+r+1}], s[{sC}:{sC+1}]")
    k(f"""
    s_branch {LJ}
    {LK}:
    s_mov_b32 s{t[0]}, {WS_KV}
    s_mov_b32 s{t[1]}, {KV_TILE}
    s_mov_b32 s{t[5]}, 8
    v_and_b32 v15, 8, v13
    v_add_u32 v13, v13, v15
    {LJ}:
    s_mul_i32 s{t[3]}, s{t[3]}, s{t[1]}
    s_add_u32 s{t[0]}, s{t[0]}, s{t[3]}
    s_add_u32 s{sO}, s{sWS}, s{t[0]}
    s_addc_u32 s{sO+1}, s{sWS+1}, 0
    s_lshl_b32 s{t[2]}, s{t[1]}, 6
    s_lshl_b32 s{sO+2}, s{t[1]}, 8
    v_mul_u32_u24 v14, s{t[2]}, v14
    v_add_u32 v15, s{t[5]}, v13
    v_lshl_add_u32 v5, v13, 4, v14
    v_lshl_add_u32 v6, v15, 4, v14
    v_lshl_add_u32 v7, v13, 3, v14
    v_lshl_add_u32 v8, v15, 3, v14
    """)
    for tt in range(4):
        o = 16 + 12 * tt
        for c in range(5):
            a = acc_reg('QK', tt, c)
            for h in range(2): k(f"v_cvt_pk_bf16_f32 v{o+2*c+h}, v{a+2*h}, v{a+2*h+1}")
        so = "0" if tt < 2 else f"s{t[1]}"
        k(f"buffer_store_dwordx4 v[{o}:{o+3}], v{5+(tt&1)}, s[{sO}:{sO+3}], {so} offen{SC1}")
        k(f"buffer_store_dwordx4 v[{o+4}:{o+7}], v{5+(tt&1)}, s[{sO}:{sO+3}], {so} offen offset:512{SC1}")
        k(f"buffer_store_dwordx2 v[{o+8}:{o+9}], v{7+(tt&1)}, s[{sO}:{sO+3}], {so} offen offset:1024{SC1}")

def v_epilogue(k):
    t = sT
    k(f"""
    s_and_b32 s{t[3]}, s{sCb}, 1
    s_lshl_b32 s{t[3]}, s{t[3]}, 2
    s_add_u32 s{t[3]}, s{t[3]}, s{sCg}
    s_lshl_b32 s{t[3]}, s{t[3]}, 8
    s_lshl_b32 s{t[4]}, s{sRb}, 2
    s_add_u32 s{t[3]}, s{t[3]}, s{t[4]}
    s_lshl_b32 s{t[4]}, s{sTg}, 1
    s_add_u32 s{t[3]}, s{t[3]}, s{t[4]}
    s_mul_i32 s{t[3]}, s{t[3]}, {KV_TILE}
    s_add_u32 s{t[3]}, s{t[3]}, {WS_KV}
    s_add_u32 s{sO}, s{sWS}, s{t[3]}
    s_addc_u32 s{sO+1}, s{sWS+1}, 0
    s_mov_b32 s{sO+2}, {4*KV_HEAD}
    s_mov_b32 s{t[0]}, {KV_HEAD - 320}
    v_lshrrev_b32 v14, 4, v0
    v_mul_u32_u24 v14, 320, v14
    v_and_b32 v13, 15, v0
    """)
    for c in range(5):
        k(f"""
        v_add_u32 v15, {16*c}, v13
        v_mul_u32_u24 v{5+c}, 3277, v15
        v_lshrrev_b32 v{5+c}, 16, v{5+c}
        v_mul_u32_u24 v{5+c}, s{t[0]}, v{5+c}
        v_lshl_add_u32 v15, v15, 4, v14
        v_add_u32 v{5+c}, v{5+c}, v15
        """)
    n = 0
    for pr in range(2):
        for c in range(5):
            o = 16 + 4 * n; n += 1
            for b in range(2):
                a = acc_reg('V', 2 * pr + b, c)
                for h in range(2): k(f"v_cvt_pk_bf16_f32 v{o+2*b+h}, v{a+2*h}, v{a+2*h+1}")
            k(f"buffer_store_dwordx4 v[{o}:{o+3}], v{5+c}, s[{sO}:{sO+3}], 0 offen offset:{1280 + pr*KV_TILE}{SC1}")

def qk_tail():
    t = sT
    pre = f"""
    s_and_b32 s{t[3]}, s{sCb}, 1
    s_lshl_b32 s{t[3]}, s{t[3]}, 2
    s_add_u32 s{t[3]}, s{t[3]}, s{sCg}
    s_lshl_b32 s{t[3]}, s{t[3]}, 8
    s_lshl_b32 s{t[4]}, s{sRb}, 2
    s_add_u32 s{t[3]}, s{t[3]}, s{t[4]}
    s_lshl_b32 s{t[4]}, s{sTg}, 1
    s_add_u32 s{t[3]}, s{t[3]}, s{t[4]}
    v_and_b32 v13, 15, v0
    v_lshrrev_b32 v14, 4, v0
    s_mov_b32 s{t[0]}, {WS_Q}
    s_mov_b32 s{t[1]}, {Q_TILE}
    s_mov_b32 s{sC}, {f32hex(QSCALE)}
    s_cmp_ge_u32 s{sCb}, 12
    s_cselect_b32 s{t[0]}, {WS_KV}, s{t[0]}
    s_cselect_b32 s{t[1]}, {KV_TILE}, s{t[1]}
    s_cselect_b32 s{t[5]}, 8, 16
    s_cselect_b32 s{t[6]}, 8, 0
    s_cselect_b32 s{sC}, 1.0, s{sC}
    s_mov_b32 s{sC+1}, s{sC}
    v_and_b32 v15, s{t[6]}, v13
    v_add_u32 v13, v13, v15
    s_mul_i32 s{t[3]}, s{t[3]}, s{t[1]}
    s_add_u32 s{t[0]}, s{t[0]}, s{t[3]}
    s_add_u32 s{sO}, s{sWS}, s{t[0]}
    s_addc_u32 s{sO+1}, s{sWS+1}, 0
    s_lshl_b32 s{t[2]}, s{t[1]}, 6
    s_lshl_b32 s{sO+2}, s{t[1]}, 8
    v_mul_u32_u24 v14, s{t[2]}, v14
    v_add_u32 v15, s{t[5]}, v13
    v_lshl_add_u32 v5, v13, 4, v14
    v_lshl_add_u32 v6, v15, 4, v14
    v_lshl_add_u32 v7, v13, 3, v14
    v_lshl_add_u32 v8, v15, 3, v14
    """
    out = []
    for tt in range(4):
        o = 16 + 12 * tt
        e = []
        for c in range(5):
            a = acc_reg('QK', tt, c)
            e += [f"v_pk_mul_f32 v[{a+2*h}:{a+2*h+1}], v[{a+2*h}:{a+2*h+1}], s[{sC}:{sC+1}]" for h in range(2)]
            e += [f"v_cvt_pk_bf16_f32 v{o+2*c+h}, v{a+2*h}, v{a+2*h+1}" for h in range(2)]
            so = "0" if tt < 2 else f"s{t[1]}"
            if c == 1: e.append(f"buffer_store_dwordx4 v[{o}:{o+3}], v{5+(tt&1)}, s[{sO}:{sO+3}], {so} offen{SC1}")
            if c == 3: e.append(f"buffer_store_dwordx4 v[{o+4}:{o+7}], v{5+(tt&1)}, s[{sO}:{sO+3}], {so} offen offset:512{SC1}")
            if c == 4: e.append(f"buffer_store_dwordx2 v[{o+8}:{o+9}], v{7+(tt&1)}, s[{sO}:{sO+3}], {so} offen offset:1024{SC1}")
        out.append(e)
    return out + [[x.strip() for x in pre.strip().split("\n")]]

def v_tail():
    t = sT
    pre = f"""
    s_and_b32 s{t[3]}, s{sCb}, 1
    s_lshl_b32 s{t[3]}, s{t[3]}, 2
    s_add_u32 s{t[3]}, s{t[3]}, s{sCg}
    s_lshl_b32 s{t[3]}, s{t[3]}, 8
    s_lshl_b32 s{t[4]}, s{sRb}, 2
    s_add_u32 s{t[3]}, s{t[3]}, s{t[4]}
    s_lshl_b32 s{t[4]}, s{sTg}, 1
    s_add_u32 s{t[3]}, s{t[3]}, s{t[4]}
    s_mul_i32 s{t[3]}, s{t[3]}, {KV_TILE}
    s_add_u32 s{t[3]}, s{t[3]}, {WS_KV}
    s_add_u32 s{sO}, s{sWS}, s{t[3]}
    s_addc_u32 s{sO+1}, s{sWS+1}, 0
    s_mov_b32 s{sO+2}, {4*KV_HEAD}
    s_mov_b32 s{t[0]}, {KV_HEAD - 320}
    v_lshrrev_b32 v14, 4, v0
    v_mul_u32_u24 v14, 320, v14
    v_and_b32 v13, 15, v0
    """
    for c in range(5):
        pre += f"""v_add_u32 v15, {16*c}, v13
        v_mul_u32_u24 v{5+c}, 3277, v15
        v_lshrrev_b32 v{5+c}, 16, v{5+c}
        v_mul_u32_u24 v{5+c}, s{t[0]}, v{5+c}
        v_lshl_add_u32 v15, v15, 4, v14
        v_add_u32 v{5+c}, v{5+c}, v15
        """
    out = []
    for tt in range(4):
        pr, b = divmod(tt, 2)
        e = []
        for c in range(5):
            o = 16 + 4 * (5 * pr + c)
            a = acc_reg('V', tt, c)
            e += [f"v_cvt_pk_bf16_f32 v{o+2*b+h}, v{a+2*h}, v{a+2*h+1}" for h in range(2)]
            if b: e.append(f"buffer_store_dwordx4 v[{o}:{o+3}], v{5+c}, s[{sO}:{sO+3}], 0 offen offset:{1280 + pr*KV_TILE}{SC1}")
        out.append(e)
    return out + [[x.strip() for x in pre.strip().split("\n")]]

def side_jobs(k):
    t = sT
    LN, LG = k.uniq("nojob"), k.uniq("nogate")
    sJ, sA, sB1, sB2_, sCj = t[0], t[1], t[2], t[3], t[4]
    sSt, sCq = sFb0, sMode
    L = [k.uniq(f"ty{i}") for i in range(5)]
    k(f"""
    s_sub_u32 s{sJ}, s{sCb}, 10
    s_lshl_b32 s{sJ}, s{sJ}, 4
    s_add_u32 s{sJ}, s{sJ}, s{sRb}
    s_lshl_b32 s{sJ}, s{sJ}, 3
    s_add_u32 s{sJ}, s{sJ}, s{sW}
    s_cmp_ge_u32 s{sJ}, 740
    s_cbranch_scc1 {LN}
    s_mul_i32 s{sSt}, s{sJ}, 6554
    s_lshr_b32 s{sSt}, s{sSt}, 16
    s_mul_i32 s{sCq}, s{sSt}, 10
    s_sub_u32 s{sCq}, s{sJ}, s{sCq}
    s_mov_b32 s{sB1}, 4
    s_mov_b32 s{sCj}, 8
    s_cmp_ge_u32 s{sSt}, 70
    s_cbranch_scc1 {L[4]}
    s_cmp_ge_u32 s{sSt}, 54
    s_cbranch_scc1 {L[3]}
    s_cmp_ge_u32 s{sSt}, 50
    s_cbranch_scc1 {L[2]}
    s_cmp_ge_u32 s{sSt}, 40
    s_cbranch_scc1 {L[1]}
    s_lshr_b32 s{t[5]}, s{sSt}, 2
    s_and_b32 s{t[6]}, s{sSt}, 3
    s_mul_i32 s{sA}, s{t[5]}, 11
    s_cmp_eq_u32 s{t[5]}, 9
    s_cselect_b32 s{sA}, 98, s{sA}
    s_lshl_b32 s{t[7]}, s{t[6]}, 1
    s_add_u32 s{sA}, s{sA}, s{t[7]}
    s_min_u32 s{t[6]}, s{t[6]}, 2
    s_cmp_lt_u32 s{t[5]}, 8
    s_cselect_b32 s{t[6]}, s{t[6]}, 0
    s_add_u32 s{sA}, s{sA}, s{t[6]}
    s_lshl_b32 s{sA}, s{sA}, 4
    s_mov_b32 s{sB2_}, 8
    s_mov_b32 s{sCj}, 16
    s_branch {L[0]}
    {L[1]}:
    s_sub_u32 s{t[5]}, s{sSt}, 40
    s_mul_i32 s{sA}, s{t[5]}, 11
    s_cmp_eq_u32 s{t[5]}, 9
    s_cselect_b32 s{sA}, 98, s{sA}
    s_cmp_lt_u32 s{t[5]}, 8
    s_cselect_b32 s{t[6]}, 2, 8
    s_cselect_b32 s{sB2_}, 48, 16
    s_add_u32 s{sA}, s{sA}, s{t[6]}
    s_lshl_b32 s{sA}, s{sA}, 4
    s_branch {L[0]}
    {L[2]}:
    s_sub_u32 s{t[5]}, s{sSt}, 50
    s_mul_i32 s{sA}, s{t[5]}, {22*16}
    s_add_u32 s{sA}, s{sA}, 160
    s_mov_b32 s{sB2_}, {11*16}
    s_branch {L[0]}
    {L[3]}:
    s_sub_u32 s{t[5]}, s{sSt}, 54
    s_mul_i32 s{sA}, s{t[5]}, 40
    s_mov_b32 s{sB2_}, 20
    s_branch {L[0]}
    {L[4]}:
    s_sub_u32 s{t[5]}, s{sSt}, 70
    s_mul_i32 s{sA}, s{t[5]}, 160
    s_add_u32 s{sA}, s{sA}, 16
    s_mov_b32 s{sB1}, 40
    s_mov_b32 s{sB2_}, 80
    s_mov_b32 s{sCj}, 20
    {L[0]}:
    s_mov_b32 s{t[5]}, {1728*1280}
    s_cmp_ge_u32 s{sSt}, 54
    s_cselect_b32 s{sWt}, s{sPtr+4}, s{sPtr+12}
    s_cselect_b32 s{sWt+1}, s{sPtr+5}, s{sPtr+13}
    s_cselect_b32 s{sWt+2}, {640*1280}, s{t[5]}
    v_lshrrev_b32 v5, 5, v0
    v_mul_u32_u24 v5, s{sCj}, v5
    v_lshrrev_b32 v6, 3, v0
    v_and_b32 v6, 3, v6
    v_add_u32 v5, v5, v6
    v_mul_u32_u24 v5, 1280, v5
    v_and_b32 v6, 7, v0
    v_lshl_add_u32 v5, v6, 4, v5
    s_lshl_b32 s{t[5]}, s{sCq}, 7
    v_add_u32 v5, s{t[5]}, v5
    s_mul_i32 s{sA}, s{sA}, 1280
    s_mul_i32 s{sB1}, s{sB1}, 1280
    s_mul_i32 s{sB2_}, s{sB2_}, 1280
    s_lshl_b32 s{t[5]}, s{sW}, 12
    s_mov_b32 m0, s{t[5]}
    s_add_u32 s{t[6]}, s{sA}, s{sB1}
    buffer_load_dwordx4 v5, s[{sWt}:{sWt+3}], s{sA} offen lds
    s_add_u32 m0, m0, 1024
    s_add_u32 s{sA}, s{sA}, s{sB2_}
    buffer_load_dwordx4 v5, s[{sWt}:{sWt+3}], s{t[6]} offen lds
    s_add_u32 m0, m0, 1024
    s_add_u32 s{t[6]}, s{t[6]}, s{sB2_}
    buffer_load_dwordx4 v5, s[{sWt}:{sWt+3}], s{sA} offen lds
    s_add_u32 m0, m0, 1024
    s_mov_b32 s{sO+2}, {8*B2_BLK}
    buffer_load_dwordx4 v5, s[{sWt}:{sWt+3}], s{t[6]} offen lds
    s_add_u32 s{sO}, s{sWS}, {WS_B2}
    s_addc_u32 s{sO+1}, s{sWS+1}, 0
    v_lshrrev_b32 v6, 4, v0
    v_lshlrev_b32 v6, 10, v6
    v_lshrrev_b32 v7, 2, v0
    v_and_b32 v7, 3, v7
    v_lshl_add_u32 v6, v7, 7, v6
    v_and_b32 v7, 3, v0
    v_lshl_add_u32 v6, v7, 3, v6
    v_add_u32 v6, s{t[5]}, v6
    v_lshlrev_b32 v7, 4, v0
    s_lshl_b32 s{sCq}, s{sCq}, 2
    s_mul_i32 s{sSt}, s{sSt}, 5120
    s_waitcnt vmcnt(0)
    """)
    for i in range(4):
        for j in range(2): k(f"ds_read_b64_tr_b16 v[{16+4*i+2*j}:{17+4*i+2*j}], v6 offset:{32*i + 512*j}")
    for i in range(4):
        k(f"""
        s_mul_i32 s{t[5]}, s{sCq}, 13108
        s_lshr_b32 s{t[5]}, s{t[5]}, 16
        s_mul_i32 s{t[5]}, s{t[5]}, {B2_BLK - 5120}
        s_lshl_b32 s{t[6]}, s{sCq}, 10
        s_add_u32 s{t[5]}, s{t[5]}, s{t[6]}
        s_add_u32 s{t[5]}, s{t[5]}, s{sSt}
        s_add_u32 s{sCq}, s{sCq}, 1
        s_waitcnt lgkmcnt({6-2*i})
        buffer_store_dwordx4 v[{16+4*i}:{19+4*i}], v7, s[{sO}:{sO+3}], s{t[5]} offen{SC1}
        """)
    k.label(LN)
    k(f"""
    s_cmp_lt_u32 s{sCb}, 12
    s_cbranch_scc1 {LG}
    s_sub_u32 s{t[0]}, s{sCb}, 12
    s_lshl_b32 s{t[0]}, s{t[0]}, 3
    s_add_u32 s{t[0]}, s{t[0]}, s{sW}
    s_lshl_b32 s{t[0]}, s{t[0]}, 2
    v_lshrrev_b32 v5, 4, v0
    v_add_u32 v5, s{t[0]}, v5
    v_and_b32 v6, 15, v0
    v_lshlrev_b32 v6, 4, v6
    v_mul_u32_u24 v8, 1280, v5
    v_add_u32 v8, v8, v6
    s_mov_b32 s{sWt}, s{sPtr+14}
    s_mov_b32 s{sWt+1}, s{sPtr+15}
    s_mov_b32 s{sWt+2}, 1280
    """)
    for i in range(5):
        k(f"buffer_load_dwordx4 v[{32+4*i}:{35+4*i}], v8, s[{sX}:{sX+3}], 0 offen offset:{256*i}")
        k(f"buffer_load_dwordx4 v[{52+4*i}:{55+4*i}], v6, s[{sWt}:{sWt+3}], 0 offen offset:{256*i}")
    k(f"""
    s_lshl_b32 s{t[1]}, s{sRb}, 9
    s_add_u32 s{t[1]}, s{t[1]}, {WS_G}
    s_add_u32 s{sO}, s{sWS}, s{t[1]}
    s_addc_u32 s{sO+1}, s{sWS+1}, 0
    s_mov_b32 s{sO+2}, 512
    v_lshlrev_b32 v5, 2, v5
    v_lshlrev_b32 v6, 16, v6
    v_add_u32 v5, v5, v6
    v_mov_b32 v9, 0
    v_mov_b32 v10, 0
    s_waitcnt vmcnt(0)
    """)
    for r in range(20): k(f"v_dot2_f32_bf16 v{9+(r&1)}, v{32+r}, v{52+r}, v{9+(r&1)}")
    k("s_nop 3\nv_add_f32 v9, v9, v10")
    for sh in (8, 4, 2, 1): k(f"s_nop 1\nv_add_f32_dpp v9, v9, v9 row_ror:{sh} row_mask:0xf bank_mask:0xf")
    k(f"""
    v_mul_f32 v9, {f32hex(-1.4426950408889634)}, v9
    v_exp_f32 v9, v9
    s_nop 0
    v_add_f32 v9, 1.0, v9
    v_rcp_f32 v9, v9
    s_nop 0
    buffer_store_dword v9, v5, s[{sO}:{sO+3}], 0 offen{SC1}
    """)
    k.label(LG)

SG = 176
vSd, vSx, vSw, vSg = 216, 217, 218, 219
sJa, sJb, sJc = 56, 57, 58
def side_params(k):
    t = sT
    sJ, sA, sB1, sB2_, sCj = t[0], t[1], t[2], t[3], t[4]
    sSt, sCq = sFb0, sMode
    L = [k.uniq(f"ty{i}") for i in range(5)]
    k(f"""
    s_sub_u32 s{sJ}, s{sCb}, 10
    s_lshl_b32 s{sJ}, s{sJ}, 4
    s_add_u32 s{sJ}, s{sJ}, s{sRb}
    s_lshl_b32 s{sJ}, s{sJ}, 3
    s_add_u32 s{sJ}, s{sJ}, s{sW}
    s_min_u32 s{sJ}, s{sJ}, 740
    s_mul_i32 s{sSt}, s{sJ}, 6554
    s_lshr_b32 s{sSt}, s{sSt}, 16
    s_mul_i32 s{sCq}, s{sSt}, 10
    s_sub_u32 s{sCq}, s{sJ}, s{sCq}
    s_mov_b32 s{sB1}, 4
    s_mov_b32 s{sCj}, 8
    s_cmp_ge_u32 s{sSt}, 70
    s_cbranch_scc1 {L[4]}
    s_cmp_ge_u32 s{sSt}, 54
    s_cbranch_scc1 {L[3]}
    s_cmp_ge_u32 s{sSt}, 50
    s_cbranch_scc1 {L[2]}
    s_cmp_ge_u32 s{sSt}, 40
    s_cbranch_scc1 {L[1]}
    s_lshr_b32 s{t[5]}, s{sSt}, 2
    s_and_b32 s{t[6]}, s{sSt}, 3
    s_mul_i32 s{sA}, s{t[5]}, 11
    s_cmp_eq_u32 s{t[5]}, 9
    s_cselect_b32 s{sA}, 98, s{sA}
    s_lshl_b32 s{t[7]}, s{t[6]}, 1
    s_add_u32 s{sA}, s{sA}, s{t[7]}
    s_min_u32 s{t[6]}, s{t[6]}, 2
    s_cmp_lt_u32 s{t[5]}, 8
    s_cselect_b32 s{t[6]}, s{t[6]}, 0
    s_add_u32 s{sA}, s{sA}, s{t[6]}
    s_lshl_b32 s{sA}, s{sA}, 4
    s_mov_b32 s{sB2_}, 8
    s_mov_b32 s{sCj}, 16
    s_branch {L[0]}
    {L[1]}:
    s_sub_u32 s{t[5]}, s{sSt}, 40
    s_mul_i32 s{sA}, s{t[5]}, 11
    s_cmp_eq_u32 s{t[5]}, 9
    s_cselect_b32 s{sA}, 98, s{sA}
    s_cmp_lt_u32 s{t[5]}, 8
    s_cselect_b32 s{t[6]}, 2, 8
    s_cselect_b32 s{sB2_}, 48, 16
    s_add_u32 s{sA}, s{sA}, s{t[6]}
    s_lshl_b32 s{sA}, s{sA}, 4
    s_branch {L[0]}
    {L[2]}:
    s_sub_u32 s{t[5]}, s{sSt}, 50
    s_mul_i32 s{sA}, s{t[5]}, {22*16}
    s_add_u32 s{sA}, s{sA}, 160
    s_mov_b32 s{sB2_}, {11*16}
    s_branch {L[0]}
    {L[3]}:
    s_sub_u32 s{t[5]}, s{sSt}, 54
    s_mul_i32 s{sA}, s{t[5]}, 40
    s_mov_b32 s{sB2_}, 20
    s_branch {L[0]}
    {L[4]}:
    s_sub_u32 s{t[5]}, s{sSt}, 70
    s_mul_i32 s{sA}, s{t[5]}, 160
    s_add_u32 s{sA}, s{sA}, 16
    s_mov_b32 s{sB1}, 40
    s_mov_b32 s{sB2_}, 80
    s_mov_b32 s{sCj}, 20
    {L[0]}:
    v_lshrrev_b32 v13, 5, v0
    v_mul_u32_u24 v13, s{sCj}, v13
    v_lshrrev_b32 v14, 3, v0
    v_and_b32 v14, 3, v14
    v_add_u32 v13, v13, v14
    v_mul_u32_u24 v13, 1280, v13
    v_and_b32 v14, 7, v0
    v_lshl_add_u32 v13, v14, 4, v13
    s_lshl_b32 s{t[5]}, s{sCq}, 7
    v_add_u32 v{vSd}, s{t[5]}, v13
    s_mul_i32 s{sJa}, s{sA}, 1280
    s_mul_i32 s{sJb}, s{sB1}, 1280
    s_mul_i32 s{sJc}, s{sB2_}, 1280
    s_cmp_ge_u32 s{sSt}, {NSTEP}
    s_cselect_b32 s{sJa}, 0x7f000000, s{sJa}
    s_sub_u32 s{t[0]}, s{sCb}, 12
    s_lshl_b32 s{t[0]}, s{t[0]}, 3
    s_add_u32 s{t[0]}, s{t[0]}, s{sW}
    s_lshl_b32 s{t[0]}, s{t[0]}, 2
    s_cmp_lt_u32 s{sCb}, 12
    s_cselect_b32 s{t[0]}, 4096, s{t[0]}
    v_lshrrev_b32 v13, 4, v0
    v_add_u32 v13, s{t[0]}, v13
    v_and_b32 v14, 15, v0
    v_lshlrev_b32 v{vSw}, 4, v14
    v_mul_u32_u24 v{vSx}, 1280, v13
    v_add_u32 v{vSx}, v{vSx}, v{vSw}
    v_lshlrev_b32 v13, 2, v13
    v_lshl_add_u32 v{vSg}, v{vSw}, 16, v13
    """)
def side_loads():
    t = sT
    sSt = sFb0
    g = [[f"s_mov_b32 s{t[5]}, {1728*1280}", f"s_cmp_ge_u32 s{sSt}, 54",
          f"s_cselect_b32 s{sWt}, s{sPtr+4}, s{sPtr+12}", f"s_cselect_b32 s{sWt+1}, s{sPtr+5}, s{sPtr+13}", f"s_cselect_b32 s{sWt+2}, {640*1280}, s{t[5]}",
          f"s_lshl_b32 s{t[5]}, s{sW}, 12", f"s_add_u32 m0, s{t[5]}, {W_BASE}", f"s_add_u32 s{t[6]}, s{sJa}, s{sJb}",
          f"buffer_load_dwordx4 v{vSd}, s[{sWt}:{sWt+3}], s{sJa} offen lds"],
         ["s_add_u32 m0, m0, 1024", f"s_add_u32 s{sJa}, s{sJa}, s{sJc}", f"buffer_load_dwordx4 v{vSd}, s[{sWt}:{sWt+3}], s{t[6]} offen lds"],
         ["s_add_u32 m0, m0, 1024", f"s_add_u32 s{t[6]}, s{t[6]}, s{sJc}", f"buffer_load_dwordx4 v{vSd}, s[{sWt}:{sWt+3}], s{sJa} offen lds"],
         ["s_add_u32 m0, m0, 1024", None, f"buffer_load_dwordx4 v{vSd}, s[{sWt}:{sWt+3}], s{t[6]} offen lds"]]
    h = []
    for i in range(5):
        h.append([f"buffer_load_dwordx4 v[{SG+4*i}:{SG+3+4*i}], v{vSx}, s[{sX}:{sX+3}], 0 offen offset:{256*i}"])
        h.append([f"global_load_dwordx4 v[{SG+20+4*i}:{SG+23+4*i}], v{vSw}, s[{sPtr+14}:{sPtr+15}] offset:{256*i}"])
    return g, h
def side_compute(k):
    t = sT
    k(f"""
    s_lshl_b32 s{t[5]}, s{sW}, 12
    s_add_u32 s{t[5]}, s{t[5]}, {W_BASE}
    v_lshrrev_b32 v6, 4, v0
    v_lshlrev_b32 v6, 10, v6
    v_lshrrev_b32 v7, 2, v0
    v_and_b32 v7, 3, v7
    v_lshl_add_u32 v6, v7, 7, v6
    v_and_b32 v7, 3, v0
    v_lshl_add_u32 v6, v7, 3, v6
    v_add_u32 v6, s{t[5]}, v6
    v_lshlrev_b32 v7, 4, v0
    v_mov_b32 v9, 0
    v_mov_b32 v10, 0
    """)
    for i in range(4):
        for j in range(2): k(f"ds_read_b64_tr_b16 v[{16+4*i+2*j}:{17+4*i+2*j}], v6 offset:{32*i + 512*j}")
    for r in range(20): k(f"v_dot2_f32_bf16 v{9+(r&1)}, v{SG+r}, v{SG+20+r}, v{9+(r&1)}")
    k("s_nop 3\nv_add_f32 v9, v9, v10")
    for sh in (8, 4, 2, 1): k(f"s_nop 1\nv_add_f32_dpp v9, v9, v9 row_ror:{sh} row_mask:0xf bank_mask:0xf")
    k(f"""
    v_mul_f32 v9, {f32hex(-1.4426950408889634)}, v9
    v_exp_f32 v9, v9
    s_nop 0
    v_add_f32 v9, 1.0, v9
    v_rcp_f32 v9, v9
    s_waitcnt lgkmcnt(0)
    """)
def side_stores(k):
    t = sT
    sSt, sCq = sFb0, sMode
    LN = k.uniq("nojob")
    k(f"""
    s_lshl_b32 s{t[1]}, s{sRb}, 9
    s_add_u32 s{t[1]}, s{t[1]}, {WS_G}
    s_add_u32 s{sO}, s{sWS}, s{t[1]}
    s_addc_u32 s{sO+1}, s{sWS+1}, 0
    s_mov_b32 s{sO+2}, 512
    s_cmp_ge_u32 s{sSt}, {NSTEP}
    buffer_store_dword v9, v{vSg}, s[{sO}:{sO+3}], 0 offen{SC1}
    s_cbranch_scc1 {LN}
    s_mov_b32 s{sO+2}, {8*B2_BLK}
    s_add_u32 s{sO}, s{sWS}, {WS_B2}
    s_addc_u32 s{sO+1}, s{sWS+1}, 0
    s_lshl_b32 s{sCq}, s{sCq}, 2
    s_mul_i32 s{sSt}, s{sSt}, 5120
    """)
    for i in range(4):
        k(f"""
        s_mul_i32 s{t[5]}, s{sCq}, 13108
        s_lshr_b32 s{t[5]}, s{t[5]}, 16
        s_mul_i32 s{t[5]}, s{t[5]}, {B2_BLK - 5120}
        s_lshl_b32 s{t[6]}, s{sCq}, 10
        s_add_u32 s{t[5]}, s{t[5]}, s{t[6]}
        s_add_u32 s{t[5]}, s{t[5]}, s{sSt}
        s_add_u32 s{sCq}, s{sCq}, 1
        buffer_store_dwordx4 v[{16+4*i}:{19+4*i}], v7, s[{sO}:{sO+3}], s{t[5]} offen{SC1}
        """)
    k.label(LN)

def gen_k1(name="p1_kernel", NW=5, prof=False, compute=True, area=0):
    k = Kern(name, block=512, grid=256, lds=163840, vgpr=256)
    END = name + "_end"
    k(f"s_cmp_ge_u32 s2, 256\ns_cbranch_scc1 {END}")
    p1_setup(k, prof)
    LQ, LV, L20, LD = name + "_qkv", name + "_v", name + "_f20", name + "_done"
    k(f"s_cmp_ge_u32 s{sCb}, 10\ns_cbranch_scc1 {LQ}")
    ffn_wave_params(k)
    k(f"s_cmp_lg_u32 s{sMode}, 0\ns_cbranch_scc1 {L20}")
    for var in ('F24', 'F20'):
        if var == 'F20': k.label(L20)
        p1_loop(k, var, NW, prof, compute)
        h_store_setup(k, var)
        for x in gelu_math(k, var): k(x)
        k(stamp(prof, 13 if prof == 'rt' else 3))
        k("s_nop 1")
        for x in h_stores(var): k(x)
        k(f"s_branch {LD}")
    k.label(LQ)
    k(f"s_cmp_ge_u32 s{sCb}, 14\ns_cbranch_scc1 {LV}")
    LS = name + "_side"
    p1_loop(k, 'QK', NW, prof, compute)
    k("s_nop 7")
    qk_epilogue(k)
    k(f"s_branch {LS}")
    k.label(LV)
    p1_loop(k, 'V', NW, prof, compute)
    k("s_nop 7")
    v_epilogue(k)
    k.label(LS)
    k(stamp(prof, 13 if prof == 'rt' else 3))
    side_jobs(k)
    k.label(LD)
    if prof: prof_out(k, 14 if prof == 'rt' else 4, sWS, sW, mode=prof, area=area)
    k.label(END)
    k("s_endpgm")
    return k

if __name__ == "__main__":
    k = gen_k1()
    for wg in range(0, 256, 9):
        for w in (0, 3, 5, 7):
            for e in check(k, init=dict(wg=wg, wave=w), verbose=(wg < 30 and w == 5)): print(e)
```

```python
import re

class Kern:
    def __init__(self, name, block, grid, lds, vgpr, sgpr=96, accum=None):
        self.name, self.block, self.grid, self.lds = name, block, grid, lds
        self.vgpr, self.sgpr = vgpr, sgpr
        self.accum = accum if accum is not None else ((vgpr + 3) // 4) * 4
        self.lines = []
        self._n = 0
    def __call__(self, s=""):
        for l in s.split("\n"):
            l = l.strip()
            if l:
                self.lines.append(l)
    def label(self, l):
        self.lines.append(l + ":")
    def uniq(self, base):
        self._n += 1
        return f"L_{self.name}_{base}_{self._n}"
    def text(self):
        out = [f".globl {self.name}", ".p2align 8", f".type {self.name},@function", f"{self.name}:"]
        for l in self.lines:
            out.append(l if (l.endswith(":") or l.startswith(".")) else "    " + l)
        return "\n".join(out) + "\n"
    def desc(self):
        return f""".p2align 6
.amdhsa_kernel {self.name}
  .amdhsa_next_free_vgpr {self.vgpr}
  .amdhsa_next_free_sgpr {self.sgpr}
  .amdhsa_accum_offset {self.accum}
  .amdhsa_group_segment_fixed_size 0
  .amdhsa_kernarg_size 88
  .amdhsa_user_sgpr_count 2
  .amdhsa_user_sgpr_kernarg_segment_ptr 1
  .amdhsa_system_sgpr_workgroup_id_x 1
.end_amdhsa_kernel
"""

def vr(a, n=1):
    return f"v{a}" if n == 1 else f"v[{a}:{a+n-1}]"
def sr(a, n=1):
    return f"s{a}" if n == 1 else f"s[{a}:{a+n-1}]"

def assemble_file(header, kerns, launches):
    s = header
    for (k, grid) in launches:
        s += f"; @launch kernel={k.name} grid=({grid},1,1) block=({k.block},1,1) lds={k.lds}\n"
    s += '.amdgcn_target "amdgcn-amd-amdhsa--gfx950"\n.text\n'
    for k in kerns:
        s += k.text()
    s += '.section .rodata,"a"\n'
    for k in kerns:
        s += k.desc()
    return s

class VQ:
    def __init__(self, q=()): self.q = list(q); self.total = 0
    def note(self, ins, tag):
        for x in ins:
            if x and x.startswith(("buffer_", "global_")): self.q.append(tag); self.total += 1
        return ins
    def add(self, k, ins, tag):
        for x in self.note(ins, tag): k(x or "s_nop 0")
    def wait(self, *tags):
        i = max((j for j, t in enumerate(self.q) if t in tags), default=-1)
        if i < 0: return 63
        n = len(self.q) - 1 - i
        self.q = self.q[i + 1:]
        return n

PROF_S = 64
WS_PROF = 0x8000000
def stamp(on, i):
    if not on: return ""
    if on == "ct": return f"s_memtime s[{PROF_S+2*i}:{PROF_S+2*i+1}]"
    if on == "rt": return f"s_memrealtime s[{PROF_S+2*i}:{PROF_S+2*i+1}]"
    return f"s_memtime s[{PROF_S+2*i}:{PROF_S+2*i+1}]\ns_memrealtime s[{PROF_S+16+2*i}:{PROF_S+17+2*i}]"
def prof_out(k, i, sWS, sW, v=100, mode=True, area=0):
    k("s_waitcnt vmcnt(0)")
    k(stamp(mode, i))
    k(f"""s_lshl_b32 s40, s2, 4
    s_add_u32 s40, s40, s{sW}
    s_lshl_b32 s40, s40, 6
    s_add_u32 s40, s40, {WS_PROF + area * 0x100000}
    s_add_u32 s44, s{sWS}, s40
    s_addc_u32 s45, s{sWS+1}, 0
    s_mov_b32 s46, 64
    s_mov_b32 s47, 0x00020000
    s_mov_b64 exec, 1
    v_mov_b32 v{v}, 0
    s_waitcnt lgkmcnt(0)""")
    for j in range(16):
        k(f"v_mov_b32 v{v+1}, s{PROF_S+2*j}")
        k(f"buffer_store_dword v{v+1}, v{v}, s[44:47], 0 offen offset:{4*j}")
    k("s_waitcnt vmcnt(0)")

def prof_dbg(k, i, sDBG, v=100, op="umax", cond=None):
    k("s_waitcnt vmcnt(0)")
    k(stamp("rt", i))
    k("s_waitcnt lgkmcnt(0)")
    L = k.uniq("nodbg")
    if cond: k(cond + f" {L}")
    if op == "add":
        for j in range(1, 15): k(f"s_sub_u32 s{PROF_S+2*j}, s{PROF_S+2*j}, s{PROF_S}")
        k(f"s_mov_b32 s{PROF_S}, 1")
    else: k(f"s_not_b32 s{PROF_S}, s{PROF_S}")
    for j in range(15): k(f"v_writelane_b32 v{v}, s{PROF_S+2*j}, {j}")
    k(f"""v_lshlrev_b32 v{v+1}, 2, v0
    s_mov_b64 exec, 0x7fff
    global_atomic_{op} v{v+1}, v{v}, s[{sDBG}:{sDBG+1}] offset:4 sc1
    s_waitcnt vmcnt(0)""")
    k.label(L)

_REG = re.compile(r"^(-|\|)?(?:abs\()?([vsa])(?:(\d+)|\[(\d+):(\d+)\])\)?\|?$")
def regs_of(op):
    op = op.strip()
    if op == "vcc": return [("s", "vcc_lo"), ("s", "vcc_hi")]
    if op in ("vcc_lo", "vcc_hi"): return [("s", op)]
    if op == "exec": return [("s", "exec_lo"), ("s", "exec_hi")]
    if op in ("exec_lo", "exec_hi", "m0"): return [("s", op)]
    m = _REG.match(op)
    if not m: return []
    f = m.group(2)
    if m.group(3) is not None: return [(f, int(m.group(3)))]
    return [(f, i) for i in range(int(m.group(4)), int(m.group(5)) + 1)]

TRANS = ("v_exp_", "v_log_", "v_rcp_", "v_rsq_", "v_sqrt_", "v_sin_", "v_cos_")

class Ins:
    def __init__(self, text, idx):
        self.text, self.idx = text, idx
        code = text.split(";")[0].strip()
        self.note = text.split(";", 1)[1] if ";" in text else ""
        parts = code.split(None, 1)
        self.op = parts[0]
        rest = parts[1] if len(parts) > 1 else ""
        ops, depth, cur = [], 0, ""
        for ch in rest:
            if ch in "[(": depth += 1
            if ch in "])": depth -= 1
            if ch == "," and depth == 0:
                ops.append(cur.strip()); cur = ""
            else: cur += ch
        if cur.strip(): ops.append(cur.strip())
        self.mods = ""
        if ops:
            last = ops[-1].split(None, 1)
            if len(last) > 1 and not self.op.startswith("s_waitcnt"):
                ops[-1] = last[0]; self.mods = last[1]
        self.ops = ops
        self.classify()
    def classify(self):
        op, ops = self.op, self.ops
        R = lambda l: [r for o in l for r in regs_of(o)]
        self.kind = "other"; self.dst = []; self.src = []
        self.passes = 0
        if op.startswith("v_mfma") or op.startswith("v_smfmac"):
            self.kind = "mfma"
            self.dst = R(ops[:1]); self.srcA = R(ops[1:2]); self.srcB = R(ops[2:3]); self.srcC = R(ops[3:4])
            self.src = self.srcA + self.srcB + self.srcC
            self.passes = 8 if "32x32" in op else 4
        elif op.startswith("v_"):
            self.kind = "valu"
            nd = 1
            if op.startswith(("v_add_co", "v_sub_co", "v_addc_co", "v_subb_co", "v_subrev_co", "v_div_scale", "v_mad_u64_u32")): nd = 2
            if op.startswith(("v_permlane32_swap", "v_permlane16_swap", "v_swap")):
                self.dst = R(ops); self.src = R(ops)
            else:
                self.dst = R(ops[:nd]); self.src = R(ops[nd:])
                if op.startswith(("v_fmac", "v_pk_fmac", "v_dot2c", "v_mac", "v_writelane")) or "UNUSED_PRESERVE" in self.mods or ("dpp" in op or "row_" in self.mods or "quad_perm" in self.mods):
                    self.src += self.dst
                if op.startswith("v_cmpx"): self.dst += regs_of("exec")
            if op == "v_nop": self.kind = "other"
        elif op.startswith("ds_"):
            self.kind = "ds"
            if op.startswith(("ds_read", "ds_bpermute", "ds_permute", "ds_swizzle")) or "_rtn" in op:
                self.dst = R(ops[:1]); self.src = R(ops[1:])
            else:
                self.src = R(ops)
        elif op.startswith("buffer_") or op.startswith("global_"):
            self.kind = "vmem"
            self.lds = (" lds" in " " + self.mods) or "_lds_" in op
            if op.startswith(("buffer_wbl2", "buffer_inv")):
                pass
            elif "load" in op and not self.lds:
                self.dst = R(ops[:1]); self.src = R(ops[1:])
            elif "atomic" in op and "sc0" in self.mods and op.startswith("buffer_"):
                self.dst = R(ops[:1]); self.src = R(ops)
            elif "atomic" in op and "sc0" in self.mods:
                self.dst = R(ops[:1]); self.src = R(ops[1:])
            else:
                self.src = R(ops)
            if self.lds: self.src += regs_of("m0")
            self.store_data = []
            if "store" in op and ("x3" in op or "x4" in op):
                self.store_data = R(ops[:1]) if op.startswith("buffer_") else R(ops[1:2])
        elif op.startswith(("s_load", "s_buffer_load", "s_memtime", "s_memrealtime", "s_atomic")):
            self.kind = "smem"
            self.dst = R(ops[:1]); self.src = R(ops[1:])
        elif op.startswith("s_"):
            self.kind = "salu"
            if op.startswith(("s_cmp", "s_cbranch", "s_branch", "s_waitcnt", "s_barrier", "s_nop", "s_endpgm", "s_setprio", "s_sleep", "s_bitcmp", "s_setreg")):
                self.src = R(ops)
            else:
                self.dst = R(ops[:1]); self.src = R(ops[1:])
                if "saveexec" in op: self.dst += regs_of("exec")
        self.trans = op.startswith(TRANS)

def _imm(x):
    try:
        if x.startswith("0x") or x.startswith("-0x"): return int(x, 16) & 0xffffffff
        return int(x) & 0xffffffff
    except Exception:
        return None

def check(kern, init=None, branch=None, maxsteps=400000, verbose=False):
    init = dict(init or {}); branch = dict(branch or {})
    ins, labels = [], {}
    for l in kern.lines:
        if l.endswith(":"): labels[l[:-1]] = len(ins)
        elif l.startswith(".") or l.startswith(";"): continue
        else: ins.append(Ins(l, len(ins)))
    S = {}
    if "wg" in init: S[2] = init["wg"]
    scc = None
    errs = []
    t = 0
    lastw = {}
    mfma_c = []
    stores = []
    vmq, lgq = [], []
    pc, steps = 0, 0
    seen = set()
    def err(msg, i, j=None):
        key = (msg, i.idx, j.idx if j else None)
        if key not in seen:
            seen.add(key)
            errs.append(f"{kern.name}: {msg}: [{i.idx}] {i.text}" + (f"   <- [{j.idx}] {j.text}" if j else ""))
    def val(o):
        r = regs_of(o)
        if len(r) == 1 and r[0][0] == "s": return S.get(r[0][1])
        if r: return None
        return _imm(o)
    counts = {}
    while pc < len(ins) and steps < maxsteps:
        i = ins[pc]; steps += 1
        counts[i.kind] = counts.get(i.kind, 0) + 1
        touched = set(i.src) | set(i.dst)
        for q, nm in ((vmq, "vmcnt"), (lgq, "lgkmcnt")):
            for (d, j) in q:
                if d & touched:
                    if i.kind in ("ds", "vmem") and i.kind == j.kind and not (d & set(i.src)):
                        continue
                    err(f"register of outstanding load used before {nm} wait", i, j)
        def need(regs, n, pred, msg):
            for r in regs:
                w = lastw.get(r)
                if w and pred(w[1]) and t - w[0] < n:
                    err(f"{msg} needs {n} wait states, has {t - w[0]}", i, w[1])
        isv = lambda j: j.kind == "valu"
        ism = lambda j: j.kind == "mfma"
        if i.kind == "mfma":
            need(i.src, 2, isv, "VALU->MFMA")
            for r in i.srcA + i.srcB:
                w = lastw.get(r)
                if w and ism(w[1]) and t - w[0] < w[1].passes + 4: err("MFMA D->MFMA A/B", i, w[1])
            for r in i.srcC:
                w = lastw.get(r)
                if w and ism(w[1]) and not (w[1].dst == i.srcC and w[1].passes == i.passes) and t - w[0] < w[1].passes + 2:
                    err("MFMA D->MFMA C overlap", i, w[1])
            need(regs_of("exec"), 4, isv, "VALU exec->MFMA")
        if i.kind in ("valu", "vmem", "ds"):
            for r in set(i.src) | set(i.dst):
                w = lastw.get(r)
                if w and ism(w[1]) and t - w[0] < w[1].passes + 4:
                    err(f"MFMA D->VALU/mem needs {w[1].passes+4}, has {t-w[0]}", i, w[1])
        if i.kind == "valu":
            for (tm, j) in mfma_c:
                if t - tm < j.passes - 1 and set(j.srcC) & set(i.dst): err("MFMA C WAR", i, j)
            if not i.trans: need(i.src, 1, lambda j: j.trans, "trans->VALU")
            sg = [r for r in i.src if r[0] == "s"]
            need(sg, 2, isv, "VALU sgpr->VALU const")
            if i.op.startswith(("v_readfirstlane", "v_readlane")):
                need([r for r in i.src if r[0] == "v"], 1, isv, "VALU->readlane")
                need(sg, 4, isv, "VALU sgpr->lane select")
            if i.op.startswith("v_permlane"): need(i.src, 2, isv, "VALU->permlane")
            if "dpp" in i.op or "row_" in i.mods or "quad_perm" in i.mods: need([r for r in i.src if r[0] == "v"], 2, isv, "VALU->DPP")
            need(i.src, 1, lambda j: j.kind == "valu" and ("sdwa" in j.op or ("op_sel:" in j.mods and not j.op.startswith("v_pk_"))), "SDWA/opsel->VALU")
            for (tm, rg, j) in stores:
                if t - tm < 2 and rg & set(i.dst): err("store data WAR", i, j)
        elif i.dst:
            for (tm, rg, j) in stores:
                if t - tm < 1 and rg & set(i.dst): err("store data WAR", i, j)
        if i.kind == "vmem":
            need([r for r in i.src if r[0] == "s"], 5, isv, "VALU sgpr->VMEM")
            if i.lds: need(regs_of("m0"), 1, lambda j: j.kind == "salu", "M0->LDS DMA")
        if i.kind == "salu" and i.op.startswith("s_cbranch_vcc"):
            pass
        nxt = pc + 1
        op, o = i.op, i.ops
        dt = 1
        if op == "s_nop": dt = int(o[0]) + 1
        if op == "s_endpgm": break
        if op == "s_waitcnt":
            txt = i.text.split(";")[0]
            m = re.search(r"vmcnt\((\d+)\)", txt)
            if m:
                n = int(m.group(1));
                while len(vmq) > n: vmq.pop(0)
            m = re.search(r"lgkmcnt\((\d+)\)", txt)
            if m:
                n = int(m.group(1))
                if n > 0 and any(j.kind == "smem" for _, j in lgq): err("counted lgkmcnt with SMEM outstanding", i)
                while len(lgq) > n: lgq.pop(0)
        if i.kind == "vmem" and not op.startswith(("buffer_inv",)):
            vmq.append((set(i.dst), i))
            if len(vmq) > 63: err("more than 63 vmem outstanding (counter saturates; fine only if waits account for it)", i)
            if getattr(i, "store_data", None): stores.append((t + 1, set(i.store_data), i)); stores = stores[-4:]
        if i.kind in ("ds", "smem"):
            lgq.append((set(i.dst), i))
        if i.kind in ("valu", "mfma", "salu"):
            for r in i.dst: lastw[r] = (t + dt, i)
        else:
            for r in i.dst: lastw.pop(r, None)
        if i.kind == "mfma":
            mfma_c.append((t + 1, i)); mfma_c = mfma_c[-4:]
        for r in i.dst:
            if r[0] == "s" and i.kind != "salu": S.pop(r[1], None)
        if i.kind == "salu":
            d = i.dst[0][1] if (i.dst and len(regs_of(o[0])) == 1) else None
            a = val(o[1]) if len(o) > 1 else None
            b = val(o[2]) if len(o) > 2 else None
            both = a is not None and b is not None
            M = 0xffffffff
            res = None
            if op in ("s_mov_b32", "s_movk_i32"): res = a
            elif op in ("s_add_u32", "s_add_i32"):
                res = (a + b) & M if both else None; scc = ((a + b) >> 32) if both else None
            elif op in ("s_sub_u32", "s_sub_i32"):
                res = (a - b) & M if both else None; scc = int(a < b) if both else None
            elif op == "s_addk_i32":
                c = S.get(d); res = (c + a) & M if c is not None and a is not None else None; scc = None
            elif op == "s_mul_i32": res = (a * b) & M if both else None
            elif op == "s_mul_hi_u32": res = (a * b) >> 32 if both else None
            elif op == "s_lshl_b32": res = (a << (b & 31)) & M if both else None; scc = None if res is None else int(res != 0)
            elif op == "s_lshr_b32": res = a >> (b & 31) if both else None; scc = None if res is None else int(res != 0)
            elif op == "s_and_b32": res = a & b if both else None; scc = None if res is None else int(res != 0)
            elif op == "s_or_b32": res = a | b if both else None; scc = None if res is None else int(res != 0)
            elif op == "s_xor_b32": res = a ^ b if both else None; scc = None if res is None else int(res != 0)
            elif op == "s_min_u32": res = min(a, b) if both else None; scc = None
            elif op == "s_cselect_b32": res = None if scc is None else (a if scc else b)
            elif op.startswith("s_cmp_") or op.startswith("s_cmpk_"):
                x, y = val(o[0]), val(o[1])
                if x is None or y is None: scc = None
                else:
                    c = op.split("_")[2]
                    if op.endswith("i32"):
                        x = x - (1 << 32) if x >> 31 else x; y = y - (1 << 32) if y >> 31 else y
                    scc = int({"eq": x == y, "lg": x != y, "lt": x < y, "le": x <= y, "gt": x > y, "ge": x >= y}[c])
            elif op == "s_branch": nxt = labels[o[0]]
            elif op in ("s_cbranch_scc0", "s_cbranch_scc1"):
                tk = branch.get(o[0], False) if scc is None else (scc == int(op[-1]))
                if tk: nxt = labels[o[0]]
            elif op.startswith("s_cbranch"):
                if branch.get(o[0], False): nxt = labels[o[0]]
            elif op in ("s_waitcnt", "s_barrier", "s_nop", "s_setprio", "s_sleep"): pass
            else:
                if not op.startswith(("s_mov_b64", "s_getreg", "s_setreg")): scc = None
            if i.dst:
                for r in i.dst: S.pop(r[1], None)
                if d is not None and res is not None: S[d] = res
        m = re.search(r"@set s(\d+)=(\w+)", i.note)
        if m and m.group(2) in init: S[int(m.group(1))] = init[m.group(2)]
        t += dt
        pc = nxt
    if steps >= maxsteps: errs.append(f"{kern.name}: trace did not end")
    if verbose: print(kern.name, init, "steps", steps, counts)
    return errs

def gen_probe(name, a, b, mult=10):
    k = Kern(name, block=64, grid=1, lds=0, vgpr=32)
    END = name + "_end"
    k(f"""
    s_cmp_ge_u32 s2, 1
    s_cbranch_scc1 {END}
    s_load_dwordx2 s[4:5], s[0:1], 80
    s_memrealtime s[20:21]
    s_waitcnt lgkmcnt(0)
    s_add_u32 s8, s4, {WS_PROF}
    s_addc_u32 s9, s5, 0
    s_mov_b32 s10, 0x1000000
    s_mov_b32 s11, 0x00020000
    v_lshrrev_b32 v1, 3, v0
    v_and_b32 v2, 7, v0
    v_lshlrev_b32 v1, 10, v1
    v_lshl_add_u32 v1, v2, 6, v1
    v_mov_b32 v4, -1
    v_mov_b32 v5, 0
    s_mov_b32 s12, {a[0] * 0x100000 + 4 * a[1]}
    s_mov_b32 s13, {b[0] * 0x100000 + 4 * b[1]}
    s_mov_b32 s14, 32
    {name}_l:
    buffer_load_dword v6, v1, s[8:11], s12 offen
    buffer_load_dword v7, v1, s[8:11], s13 offen
    s_waitcnt vmcnt(0)
    v_min_u32 v4, v4, v6
    v_max_u32 v5, v5, v7
    v_add_u32 v1, 8192, v1
    s_sub_u32 s14, s14, 1
    s_cmp_lg_u32 s14, 0
    s_cbranch_scc1 {name}_l
    s_mov_b32 s15, -1
    s_mov_b32 s16, 0
    s_nop 4
    """)
    for l in range(64):
        k(f"v_readlane_b32 s17, v4, {l}\nv_readlane_b32 s18, v5, {l}\ns_nop 0\ns_min_u32 s15, s15, s17\ns_max_u32 s16, s16, s18")
    k(f"""
    s_sub_u32 s16, s16, s15
    s_min_u32 s16, s16, 10000
    s_mul_i32 s16, s16, {mult}
    s_add_u32 s16, s16, 1000
    {name}_s:
    s_memrealtime s[22:23]
    s_waitcnt lgkmcnt(0)
    s_sub_u32 s22, s22, s20
    s_cmp_lt_u32 s22, s16
    s_cbranch_scc1 {name}_s
    """)
    k.label(END)
    k("s_endpgm")
    return k
```

```python
from asmlib import *
from layout import *
import p1, p2, p3
from p1 import *
from p3 import sA, sB, sOut, sTb, sNb, sSa, sSb, sU0, sU1, sRe, sRl, vL, vL2, BUFA, BUFB, vG3

sTS = 96
sSY = 100
vIni = 255
vPo = 248
SPIN = 1 << 16

def spin_loop(k, name, load, cond, back, sCount=34):
    L = name + "_l"
    k.label(name)
    k(f"s_mov_b32 s{sCount}, {SPIN}")
    k.label(L)
    for x in load: k(x)
    k("s_waitcnt vmcnt(0)")
    for x in cond: k(x)
    k(f"""
    s_sub_u32 s{sCount}, s{sCount}, 1
    s_cbranch_scc1 {back}
    s_cbranch_vccnz {L}
    s_branch {back}
    """)

def gen(name, NW=5, prof=False, area=0, n0=4, bars=(3, 9), prio={0: 3, 18: 2, 25: 1, 30: 0}, pattern=1, gsplit=12, xbar=24, pf0=14, warm=True, pbar=(), arr=3, paced=True, itail=True, obar=True, fine=False, pref=None, dbg=None):
    k = Kern(name, block=512, grid=256, lds=163840, vgpr=256, sgpr=102)
    END = name + "_end"
    tails = []
    st = lambda i: stamp(prof, i) if not (fine and i < 13) else ''
    sl = lambda i: [st(i)] if (prof and st(i)) else []
    k(f"s_cmp_ge_u32 s2, 256\ns_cbranch_scc1 {END}")
    p1_setup(k, prof)
    if pref: pref_setup(k, pref[0])
    LZ = k.uniq("noz")
    k(f"""
    s_add_u32 s{sSY}, s{sWS}, {WS_SYNC}
    s_addc_u32 s{sSY+1}, s{sWS+1}, 0
    s_or_b32 s{sT[0]}, s2, s{sW}
    s_cbranch_scc1 {LZ}
    v_mul_u32_u24 v5, {SY_STRIDE}, v0
    v_mov_b32 v6, 0
    s_mov_b64 exec, {hex((1 << SY_N) - 1)}
    global_store_dword v5, v6, s[{sSY}:{sSY+1}]{SC1}
    s_mov_b64 exec, -1
    {LZ}:
    """)
    def pro(extra=None):
        def f(k, vq):
            if pref:
                for g in pref_loads(extra is None, *pref[1:]).get(-1, []): vq.add(k, g, 'pf')
            k(f"s_mov_b32 s{sTS}, s{sCb}\ns_mov_b32 s{sTS+1}, s{sTg}\ns_mov_b32 s{sTS+2}, s{sCg}")
            p2.p2_ids(k)
            p2.o_addr(k, 44, vPo + 4, vPo + 5, 13, 14)
            k(f"s_mov_b32 s{sCb}, s{sTS}\ns_mov_b32 s{sTg}, s{sTS+1}\ns_mov_b32 s{sCg}, s{sTS+2}")
            for r in range(4): k(f"v_mov_b32 v{vPo+r}, -1")
            if extra: extra(k)
        return f
    LI = lambda: k.uniq("noi")
    def hooks(side):
        l = LI()
        h = {1: [(None, [f"s_or_b32 s{sT[0]}, s2, s{sW}", f"s_cbranch_scc1 {l}", f"v_mov_b32 v13, 0", f"v_mov_b32 v14, 1", "s_mov_b64 exec, 1",
                         f" global_store_dword v13, v14, s[{sDBG}:{sDBG+1}]{SC1}", "s_mov_b64 exec, -1", l + ":"])],
             2: [('po', [f"buffer_store_dwordx4 v[{vPo}:{vPo+3}], v{vPo+4}, s[44:47], 0 offen{SC1}"]),
                 ('po', [f"buffer_store_dwordx2 v[{vPo}:{vPo+1}], v{vPo+5}, s[44:47], 0 offen{SC1}"])],
             8: [('ini', [f"v_mov_b32 v{vIni}, 0", f"global_load_dword v{vIni}, v{vIni}, s[{sDBG}:{sDBG+1}]{SC1}"])]}
        if pref:
            for when, gs in pref_loads(not side, *pref[1:]).items():
                if when >= 0: h.setdefault(when, []).extend(('pf', g) for g in gs)
        if side:
            g, gl = side_loads()
            s0 = max(max(s for s in range(20) if s % NW == j) for j in (0, 1))
            h[s0] = [('side', x) for x in g]
            h[s0 - 1] = [('side', x) for x in gl[:5]]
            h[s0] += [('side', x) for x in gl[5:]]
        return h
    def init_check():
        nm, back = k.uniq("ispin"), k.uniq("iback")
        k(f"v_cmp_ne_u32 vcc, 1, v{vIni}\ns_cbranch_vccnz {nm}")
        k.label(back)
        tails.append(lambda: spin_loop(k, nm, [f"v_mov_b32 v{vIni}, 0", f"global_load_dword v{vIni}, v{vIni}, s[{sDBG}:{sDBG+1}]{SC1}"],
                                       [f"v_cmp_ne_u32 vcc, 1, v{vIni}"], back))
    def qkv_wait():
        L, X = k.uniq("qspin"), k.uniq("qdone")
        k(f"""
        s_lshr_b32 s{p2.sT0}, s{p2.sHead}, 4
        s_add_u32 s{p2.sT0}, s{p2.sT0}, {SY_FLAG}
        v_lshl_add_u32 v5, v0, 1, s{p2.sT0}
        v_mul_u32_u24 v5, {SY_STRIDE}, v5
        s_mov_b32 s34, {SPIN}
        s_mov_b64 exec, 7
        {L}:
        global_load_dword v6, v5, s[{sSY}:{sSY+1}]{SC1}
        s_waitcnt vmcnt(0)
        v_cmp_ne_u32 vcc, 1, v6
        s_sub_u32 s34, s34, 1
        s_cbranch_scc1 {X}
        s_cbranch_vccnz {L}
        {X}:
        s_mov_b64 exec, -1
        """)
    LQ, LV, L20, LJ = name + "_qkv", name + "_v", name + "_f20", name + "_att"
    k(f"s_cmp_ge_u32 s{sCb}, 10\ns_cbranch_scc1 {LQ}")
    ffn_wave_params(k)
    k(f"s_cmp_lg_u32 s{sMode}, 0\ns_cbranch_scc1 {L20}")
    for var in ('F24', 'F20'):
        if var == 'F20': k.label(L20)
        p1_loop(k, var, NW, prof, True, hooks(False), pro(), pbar, fine, paced)
        h_store_setup(k, var)
        g = gelu_math(k, var)
        n = len(g) // (12 if var == 'F24' else 10)
        hs = h_stores(var)
        def rest():
            for x in g[n * gsplit:]: k(x)
            k("s_nop 1")
            for x in hs: k(x)
            k(st(15) if not fine else '')
            p2.p2_init_regs(k)
            p3.p3_setup(k)
        for x in g[:n * gsplit]: k(x)
        late = n * gsplit < len(g)
        if not late: rest()
        init_check()
        p2.p2_setup(k)
        qkv_wait()
        k(st(3))
        p2.p2_first_loads(k, n0)
        if late: rest()
        k(p2.first_wait(n0, sum(x.startswith("buffer") for x in hs) if late else 0, bars) + " lgkmcnt(0)")
        k(f"s_branch {LJ}")
    k.label(LQ)
    k(f"s_cmp_ge_u32 s{sCb}, 14\ns_cbranch_scc1 {LV}")
    LS = name + "_side"
    p1_loop(k, 'QK', NW, prof, True, hooks(True), pro(side_params), pbar, fine, paced, qk_tail() if itail else None)
    if not itail:
        k("s_nop 7")
        qk_epilogue(k)
    k(f"s_branch {LS}")
    k.label(LV)
    p1_loop(k, 'V', NW, prof, True, hooks(True), pro(side_params), pbar, fine, paced, v_tail() if itail else None)
    if not itail:
        k("s_nop 7")
        v_epilogue(k)
    k.label(LS)
    init_check()
    LA, LF = k.uniq("noarr"), k.uniq("noflag")
    k(f"""
    s_sub_u32 s{sT[0]}, s{sCb}, 10
    s_mul_i32 s{sT[0]}, s{sT[0]}, {SY_STRIDE}
    v_mov_b32 v11, s{sT[0]}
    v_mov_b32 v12, 1
    v_mov_b32 v13, 0
    s_waitcnt vmcnt(0)
    s_barrier
    {st(15) if not fine else ''}
    s_cmp_lg_u32 s{sW}, 0
    s_cbranch_scc1 {LA}
    s_mov_b64 exec, 1
    global_atomic_add v13, v11, v12, s[{sSY}:{sSY+1}] sc0 sc1
    s_mov_b64 exec, -1
    {LA}:
    """)
    side_compute(k)
    k(f"""
    s_waitcnt vmcnt(0)
    v_cmp_eq_u32 vcc, 15, v13
    v_add_u32 v11, {SY_FLAG * SY_STRIDE}, v11
    s_cbranch_vccz {LF}
    s_mov_b64 exec, 1
    global_store_dword v11, v12, s[{sSY}:{sSY+1}]{SC1}
    s_mov_b64 exec, -1
    {LF}:
    """)
    side_stores(k)
    k("s_barrier")
    p2.p2_setup(k)
    p2.p2_init_regs(k)
    p3.p3_setup(k)
    qkv_wait()
    k(st(3))
    p2.p2_first_loads(k, n0)
    k(p2.first_wait(n0, 0, bars) + " lgkmcnt(0)")
    k.label(LJ)
    LD = k.uniq("nodone")
    arrive = [f"s_cmp_lg_u32 s{sW}, 0", f"s_cbranch_scc1 {LD}", f"s_and_b32 s{sU0}, s2, 15", f"s_add_u32 s{sU0}, s{sU0}, {SY_P1}", f"s_mul_i32 s{sU0}, s{sU0}, {SY_STRIDE}",
              f"v_mov_b32 v5, s{sU0}", "v_mov_b32 v6, 1", "s_mov_b64 exec, 1", f"global_atomic_add v5, v6, s[{sSY}:{sSY+1}]{SC1}", "s_mov_b64 exec, -1", LD + ":"]
    pload = [f"global_load_dword v6, v5, s[{sSY}:{sSY+1}]{SC1}"]
    pcond = ["v_cmp_ne_u32 vcc, 16, v6"]
    nm, back = k.uniq("pspin"), k.uniq("pback")
    tails.append(lambda: spin_loop(k, nm, ["s_sleep 4"] + pload, pcond, back))
    extra = {}
    def put(u, tag, g): extra.setdefault(u, []).append((tag, g))
    put(pf0 - 2, 'p1', ["v_and_b32 v5, 15, v0", f"v_add_u32 v5, {SY_P1}, v5", f"v_mul_u32_u24 v5, {SY_STRIDE}, v5"] + pload)
    put(pf0, None, lambda vq: [f"s_waitcnt vmcnt({vq.wait('p1')})"] + pcond + [f"s_cbranch_vccnz {nm}", back + ":"] + sl(6))
    seq = []
    for s in range(4):
        if s < 3:
            l = p3.slot_loads(s, s, "a"); i = len(l) - 4
            seq += [(('a', s), l[:i + 1])] + [(('a', s), [x]) for x in l[i + 1:]]
        l = p3.slot_loads(s, s, "b"); i = len(l) - 5
        seq += [(('b', s), l[:i + 1])] + [(('b', s), [x]) for x in l[i + 1:]]
    if warm:
        w = [f"s_lshr_b32 s{sU0}, s2, 3", f"s_cmp_lt_u32 s{sW}, 4", f"s_cselect_b32 s{sTS}, s{sA}, s{sB}", f"s_cselect_b32 s{sTS+1}, s{sA+1}, s{sB+1}",
             f"s_cselect_b32 s{sTS+2}, s{sA+2}, s{sB+2}", f"s_mov_b32 s{sTS+3}, 0x00020000",
             f"s_lshr_b32 s{sU1}, s{sU0}, 3", f"s_lshl_b32 s{sU1}, s{sU1}, 2", f"s_add_u32 s{sU1}, s{sU1}, s{sW}", f"s_lshl_b32 s{sU1}, s{sU1}, 13", f"s_add_u32 s{sU1}, s{sU1}, {22*4096}",
             f"s_and_b32 s{sU0}, s{sU0}, 7", f"s_lshl_b32 s{sU0}, s{sU0}, 1", f"s_and_b32 s34, s{sW}, 1", f"s_add_u32 s{sU0}, s{sU0}, s34", f"s_lshl_b32 s{sU0}, s{sU0}, 13",
             f"s_add_u32 s{sU0}, s{sU0}, {54*5120 - 131072}", f"s_cmp_lt_u32 s{sW}, 4", f"s_cselect_b32 s34, s{sU1}, s{sU0}",
             f"v_lshlrev_b32 v5, 7, v0", f"buffer_load_dword v125, v5, s[{sTS}:{sTS+3}], s34 offen{SC1}"]
        seq += [('w', w), ('w', [f"buffer_load_dword v126, v5, s[{sTS}:{sTS+3}], s34 offen offset:64{SC1}"])]
    seq += p2.g_load()
    u = pf0 + 1
    per = -(-len(seq) // (xbar - u))
    for i, (tag, g) in enumerate(seq): put(u + i // per, tag, g)
    seq = []
    for i, s in enumerate((7, 8, 9)):
        for nt in range(5):
            g = []
            if nt == 0: g += p3.so_b(s)
            if nt in (0, 4): g += [f"s_add_u32 m0, s{sRe}, {5120 * i + 1024 * nt}", None]
            g += [f"buffer_load_dwordx4 v{vL if nt < 4 else vL2}, s[{sB}:{sB+3}], s{sSb} offen offset:{1024 * (nt & 3)}{SC1} lds"]
            seq.append((('l', s), g))
    u = xbar + 1
    per = -(-len(seq) // (31 - u))
    for i, (tag, g) in enumerate(seq): put(u + i // per, tag, g)
    ab = {bars[-1]: sl(5), xbar: sl(7)}
    ab[arr] = arrive + ab.get(arr, [])
    vq = p2.p2_loop(k, n0=n0, bars=bars, prio=prio, extra=extra, prof=prof, pattern=pattern, xbars=(xbar,), afterbar=ab, stamps=(13, 15) if fine else (4, 8))
    fb = p2.p2_finish(k, vq.wait('g2'), sRl)
    vq.q += ['o', 'o']
    if obar: k('s_barrier')
    k(st(9))
    tails.append(fb)
    vq.add(k, p3.slot_loads(3, 3, "a"), ('a', 3))
    vq.add(k, p3.g_loads(), 'g')
    k(f"v_add_u32 v{p3.vRe}, s{sRe}, v{vL}")
    def lds_b(buf, i):
        return [f"ds_read_b128 v[{BUFB[buf]+4*nt}:{BUFB[buf]+4*nt+3}], v{p3.vRe} offset:{5120*i + 1024*nt}" for nt in range(5)]
    for s in range(7):
        p3.compute_slot(k, vq, s, s % 4, nxt=(s + 4 if s < 6 else None), part=("ab" if s < 3 else "a"), first=(s == 0))
        if 3 <= s < 6:
            for x in lds_b(s % 4, s - 3): k(x)
        if s == 3: k(st(10))
    k("s_nop 7")
    p3.scale(k, vq)
    k(st(11))
    oregs = [BUFA[b] + r for b in (3, 0, 1) for r in range(16)]
    chk = [f"v_max3_u32 v5, v{oregs[0]}, v{oregs[1]}, v{oregs[2]}"] + [f"v_max3_u32 v5, v5, v{a}, v{b}" for a, b in zip(oregs[3::2], oregs[4::2])] + \
          [f"v_max_u32 v5, v5, v{oregs[-1]}", "v_cmp_eq_u32 vcc, -1, v5"]
    nm2, back2 = k.uniq("ospin"), k.uniq("oback")
    k("s_waitcnt vmcnt(0) lgkmcnt(0)")
    for x in chk: k(x)
    k(f"s_cbranch_vccnz {nm2}")
    k.label(back2)
    k(st(12))
    tails.append(lambda: spin_loop(k, nm2, [x for s, b in ((7, 3), (8, 0), (9, 1)) for x in p3.slot_loads(s, b, "a")], chk, back2))
    p3.o_phase(k, [3, 0, 1])
    k(st(13) if not fine else '')
    p3.reduce_store(k)
    if dbg:
        cond = None
        if dbg[1] is not None:
            m = sum(1 << i for i in range(16) if CB_TABLE[i] >= 10)
            cond = f"s_and_b32 s20, s2, 6\ns_lshl_b32 s20, s20, 1\ns_lshr_b32 s21, s2, 6\ns_add_u32 s20, s20, s21\ns_mov_b32 s21, {m}\ns_bitcmp1_b32 s21, s20\ns_cbranch_scc{1 - dbg[1]}"
        prof_dbg(k, 14, sDBG, op=dbg[0], cond=cond)
    elif prof: prof_out(k, 14, sWS, sW, area=area, mode=prof)
    k.label(END)
    k("s_endpgm")
    for t in tails: t()
    return k

if __name__ == "__main__":
    k = gen("f_kernel"); seen = set()
    for wg in (0, 3, 77, 71, 200, 255, 196):
        for w in (0, 3, 4, 7):
            for e in check(k, init=dict(wg=wg, wave=w), verbose=(w == 0)):
                if e not in seen: seen.add(e); print(e)
```

```python
from asmlib import *
from layout import *
import p1, p2, p3
from p1 import *
from p3 import sA, sB, sOut, sTb, sNb, sSa, sSb, sU0, sU1, sRe, sRl, vL, vL2, BUFA, BUFB, vG3

sTS = 96
sSY = 100
vIni = 255
vPo = 248
SPIN = 1 << 16

def spin_loop(k, name, load, cond, back, sCount=34):
    L = name + "_l"
    k.label(name)
    k(f"s_mov_b32 s{sCount}, {SPIN}")
    k.label(L)
    for x in load: k(x)
    k("s_waitcnt vmcnt(0)")
    for x in cond: k(x)
    k(f"""
    s_sub_u32 s{sCount}, s{sCount}, 1
    s_cbranch_scc1 {back}
    s_cbranch_vccnz {L}
    s_branch {back}
    """)

def gen(name, NW=5, prof=False, area=0, n0=3, bars=(1, 4, 9), prio={0: 3, 18: 2, 25: 1, 30: 0}, pattern=1, gsplit=12, xbar=24, pf0=14, warm=True, pbar=(), arr=9, paced=True, itail=True, obar=True, fine=False, pref=None, dbg=None, wsb=0, hst=(0, 0, 1, 1, 2, 2, 3, 3, 4, 4)):
    k = Kern(name, block=512, grid=256, lds=163840, vgpr=256, sgpr=102)
    END = name + "_end"
    tails = []
    st = lambda i: stamp(prof, i) if not (fine and i < 13) else ''
    sl = lambda i: [st(i)] if (prof and st(i)) else []
    k(f"s_cmp_ge_u32 s2, 256\ns_cbranch_scc1 {END}")
    p1_setup(k, prof, pref, wsb)
    LZ = k.uniq("noz")
    k(f"""
    s_add_u32 s{sSY}, s{sWS}, {WS_SYNC}
    s_addc_u32 s{sSY+1}, s{sWS+1}, 0
    s_or_b32 s{sT[0]}, s2, s{sW}
    s_cbranch_scc1 {LZ}
    v_mul_u32_u24 v5, {SY_STRIDE}, v0
    v_mov_b32 v6, 0
    s_mov_b64 exec, {hex((1 << SY_N) - 1)}
    global_store_dword v5, v6, s[{sSY}:{sSY+1}]{SC1}
    s_mov_b64 exec, -1
    {LZ}:
    """)
    def pro(extra=None):
        def f(k, vq):
            if pref:
                for g in pref_loads(*pref).get(-1, []): vq.add(k, g, 'pf')
            if extra: extra(k)
            k(f"s_mov_b32 s{sTS}, s{sCb}\ns_mov_b32 s{sTS+1}, s{sTg}\ns_mov_b32 s{sTS+2}, s{sCg}")
            p2.p2_ids(k)
            p2.o_addr(k, 44, vPo + 4, vPo + 5, 13, 14)
            k(f"s_mov_b32 s{sCb}, s{sTS}\ns_mov_b32 s{sTg}, s{sTS+1}\ns_mov_b32 s{sCg}, s{sTS+2}")
            for r in range(4): k(f"v_mov_b32 v{vPo+r}, -1")
        return f
    LI = lambda: k.uniq("noi")
    def hooks(side):
        l = LI()
        h = {1: [(None, [f"s_or_b32 s{sT[0]}, s2, s{sW}", f"s_cbranch_scc1 {l}", f"v_mov_b32 v13, 0", f"v_mov_b32 v14, 1", "s_mov_b64 exec, 1",
                         f" global_store_dword v13, v14, s[{sDBG}:{sDBG+1}]{SC1}", "s_mov_b64 exec, -1", l + ":"])],
             2: [('po', [f"buffer_store_dwordx4 v[{vPo}:{vPo+3}], v{vPo+4}, s[44:47], 0 offen{SC1}"]),
                 ('po', [f"buffer_store_dwordx2 v[{vPo}:{vPo+1}], v{vPo+5}, s[44:47], 0 offen{SC1}"])],
             8: [('ini', [f"v_mov_b32 v{vIni}, 0", f"global_load_dword v{vIni}, v{vIni}, s[{sDBG}:{sDBG+1}]{SC1}"])]}
        if pref:
            for when, gs in pref_loads(*pref).items():
                if when not in ('pre', -1): h.setdefault(when, []).extend(('pf', g) for g in gs)
        if side:
            g, gl = side_loads()
            s0 = max(max(s for s in range(20) if s % NW == j) for j in (0, 1))
            h[s0] = [('side', x) for x in g]
            if side == 'F20':
                h[s0 - 1] = [('side', x) for x in gl[:5]]
                h[s0] += [('side', x) for x in gl[5:]]
        return h
    def init_check():
        nm, back = k.uniq("ispin"), k.uniq("iback")
        k(f"v_cmp_ne_u32 vcc, 1, v{vIni}\ns_cbranch_vccnz {nm}")
        k.label(back)
        tails.append(lambda: spin_loop(k, nm, [f"v_mov_b32 v{vIni}, 0", f"global_load_dword v{vIni}, v{vIni}, s[{sDBG}:{sDBG+1}]{SC1}"],
                                       [f"v_cmp_ne_u32 vcc, 1, v{vIni}"], back))
    def qkv_wait():
        L, X = k.uniq("qspin"), k.uniq("qdone")
        k(f"""
        s_lshr_b32 s{p2.sT0}, s{p2.sHead}, 4
        s_add_u32 s{p2.sT0}, s{p2.sT0}, {SY_FLAG}
        v_lshl_add_u32 v5, v0, 1, s{p2.sT0}
        v_mul_u32_u24 v5, {SY_STRIDE}, v5
        s_mov_b32 s34, {SPIN}
        s_mov_b64 exec, 7
        {L}:
        global_load_dword v6, v5, s[{sSY}:{sSY+1}]{SC1}
        s_waitcnt vmcnt(0)
        v_cmp_ne_u32 vcc, 1, v6
        s_sub_u32 s34, s34, 1
        s_cbranch_scc1 {X}
        s_cbranch_vccnz {L}
        {X}:
        s_mov_b64 exec, -1
        """)
    LQ, LV, L20, LJ = name + "_qkv", name + "_v", name + "_f20", name + "_att"
    k(f"s_cmp_ge_u32 s{sCb}, 10\ns_cbranch_scc1 {LQ}")
    ffn_wave_params(k)
    k(f"s_cmp_lg_u32 s{sMode}, 0\ns_cbranch_scc1 {L20}")
    for var in ('F24', 'F20'):
        if var == 'F20': k.label(L20)
        p1_loop(k, var, NW, prof, True, hooks(var), pro(lambda k: side_params(k, var)), pbar, fine, paced)
        late_setup(k, var)
        side_compute(k, var)
        g = gelu_math(k, var)
        n = len(g) // (12 if var == 'F24' else 10)
        g += ["s_nop 1"] + [x for x in h_stores(var) if not x.startswith("buffer")]
        cut = len(g) if gsplit >= 12 else n * (gsplit - (2 if var == 'F20' else 0))
        for x in g[:cut]: k(x)
        k(st(15) if not fine else '')
        p2.p2_init_regs(k)
        p3.p3_setup(k)
        init_check()
        p2.p2_setup(k)
        qkv_wait()
        k(st(3))
        p2.p2_first_loads(k, n0)
        for x in g[cut:]: k(x)
        k(p2.first_wait(n0, 0, bars) + " lgkmcnt(0)")
        k(f"s_branch {LJ}")
    k.label(LQ)
    k(f"s_cmp_ge_u32 s{sCb}, 14\ns_cbranch_scc1 {LV}")
    LS = name + "_side"
    p1_loop(k, 'QK', NW, prof, True, hooks(None), pro(), pbar, fine, paced, qk_tail() if itail else None)
    if not itail:
        k("s_nop 7")
        qk_epilogue(k)
    k(f"s_branch {LS}")
    k.label(LV)
    p1_loop(k, 'V', NW, prof, True, hooks(None), pro(), pbar, fine, paced, v_tail() if itail else None)
    if not itail:
        k("s_nop 7")
        v_epilogue(k)
    k.label(LS)
    init_check()
    LA, LF = k.uniq("noarr"), k.uniq("noflag")
    k(f"""
    s_sub_u32 s{sT[0]}, s{sCb}, 10
    s_mul_i32 s{sT[0]}, s{sT[0]}, {SY_STRIDE}
    v_mov_b32 v11, s{sT[0]}
    v_mov_b32 v1, 1
    v_mov_b32 v13, 0
    s_waitcnt vmcnt(0)
    s_barrier
    {st(15) if not fine else ''}
    s_cmp_lg_u32 s{sW}, 0
    s_cbranch_scc1 {LA}
    s_mov_b64 exec, 1
    global_atomic_add v13, v11, v1, s[{sSY}:{sSY+1}] sc0 sc1
    s_mov_b64 exec, -1
    {LA}:
    """)
    late_setup(k, 'Q')
    p2.p2_setup(k)
    p2.p2_init_regs(k)
    p3.p3_setup(k)
    k(f"""
    s_waitcnt vmcnt(0)
    v_cmp_eq_u32 vcc, 15, v13
    v_add_u32 v11, {SY_FLAG * SY_STRIDE}, v11
    s_cbranch_vccz {LF}
    s_mov_b64 exec, 1
    global_store_dword v11, v1, s[{sSY}:{sSY+1}]{SC1}
    s_mov_b64 exec, -1
    {LF}:
    """)
    qkv_wait()
    k(st(3))
    p2.p2_first_loads(k, n0)
    k(p2.first_wait(n0, 0, bars) + " lgkmcnt(0)")
    k.label(LJ)
    LD = k.uniq("nodone")
    arrive = [f"s_cmp_lg_u32 s{sW}, 0", f"s_cbranch_scc1 {LD}", f"s_and_b32 s{sU0}, s2, 15", f"s_add_u32 s{sU0}, s{sU0}, {SY_P1}", f"s_mul_i32 s{sU0}, s{sU0}, {SY_STRIDE}",
              f"v_mov_b32 v5, s{sU0}", "v_mov_b32 v6, 1", "s_mov_b64 exec, 1", f"global_atomic_add v5, v6, s[{sSY}:{sSY+1}]{SC1}", "s_mov_b64 exec, -1", LD + ":"]
    pload = [f"global_load_dword v6, v5, s[{sSY}:{sSY+1}]{SC1}"]
    pcond = ["v_cmp_ne_u32 vcc, 16, v6"]
    nm, back = k.uniq("pspin"), k.uniq("pback")
    tails.append(lambda: spin_loop(k, nm, ["s_sleep 4"] + pload, pcond, back))
    extra = {}
    def put(u, tag, g): extra.setdefault(u, []).append((tag, g))
    put(pf0 - 2, 'p1', ["v_and_b32 v5, 15, v0", f"v_add_u32 v5, {SY_P1}, v5", f"v_mul_u32_u24 v5, {SY_STRIDE}, v5"] + pload)
    put(pf0, None, lambda vq: [f"s_waitcnt vmcnt({vq.wait('p1')})"] + pcond + [f"s_cbranch_vccnz {nm}", back + ":"] + sl(6))
    for i, x in enumerate(late_stores()): put(hst[i], 'h', [x])
    seq = []
    for s in range(4):
        if s < 3:
            l = p3.slot_loads(s, s, "a"); i = len(l) - 4
            seq += [(('a', s), l[:i + 1])] + [(('a', s), [x]) for x in l[i + 1:]]
        l = p3.slot_loads(s, s, "b"); i = len(l) - 5
        seq += [(('b', s), l[:i + 1])] + [(('b', s), [x]) for x in l[i + 1:]]
    if warm:
        w = [f"s_lshr_b32 s{sU0}, s2, 3", f"s_cmp_lt_u32 s{sW}, 4", f"s_cselect_b32 s{sTS}, s{sA}, s{sB}", f"s_cselect_b32 s{sTS+1}, s{sA+1}, s{sB+1}",
             f"s_cselect_b32 s{sTS+2}, s{sA+2}, s{sB+2}", f"s_mov_b32 s{sTS+3}, 0x00020000",
             f"s_lshr_b32 s{sU1}, s{sU0}, 3", f"s_lshl_b32 s{sU1}, s{sU1}, 2", f"s_add_u32 s{sU1}, s{sU1}, s{sW}", f"s_lshl_b32 s{sU1}, s{sU1}, 13", f"s_add_u32 s{sU1}, s{sU1}, {22*4096}",
             f"s_and_b32 s{sU0}, s{sU0}, 7", f"s_lshl_b32 s{sU0}, s{sU0}, 1", f"s_and_b32 s34, s{sW}, 1", f"s_add_u32 s{sU0}, s{sU0}, s34", f"s_lshl_b32 s{sU0}, s{sU0}, 13",
             f"s_add_u32 s{sU0}, s{sU0}, {54*5120 - 131072}", f"s_cmp_lt_u32 s{sW}, 4", f"s_cselect_b32 s34, s{sU1}, s{sU0}",
             f"v_lshlrev_b32 v5, 7, v0", f"buffer_load_dword v125, v5, s[{sTS}:{sTS+3}], s34 offen{SC1}"]
        seq += [('w', w), ('w', [f"buffer_load_dword v126, v5, s[{sTS}:{sTS+3}], s34 offen offset:64{SC1}"])]
    seq += p2.g_load()
    u = pf0 + 1
    per = -(-len(seq) // (xbar - u))
    for i, (tag, g) in enumerate(seq): put(u + i // per, tag, g)
    seq = []
    for i, s in enumerate((7, 8, 9)):
        for nt in range(5):
            g = []
            if nt == 0: g += p3.so_b(s)
            if nt in (0, 4): g += [f"s_add_u32 m0, s{sRe}, {5120 * i + 1024 * nt}", None]
            g += [f"buffer_load_dwordx4 v{vL if nt < 4 else vL2}, s[{sB}:{sB+3}], s{sSb} offen offset:{1024 * (nt & 3)}{SC1} lds"]
            seq.append((('l', s), g))
    u = xbar + 1
    per = -(-len(seq) // (31 - u))
    for i, (tag, g) in enumerate(seq): put(u + i // per, tag, g)
    ab = {bars[-1]: sl(5), xbar: sl(7)}
    ab[arr] = arrive + ab.get(arr, [])
    vq = p2.p2_loop(k, n0=n0, bars=bars, prio=prio, extra=extra, prof=prof, pattern=pattern, xbars=(xbar,), afterbar=ab, stamps=(13, 15) if fine else (4, 8))
    fb = p2.p2_finish(k, vq.wait('g2'), sRl)
    vq.q += ['o', 'o']
    if obar: k('s_barrier')
    k(st(9))
    tails.append(fb)
    vq.add(k, p3.slot_loads(3, 3, "a"), ('a', 3))
    vq.add(k, p3.g_loads(), 'g')
    k(f"v_add_u32 v{p3.vRe}, s{sRe}, v{vL}")
    def lds_b(buf, i):
        return [f"ds_read_b128 v[{BUFB[buf]+4*nt}:{BUFB[buf]+4*nt+3}], v{p3.vRe} offset:{5120*i + 1024*nt}" for nt in range(5)]
    for s in range(7):
        p3.compute_slot(k, vq, s, s % 4, nxt=(s + 4 if s < 6 else None), part=("ab" if s < 3 else "a"), first=(s == 0))
        if 3 <= s < 6:
            for x in lds_b(s % 4, s - 3): k(x)
        if s == 3: k(st(10))
    k("s_nop 7")
    p3.scale(k, vq)
    k(st(11))
    oregs = [BUFA[b] + r for b in (3, 0, 1) for r in range(16)]
    chk = [f"v_max3_u32 v5, v{oregs[0]}, v{oregs[1]}, v{oregs[2]}"] + [f"v_max3_u32 v5, v5, v{a}, v{b}" for a, b in zip(oregs[3::2], oregs[4::2])] + \
          [f"v_max_u32 v5, v5, v{oregs[-1]}", "v_cmp_eq_u32 vcc, -1, v5"]
    nm2, back2 = k.uniq("ospin"), k.uniq("oback")
    k("s_waitcnt vmcnt(0) lgkmcnt(0)")
    for x in chk: k(x)
    k(f"s_cbranch_vccnz {nm2}")
    k.label(back2)
    k(st(12))
    tails.append(lambda: spin_loop(k, nm2, [x for s, b in ((7, 3), (8, 0), (9, 1)) for x in p3.slot_loads(s, b, "a")], chk, back2))
    p3.o_phase(k, [3, 0, 1])
    k(st(13) if not fine else '')
    p3.reduce_store(k)
    if dbg:
        cond = None
        if dbg[1] is not None:
            m = sum(1 << i for i in range(16) if CB_TABLE[i] >= 10)
            cond = f"s_and_b32 s20, s2, 6\ns_lshl_b32 s20, s20, 1\ns_lshr_b32 s21, s2, 6\ns_add_u32 s20, s20, s21\ns_mov_b32 s21, {m}\ns_bitcmp1_b32 s21, s20\ns_cbranch_scc{1 - dbg[1]}"
        prof_dbg(k, 14, sDBG, op=dbg[0], cond=cond)
    elif prof: prof_out(k, 14, sWS, sW, area=area, mode=prof)
    k.label(END)
    k("s_endpgm")
    for t in tails: t()
    return k

if __name__ == "__main__":
    k = gen("f_kernel"); seen = set()
    for wg in (0, 3, 77, 71, 200, 255, 196):
        for w in (0, 3, 4, 7):
            for e in check(k, init=dict(wg=wg, wave=w), verbose=(w == 0)):
                if e not in seen: seen.add(e); print(e)
```

```python
from asmlib import *
from layout import *
import struct
def f32hex(x): return "0x%08x" % struct.unpack("<I", struct.pack("<f", x))[0]

sWS, sDBG, sW = 4, 6, 3
sX, sWt, sO = 8, 12, 16
sRb, sCb, sTg, sCg = 20, 21, 22, 23
sT = [24, 25, 26, 27, 28, 29, 30, 31]
sM0x, sM0w = 32, [33, 34, 35]
sSoX, sSoW, sStr = 36, 37, 38
sFb0, sMode, sSt2 = 39, 40, 41
sC = 42
sPtr = 48
X_SLOT, W_BASE, W_SLOT, W_UP = 16384, 49152, 22528, 11264
vDx, vDw = 1, [2, 3, 4]
vXa = [[5, 6], [7, 8]]
vWa, vWb = [9, 10], [11, 12]
FR = [16, 56]
ACC = 96
HP = 192
SC1 = " sc1"

def p1_setup(k, prof=False, pref=None, wsb=0):
    t = sT
    lo = sum(CB_TABLE[i] << (4 * i) for i in range(8)); hi = sum(CB_TABLE[8 + i] << (4 * i) for i in range(8))
    k(f"""
    s_load_dwordx16 s[{sPtr}:{sPtr+15}], s[0:1], 0
    s_load_dwordx2 s[{sWS}:{sWS+1}], s[0:1], 80
    s_load_dwordx2 s[{sDBG}:{sDBG+1}], s[0:1], 72
    {stamp(prof, 0)}
    v_lshrrev_b32 v1, 6, v0
    v_and_b32 v0, 63, v0
    s_and_b32 s{t[0]}, s2, 1
    v_readfirstlane_b32 s{sW}, v1
    s_lshl_b32 s{t[0]}, s{t[0]}, 3
    s_lshr_b32 s{t[1]}, s2, 3
    s_and_b32 s{t[2]}, s{t[1]}, 7
    s_add_u32 s{sRb}, s{t[0]}, s{t[2]}
    s_lshr_b32 s{t[1]}, s{t[1]}, 3
    s_and_b32 s{t[0]}, s2, 2
    s_lshl_b32 s{t[0]}, s{t[0]}, 1
    s_add_u32 s{t[1]}, s{t[1]}, s{t[0]}
    s_lshl_b32 s{t[1]}, s{t[1]}, 2
    s_and_b32 s{t[0]}, s2, 4
    s_mov_b32 s{t[2]}, {hex(hi)}
    s_cmp_eq_u32 s{t[0]}, 0
    s_cselect_b32 s{t[0]}, {hex(lo)}, s{t[2]}
    s_lshr_b32 s{t[0]}, s{t[0]}, s{t[1]}
    s_and_b32 s{sCb}, s{t[0]}, 15
    s_and_b32 s{sTg}, s{sW}, 1
    s_lshr_b32 s{sCg}, s{sW}, 1
    """)
    k(f"""
    s_lshl_b32 s{sM0x}, s{sW}, 10
    s_lshl_b32 s{t[0]}, s{sW}, 2
    v_lshrrev_b32 v5, 4, v0
    v_add_u32 v5, s{t[0]}, v5
    v_xor_b32 v5, v5, v0
    v_and_b32 v5, 7, v5
    v_lshlrev_b32 v5, 4, v5
    v_lshrrev_b32 v6, 3, v0
    s_mul_i32 s{t[0]}, s{sW}, {8*1280}
    v_mul_u32_u24 v6, 1280, v6
    v_add3_u32 v{vDx}, v5, v6, s{t[0]}
    s_mul_i32 s{t[1]}, s{sRb}, {128*1280}
    s_mov_b32 s{sX+2}, {128*1280}
    s_mov_b32 s{sX+3}, 0x00020000
    s_mov_b32 s{sWt+3}, 0x00020000
    s_mov_b32 s{sO+3}, 0x00020000
    """)
    LQ, LJ = k.uniq("qkvpar"), k.uniq("parj")
    k(f"""
    s_mov_b32 s{sSoX}, s{t[1]}
    s_cmp_ge_u32 s{sCb}, 10
    s_cbranch_scc1 {LQ}
    s_mul_i32 s{sFb0}, s{sCb}, 11
    s_cmp_eq_u32 s{sCb}, 9
    s_cselect_b32 s{sFb0}, 98, s{sFb0}
    s_mov_b32 s{t[2]}, 2979
    s_mov_b32 s{t[3]}, 22
    s_mov_b32 s{t[4]}, 3456
    s_lshl_b32 s{t[5]}, s{sFb0}, 5
    s_and_b32 s{t[6]}, s{sW}, 3
    s_mov_b32 s{t[7]}, 4
    s_mov_b32 s{sC}, 22
    s_lshr_b32 s{sC+1}, s{sW}, 2
    s_mul_i32 s{sC+1}, s{sC+1}, {W_UP}
    s_mov_b32 s{sWt+2}, {640*3456}
    s_branch {LJ}
    {LQ}:
    s_mov_b32 s{t[2]}, 1561
    s_mov_b32 s{t[3]}, 42
    s_mov_b32 s{t[4]}, 3840
    s_sub_u32 s{t[5]}, s{sCb}, 10
    s_mul_i32 s{t[5]}, s{t[5]}, 640
    s_mov_b32 s{t[6]}, s{sW}
    s_mov_b32 s{t[7]}, 8
    s_mov_b32 s{sC}, 40
    s_mov_b32 s{sC+1}, 0
    s_mov_b32 s{sWt+2}, {640*3840}
    {LJ}:
    s_lshl_b32 s{sStr}, s{t[4]}, 5
    s_mov_b32 s{sSoW}, 0
    v_mov_b32 v13, 0x7fff0000
    """)
    for i in range(3):
        k(f"""
        s_lshl_b32 s{t[0]}, s{t[6]}, 6
        v_add_u32 v5, s{t[0]}, v0
        v_mul_u32_u24 v6, s{t[2]}, v5
        v_lshrrev_b32 v6, 16, v6
        v_mul_u32_u24 v7, s{t[3]}, v6
        v_sub_u32 v7, v5, v7
        v_and_b32 v8, 0x13, v6
        v_and_b32 v9, 4, v6
        v_lshl_or_b32 v8, v9, 1, v8
        v_and_b32 v9, 8, v6
        v_lshrrev_b32 v9, 1, v9
        v_or_b32 v8, v8, v9
        v_mul_u32_u24 v8, s{t[4]}, v8
        v_cmp_gt_u32 vcc, s{sC}, v7
        v_lshl_add_u32 v8, v7, 4, v8
        v_add_u32 v8, s{t[5]}, v8
        v_cndmask_b32 v8, v13, v8, vcc
        v_cmp_gt_u32 vcc, 32, v6
        s_lshl_b32 s{t[0]}, s{t[6]}, 10
        s_add_u32 s{t[0]}, s{t[0]}, s{sC+1}
        v_cndmask_b32 v{vDw[i]}, v13, v8, vcc
        s_lshl_b32 s{t[1]}, s{t[6]}, 1
        s_cmp_lt_u32 s{t[1]}, s{t[3]}
        s_cselect_b32 s{sM0w[i]}, s{t[0]}, {163840 - W_BASE}
        s_add_u32 s{t[6]}, s{t[6]}, s{t[7]}
        """)
    if pref: pref_setup(k)
    k(f"""
    s_mov_b32 m0, s{sM0x}
    s_mov_b32 s{t[0]}, {64*1280}
    s_cmp_lt_u32 s{sW}, 4
    s_waitcnt lgkmcnt(0)
    s_cselect_b32 s{sWt}, s{sPtr+8}, s{sPtr+10}
    s_cselect_b32 s{sWt+1}, s{sPtr+9}, s{sPtr+11}
    s_cmp_ge_u32 s{sCb}, 10
    s_cselect_b32 s{sWt}, s{sPtr+2}, s{sWt}
    s_cselect_b32 s{sWt+1}, s{sPtr+3}, s{sWt+1}
    s_add_u32 s{sX}, s{sPtr}, s{sSoX}
    s_addc_u32 s{sX+1}, s{sPtr+1}, 0
    """)
    if wsb: k(f"s_add_u32 s{sWS}, s{sWS}, {hex(wsb)}\ns_addc_u32 s{sWS+1}, s{sWS+1}, 0")
    pre = pref_loads(*pref).get('pre', []) if pref else []
    for g in pre:
        for x in g: k(x)
    k(f"""
    buffer_load_dwordx4 v{vDx}, s[{sX}:{sX+3}], 0 offen lds
    s_add_u32 m0, s{sM0x}, 8192
    s_nop 0
    buffer_load_dwordx4 v{vDx}, s[{sX}:{sX+3}], s{t[0]} offen lds
    """)
    for i in range(3):
        k(f"""
        s_add_u32 m0, s{sM0w[i]}, {W_BASE}
        s_nop 0
        buffer_load_dwordx4 v{vDw[i]}, s[{sWt}:{sWt+3}], 0 offen lds
        """)

vPf = 240
def pref_setup(k):
    t = sT
    k(f"""
    s_movk_i32 s{sC+2}, 316
    s_lshr_b32 s{t[6]}, s{sW}, 2
    s_lshl_b32 s{t[6]}, s{t[6]}, 1
    s_cmp_ge_u32 s{sCb}, 10
    s_cselect_b32 s{t[0]}, 3, 2
    s_cselect_b32 s{t[1]}, 7, 3
    s_cselect_b32 s{t[6]}, s{t[6]}, 0
    s_cselect_b32 s{t[2]}, 512, s{sC+2}
    s_cmp_lt_u32 s{sCb}, 8
    s_cselect_b32 s{t[2]}, 348, s{t[2]}
    s_and_b32 s{t[3]}, s{sW}, 3
    s_lshl_b32 s{t[3]}, s{t[3]}, 3
    s_and_b32 s{t[7]}, s{sRb}, 7
    s_add_u32 s{t[3]}, s{t[3]}, s{t[7]}
    s_lshl_b32 s{t[3]}, s{t[3]}, 2
    s_add_u32 s{t[6]}, s{t[6]}, s{t[3]}
    v_lshrrev_b32 v5, s{t[0]}, v0
    v_add_u32 v5, s{t[6]}, v5
    v_mul_u32_u24 v5, s{t[4]}, v5
    v_and_b32 v6, s{t[1]}, v0
    v_lshlrev_b32 v6, 7, v6
    v_min_u32 v6, s{t[2]}, v6
    v_cmp_gt_u32 vcc, 16, v0
    v_add3_u32 v5, v5, v6, s{t[5]}
    s_lshr_b32 s{t[0]}, s2, 6
    v_cndmask_b32 v{vPf}, v13, v5, vcc
    s_lshl_b32 s{t[0]}, s{t[0]}, 3
    s_add_u32 s{t[0]}, s{t[0]}, s{sW}
    s_mul_i32 s{t[0]}, s{t[0]}, {4*1280}
    v_lshrrev_b32 v5, 1, v0
    v_mul_u32_u24 v5, 1280, v5
    v_and_b32 v6, 1, v0
    v_lshlrev_b32 v6, 7, v6
    v_cmp_gt_u32 vcc, 8, v0
    v_add3_u32 v5, v5, v6, s{t[0]}
    s_nop 0
    v_cndmask_b32 v{vPf+1}, v13, v5, vcc
    """)
def pref_loads(ww, wx, mod=""):
    t = sT
    out = {}
    for j in range(5):
        out.setdefault(wx[j], []).append([f"buffer_load_dword v{vPf+3}, v{vPf+1}, s[{sX}:{sX+3}], 0 offen offset:{256*j}{mod}"])
        out.setdefault(ww[j], []).append([f"s_mul_i32 s{t[1]}, s{sStr}, {4*j}", f"buffer_load_dword v{vPf+2}, v{vPf}, s[{sWt}:{sWt+3}], s{t[1]} offen{mod}"])
    out.pop(None, None)
    return out

def dma_group(n, NW):
    out = []
    if n >= 20: return out
    out.append([f"s_add_u32 s{sSoW}, s{sSoW}, s{sStr}"])
    for i in range(3):
        out.append([f"s_add_u32 m0, s{sM0w[i]}, {W_BASE + (n % NW) * W_SLOT}", None, f"buffer_load_dwordx4 v{vDw[i]}, s[{sWt}:{sWt+3}], s{sSoW} offen lds"])
    if n % 2 == 0:
        c = n // 2
        for h in range(2):
            out.append([f"s_add_u32 m0, s{sM0x}, {(c % 3) * X_SLOT + h * 8192}", f"s_mov_b32 s{sSoX}, {h * 64 * 1280 + c * 128}",
                        f"buffer_load_dwordx4 v{vDx}, s[{sX}:{sX+3}], s{sSoX} offen lds"])
    return out
def ndma(n): return 0 if n >= 20 else (5 if n % 2 == 0 else 3)

def p1_addr(k, var):
    t = sT
    pitch = 352 if var[0] == 'F' else 672
    k(f"""
    v_and_b32 v13, 15, v0
    v_lshrrev_b32 v14, 4, v0
    v_lshrrev_b32 v15, 1, v13
    v_xor_b32 v15, v15, v14
    v_lshlrev_b32 v15, 4, v15
    v_lshl_add_u32 v15, v13, 7, v15
    s_lshl_b32 s{t[0]}, s{sTg}, 13
    """)
    if var == 'F20':
        k(f"""
        s_cmp_eq_u32 s{sMode}, 2
        s_cselect_b32 s{t[1]}, 4096, 0
        s_add_u32 s{t[0]}, s{t[0]}, s{t[1]}
        """)
    k(f"""
    v_add_u32 v{vXa[0][0]}, s{t[0]}, v15
    v_xor_b32 v{vXa[0][1]}, 4096, v{vXa[0][0]}
    v_xor_b32 v{vXa[1][0]}, 64, v{vXa[0][0]}
    v_xor_b32 v{vXa[1][1]}, 64, v{vXa[0][1]}
    v_lshrrev_b32 v13, 2, v0
    v_and_b32 v15, 7, v13
    v_and_b32 v13, 8, v13
    v_lshl_or_b32 v15, v13, 1, v15
    v_mul_u32_u24 v15, {pitch}, v15
    v_and_b32 v13, 3, v0
    v_mul_u32_u24 v13, {40 if var == 'QK' else 8}, v13
    """)
    if var[0] == 'F':
        k(f"""
        s_lshl_b32 s{t[0]}, s{t[2]}, 5
        s_add_u32 s{t[0]}, s{t[0]}, {W_BASE}
        s_lshl_b32 s{t[1]}, s{t[3]}, 5
        s_add_u32 s{t[1]}, s{t[1]}, {W_BASE}
        v_add3_u32 v{vWa[0]}, v13, v15, s{t[0]}
        v_add3_u32 v{vWb[0]}, v13, v15, s{t[1]}
        v_add_u32 v{vWa[1]}, {2*W_SLOT}, v{vWa[0]}
        v_add_u32 v{vWb[1]}, {2*W_SLOT}, v{vWb[0]}
        """)
    else:
        k(f"""
        s_mul_i32 s{t[0]}, s{sCg}, 160
        s_add_u32 s{t[0]}, s{t[0]}, {W_BASE}
        v_add3_u32 v{vWa[0]}, v13, v15, s{t[0]}
        v_add_u32 v{vWa[1]}, {2*W_SLOT}, v{vWa[0]}
        """)

def frag_reads(var, s, NW):
    fs = FR[s & 1]
    out = []
    for tt in range(4):
        out.append(f"ds_read_b128 v[{fs+4*tt}:{fs+4*tt+3}], v{vXa[s & 1][tt >> 1]} offset:{((s // 2) % 3) * X_SLOT + (tt & 1) * 2048}")
    slot = s % NW
    hb = 1 if slot >= 2 else 0
    so = (slot - 2 * hb) * W_SLOT
    w0 = fs + 16
    if var[0] == 'F':
        for sl in range(3):
            for up in range(2):
                r = w0 + 4 * (2 * sl + up)
                a = vWa[hb] if sl < 2 else vWb[hb]
                for j in range(2):
                    out.append(f"ds_read_b64_tr_b16 v[{r+2*j}:{r+2*j+1}], v{a} offset:{so + up * W_UP + (32 if sl == 1 else 0) + j * 8 * 352}")
    else:
        for tl in range(5):
            r = w0 + 4 * tl
            for j in range(2):
                out.append(f"ds_read_b64_tr_b16 v[{r+2*j}:{r+2*j+1}], v{vWa[hb]} offset:{so + tl * (8 if var == 'QK' else 32) + j * 8 * 672}")
    return out

def acc_reg(var, tt, c):
    return ACC + 4 * (tt * (6 if var[0] == 'F' else 5) + c)
def mfmas(var, s):
    fs = FR[s & 1]
    out = []
    nc = 6 if var[0] == 'F' else 5
    for tt in range(4):
        for c in range(nc):
            if var == 'F20' and tt >= 2 and c >= 4: continue
            d = acc_reg(var, tt, c)
            X, W = f"v[{fs+4*tt}:{fs+4*tt+3}]", f"v[{fs+16+4*c}:{fs+19+4*c}]"
            a, b = (X, W) if var == 'V' else (W, X)
            out.append(f"v_mfma_f32_16x16x32_bf16 v[{d}:{d+3}], {a}, {b}, " + ("0" if s == 0 else f"v[{d}:{d+3}]"))
    return out

def p1_loop(k, var, NW, prof=False, compute=True, hooks=None, pro=None, pbar=(0, 1), fine=True, paced=False, tail=None):
    hooks = hooks or {}
    vq = VQ([0] * 5)
    nxt = 2 if paced else NW
    for n in range(1, nxt):
        if n - 1 in pbar: k("s_barrier")
        for g in dma_group(n, NW): vq.add(k, g, n)
    p1_addr(k, var)
    if pro: pro(k, vq)
    k(f"s_waitcnt vmcnt({vq.wait(0)})")
    k("s_barrier")
    k(stamp(prof, 1))
    for x in frag_reads(var, 0, NW): k(x)
    for (tag, y) in hooks.get('b', []): vq.add(k, y, tag)
    if paced:
        for g in dma_group(2, NW): vq.add(k, g, 2)
        nxt = 3
    for s in range(20):
        k(f"s_waitcnt vmcnt({vq.wait(s + 1)}) lgkmcnt(0)")
        k("s_barrier")
        if prof == "rt" and fine and s % 2 == 1: k(stamp(prof, 2 + s // 2))
        m = mfmas(var, s) if compute else []
        r = frag_reads(var, s + 1, NW) if (s < 19 and compute) else []
        g = list(hooks.get(s - 0.5, []))
        for _ in range(2):
            if nxt <= s + NW and nxt < 20:
                y = dma_group(nxt, NW)
                g += [(nxt, y[0] + y[1])] + [(nxt, z) for z in y[2:]]
                nxt += 1
        g += [(tag, y) for (tag, y) in hooks.get(s, [])]
        seq = []
        ri = gi = 0
        slots = len(m) - (len(r) + 1) // 2
        every = 2 if slots >= 2 * len(g) else 1
        for i, x in enumerate(m):
            seq.append(x)
            if ri < len(r):
                seq += r[ri:ri + 2]; ri += 2
            elif gi < len(g) and (i % every == 0):
                seq += vq.note(g[gi][1], g[gi][0]); gi += 1
        for y in g[gi:]: seq += vq.note(y[1], y[0])
        if s == 19 and tail:
            seq, nc = [], len(m) // 4
            for i, x in enumerate(m):
                seq.append(x)
                tt, c = divmod(i, nc)
                if tt >= 2:
                    e = tail[tt - 2]
                    seq += e[c * len(e) // nc:(c + 1) * len(e) // nc]
                elif i == 0: seq += tail[4]
            seq += tail[2] + tail[3]
        for x in seq: k(x or "s_nop 0")
    k(stamp(prof, 12 if (prof == 'rt' and fine) else 2))
    return vq

def ffn_wave_params(k):
    t = sT
    L10, LJ = k.uniq("b10"), k.uniq("bj")
    k(f"""
    s_cmp_ge_u32 s{sCb}, 8
    s_cbranch_scc1 {L10}
    s_mul_i32 s{t[2]}, s{sCg}, 3
    s_add_u32 s{t[3]}, s{t[2]}, 2
    s_add_u32 s{t[0]}, s{sCb}, 40
    s_lshl_b32 s{t[0]}, s{t[0]}, 3
    s_add_u32 s{t[0]}, s{t[0]}, s{sCg}
    s_lshl_b32 s{t[4]}, s{sCg}, 1
    s_add_u32 s{t[4]}, s{t[4]}, 2
    s_lshr_b32 s{t[1]}, s{sCb}, 1
    s_add_u32 s{t[1]}, s{t[1]}, 50
    s_lshl_b32 s{t[1]}, s{t[1]}, 3
    s_and_b32 s{t[5]}, s{sCb}, 1
    s_add_u32 s{t[1]}, s{t[1]}, s{t[5]}
    s_sub_u32 s{sMode}, s{sCg}, 1
    s_cmp_lt_u32 s{sCg}, 2
    s_cselect_b32 s{t[2]}, s{t[2]}, s{t[4]}
    s_cselect_b32 s{t[3]}, s{t[3]}, 10
    s_cselect_b32 s{sSt2}, s{t[0]}, s{t[1]}
    s_cselect_b32 s{sMode}, 0, s{sMode}
    s_branch {LJ}
    {L10}:
    s_lshl_b32 s{t[2]}, s{sCg}, 1
    s_lshr_b32 s{t[0]}, s{sCg}, 1
    s_add_u32 s{t[3]}, s{t[0]}, 8
    s_add_u32 s{sSt2}, s{sCb}, 40
    s_lshl_b32 s{sSt2}, s{sSt2}, 3
    s_add_u32 s{sSt2}, s{sSt2}, s{t[0]}
    s_and_b32 s{sMode}, s{sCg}, 1
    s_add_u32 s{sMode}, s{sMode}, 1
    {LJ}:
    s_lshl_b32 s{sSt2}, s{sSt2}, 9
    """)

def gelu_math(k, var):
    c1 = -2.0 * 1.4426950408889634 * (2.0 / 3.141592653589793) ** 0.5
    k(f"""
    s_mov_b32 s60, {f32hex(c1 * 0.044715)}
    s_mov_b32 s61, {f32hex(c1 * 0.044715)}
    v_mov_b32 v220, {f32hex(c1)}
    v_mov_b32 v221, {f32hex(c1)}
    """)
    items = []
    for tt in range(4):
        for sl in range(2): items.append((tt, sl, HP + 4 * tt + 2 * sl))
        if tt < (4 if var == 'F24' else 2): items.append((tt, 2, HP + 16 + 2 * tt))
    P = lambda r: f"v[{r}:{r+1}]"
    def stage(n, ph):
        tt, sl, dst = items[n]
        g, u = acc_reg(var, tt, 2 * sl), acc_reg(var, tt, 2 * sl + 1)
        z = 16 + 4 * (n % 4)
        if ph == 0:
            return [f"v_pk_mul_f32 {P(z+2*h)}, {P(g+2*h)}, {P(g+2*h)}" for h in range(2)] + \
                   [f"v_pk_fma_f32 {P(z+2*h)}, {P(z+2*h)}, s[60:61], v[220:221]" for h in range(2)] + \
                   [f"v_pk_mul_f32 {P(z+2*h)}, {P(z+2*h)}, {P(g+2*h)}" for h in range(2)]
        if ph == 1:
            return [f"v_exp_f32 v{z+i}, v{z+i}" for i in range(4)] + [f"v_pk_mul_f32 {P(u+2*h)}, {P(u+2*h)}, {P(g+2*h)}" for h in range(2)] + \
                   [f"v_pk_add_f32 {P(z+2*h)}, {P(z+2*h)}, 1.0 op_sel_hi:[1,0]" for h in range(2)]
        return [f"v_rcp_f32 v{z+i}, v{z+i}" for i in range(4)] + ["s_nop 0"] + [f"v_pk_mul_f32 {P(u+2*h)}, {P(u+2*h)}, {P(z+2*h)}" for h in range(2)] + \
               [f"v_cvt_pk_bf16_f32 v{dst+h}, v{u+2*h}, v{u+2*h+1}" for h in range(2)]
    out = []
    for n in range(len(items)):
        for ph in range(3): out += stage(n, ph)
    return out

def h_store_setup(k, var):
    t = sT
    k(f"""
    s_lshl_b32 s{t[0]}, s{sRb}, 1
    s_add_u32 s{t[0]}, s{t[0]}, s{sTg}
    s_mul_i32 s{t[0]}, s{t[0]}, {A2_BLK}
    s_add_u32 s{t[0]}, s{t[0]}, {WS_A2}
    s_add_u32 s{sO}, s{sWS}, s{t[0]}
    s_addc_u32 s{sO+1}, s{sWS+1}, 0
    s_mov_b32 s{sO+2}, {A2_BLK}
    s_lshl_b32 s{t[0]}, s{sCb}, 2
    s_add_u32 s{t[0]}, s{t[0]}, s{sCg}
    s_lshl_b32 s{t[0]}, s{t[0]}, 12
    s_cmp_eq_u32 s{sMode}, 2
    s_cselect_b32 s{t[1]}, 2048, 0
    s_add_u32 s{t[0]}, s{t[0]}, s{t[1]}
    s_add_u32 s{t[1]}, s{t[1]}, s{sSt2}
    v_lshlrev_b32 v13, 4, v0
    v_add_u32 v{HP+24}, s{t[0]}, v13
    v_xor_b32 v{HP+25}, 2048, v{HP+24}
    v_and_b32 v{HP+26}, 512, v13
    v_add3_u32 v{HP+26}, v{HP+26}, v13, s{t[1]}
    """)
def h_stores(var):
    out = []
    for pr in range(2 if var == 'F24' else 1):
        for h in range(2): out.append(f"v_permlane32_swap_b32 v{HP+16+4*pr+h}, v{HP+18+4*pr+h}")
    for tt in range(4):
        out.append(f"buffer_store_dwordx4 v[{HP+4*tt}:{HP+4*tt+3}], v{HP+24+(tt>>1)}, s[{sO}:{sO+3}], 0 offen offset:{(tt&1)*1024}{SC1}")
    for pr in range(2 if var == 'F24' else 1):
        out.append(f"buffer_store_dwordx4 v[{HP+16+4*pr}:{HP+19+4*pr}], v{HP+26}, s[{sO}:{sO+3}], 0 offen offset:{pr*2048}{SC1}")
    return out

def qk_epilogue(k):
    t = sT
    LK, LJ = k.uniq("isk"), k.uniq("qkj")
    k(f"""
    s_and_b32 s{t[3]}, s{sCb}, 1
    s_lshl_b32 s{t[3]}, s{t[3]}, 2
    s_add_u32 s{t[3]}, s{t[3]}, s{sCg}
    s_lshl_b32 s{t[3]}, s{t[3]}, 8
    s_lshl_b32 s{t[4]}, s{sRb}, 2
    s_add_u32 s{t[3]}, s{t[3]}, s{t[4]}
    s_lshl_b32 s{t[4]}, s{sTg}, 1
    s_add_u32 s{t[3]}, s{t[3]}, s{t[4]}
    v_and_b32 v13, 15, v0
    v_lshrrev_b32 v14, 4, v0
    s_cmp_ge_u32 s{sCb}, 12
    s_cbranch_scc1 {LK}
    s_mov_b32 s{t[0]}, {WS_Q}
    s_mov_b32 s{t[1]}, {Q_TILE}
    s_mov_b32 s{t[5]}, 16
    s_mov_b32 s{sC}, {f32hex(QSCALE)}
    s_mov_b32 s{sC+1}, {f32hex(QSCALE)}
    """)
    for r in range(0, 80, 2): k(f"v_pk_mul_f32 v[{ACC+r}:{ACC+r+1}], v[{ACC+r}:{ACC+r+1}], s[{sC}:{sC+1}]")
    k(f"""
    s_branch {LJ}
    {LK}:
    s_mov_b32 s{t[0]}, {WS_KV}
    s_mov_b32 s{t[1]}, {KV_TILE}
    s_mov_b32 s{t[5]}, 8
    v_and_b32 v15, 8, v13
    v_add_u32 v13, v13, v15
    {LJ}:
    s_mul_i32 s{t[3]}, s{t[3]}, s{t[1]}
    s_add_u32 s{t[0]}, s{t[0]}, s{t[3]}
    s_add_u32 s{sO}, s{sWS}, s{t[0]}
    s_addc_u32 s{sO+1}, s{sWS+1}, 0
    s_lshl_b32 s{t[2]}, s{t[1]}, 6
    s_lshl_b32 s{sO+2}, s{t[1]}, 8
    v_mul_u32_u24 v14, s{t[2]}, v14
    v_add_u32 v15, s{t[5]}, v13
    v_lshl_add_u32 v5, v13, 4, v14
    v_lshl_add_u32 v6, v15, 4, v14
    v_lshl_add_u32 v7, v13, 3, v14
    v_lshl_add_u32 v8, v15, 3, v14
    """)
    for tt in range(4):
        o = 16 + 12 * tt
        for c in range(5):
            a = acc_reg('QK', tt, c)
            for h in range(2): k(f"v_cvt_pk_bf16_f32 v{o+2*c+h}, v{a+2*h}, v{a+2*h+1}")
        so = "0" if tt < 2 else f"s{t[1]}"
        k(f"buffer_store_dwordx4 v[{o}:{o+3}], v{5+(tt&1)}, s[{sO}:{sO+3}], {so} offen{SC1}")
        k(f"buffer_store_dwordx4 v[{o+4}:{o+7}], v{5+(tt&1)}, s[{sO}:{sO+3}], {so} offen offset:512{SC1}")
        k(f"buffer_store_dwordx2 v[{o+8}:{o+9}], v{7+(tt&1)}, s[{sO}:{sO+3}], {so} offen offset:1024{SC1}")

def v_epilogue(k):
    t = sT
    k(f"""
    s_and_b32 s{t[3]}, s{sCb}, 1
    s_lshl_b32 s{t[3]}, s{t[3]}, 2
    s_add_u32 s{t[3]}, s{t[3]}, s{sCg}
    s_lshl_b32 s{t[3]}, s{t[3]}, 8
    s_lshl_b32 s{t[4]}, s{sRb}, 2
    s_add_u32 s{t[3]}, s{t[3]}, s{t[4]}
    s_lshl_b32 s{t[4]}, s{sTg}, 1
    s_add_u32 s{t[3]}, s{t[3]}, s{t[4]}
    s_mul_i32 s{t[3]}, s{t[3]}, {KV_TILE}
    s_add_u32 s{t[3]}, s{t[3]}, {WS_KV}
    s_add_u32 s{sO}, s{sWS}, s{t[3]}
    s_addc_u32 s{sO+1}, s{sWS+1}, 0
    s_mov_b32 s{sO+2}, {4*KV_HEAD}
    s_mov_b32 s{t[0]}, {KV_HEAD - 320}
    v_lshrrev_b32 v14, 4, v0
    v_mul_u32_u24 v14, 320, v14
    v_and_b32 v13, 15, v0
    """)
    for c in range(5):
        k(f"""
        v_add_u32 v15, {16*c}, v13
        v_mul_u32_u24 v{5+c}, 3277, v15
        v_lshrrev_b32 v{5+c}, 16, v{5+c}
        v_mul_u32_u24 v{5+c}, s{t[0]}, v{5+c}
        v_lshl_add_u32 v15, v15, 4, v14
        v_add_u32 v{5+c}, v{5+c}, v15
        """)
    n = 0
    for pr in range(2):
        for c in range(5):
            o = 16 + 4 * n; n += 1
            for b in range(2):
                a = acc_reg('V', 2 * pr + b, c)
                for h in range(2): k(f"v_cvt_pk_bf16_f32 v{o+2*b+h}, v{a+2*h}, v{a+2*h+1}")
            k(f"buffer_store_dwordx4 v[{o}:{o+3}], v{5+c}, s[{sO}:{sO+3}], 0 offen offset:{1280 + pr*KV_TILE}{SC1}")

def qk_tail():
    t = sT
    pre = f"""
    s_and_b32 s{t[3]}, s{sCb}, 1
    s_lshl_b32 s{t[3]}, s{t[3]}, 2
    s_add_u32 s{t[3]}, s{t[3]}, s{sCg}
    s_lshl_b32 s{t[3]}, s{t[3]}, 8
    s_lshl_b32 s{t[4]}, s{sRb}, 2
    s_add_u32 s{t[3]}, s{t[3]}, s{t[4]}
    s_lshl_b32 s{t[4]}, s{sTg}, 1
    s_add_u32 s{t[3]}, s{t[3]}, s{t[4]}
    v_and_b32 v13, 15, v0
    v_lshrrev_b32 v14, 4, v0
    s_mov_b32 s{t[0]}, {WS_Q}
    s_mov_b32 s{t[1]}, {Q_TILE}
    s_mov_b32 s{sC}, {f32hex(QSCALE)}
    s_cmp_ge_u32 s{sCb}, 12
    s_cselect_b32 s{t[0]}, {WS_KV}, s{t[0]}
    s_cselect_b32 s{t[1]}, {KV_TILE}, s{t[1]}
    s_cselect_b32 s{t[5]}, 8, 16
    s_cselect_b32 s{t[6]}, 8, 0
    s_cselect_b32 s{sC}, 1.0, s{sC}
    s_mov_b32 s{sC+1}, s{sC}
    v_and_b32 v15, s{t[6]}, v13
    v_add_u32 v13, v13, v15
    s_mul_i32 s{t[3]}, s{t[3]}, s{t[1]}
    s_add_u32 s{t[0]}, s{t[0]}, s{t[3]}
    s_add_u32 s{sO}, s{sWS}, s{t[0]}
    s_addc_u32 s{sO+1}, s{sWS+1}, 0
    s_lshl_b32 s{t[2]}, s{t[1]}, 6
    s_lshl_b32 s{sO+2}, s{t[1]}, 8
    v_mul_u32_u24 v14, s{t[2]}, v14
    v_add_u32 v15, s{t[5]}, v13
    v_lshl_add_u32 v5, v13, 4, v14
    v_lshl_add_u32 v6, v15, 4, v14
    v_lshl_add_u32 v7, v13, 3, v14
    v_lshl_add_u32 v8, v15, 3, v14
    """
    out = []
    for tt in range(4):
        o = 16 + 12 * tt
        e = []
        for c in range(5):
            a = acc_reg('QK', tt, c)
            e += [f"v_pk_mul_f32 v[{a+2*h}:{a+2*h+1}], v[{a+2*h}:{a+2*h+1}], s[{sC}:{sC+1}]" for h in range(2)]
            e += [f"v_cvt_pk_bf16_f32 v{o+2*c+h}, v{a+2*h}, v{a+2*h+1}" for h in range(2)]
            so = "0" if tt < 2 else f"s{t[1]}"
            if c == 1: e.append(f"buffer_store_dwordx4 v[{o}:{o+3}], v{5+(tt&1)}, s[{sO}:{sO+3}], {so} offen{SC1}")
            if c == 3: e.append(f"buffer_store_dwordx4 v[{o+4}:{o+7}], v{5+(tt&1)}, s[{sO}:{sO+3}], {so} offen offset:512{SC1}")
            if c == 4: e.append(f"buffer_store_dwordx2 v[{o+8}:{o+9}], v{7+(tt&1)}, s[{sO}:{sO+3}], {so} offen offset:1024{SC1}")
        out.append(e)
    return out + [[x.strip() for x in pre.strip().split("\n")]]

def v_tail():
    t = sT
    pre = f"""
    s_and_b32 s{t[3]}, s{sCb}, 1
    s_lshl_b32 s{t[3]}, s{t[3]}, 2
    s_add_u32 s{t[3]}, s{t[3]}, s{sCg}
    s_lshl_b32 s{t[3]}, s{t[3]}, 8
    s_lshl_b32 s{t[4]}, s{sRb}, 2
    s_add_u32 s{t[3]}, s{t[3]}, s{t[4]}
    s_lshl_b32 s{t[4]}, s{sTg}, 1
    s_add_u32 s{t[3]}, s{t[3]}, s{t[4]}
    s_mul_i32 s{t[3]}, s{t[3]}, {KV_TILE}
    s_add_u32 s{t[3]}, s{t[3]}, {WS_KV}
    s_add_u32 s{sO}, s{sWS}, s{t[3]}
    s_addc_u32 s{sO+1}, s{sWS+1}, 0
    s_mov_b32 s{sO+2}, {4*KV_HEAD}
    s_mov_b32 s{t[0]}, {KV_HEAD - 320}
    v_lshrrev_b32 v14, 4, v0
    v_mul_u32_u24 v14, 320, v14
    v_and_b32 v13, 15, v0
    """
    for c in range(5):
        pre += f"""v_add_u32 v15, {16*c}, v13
        v_mul_u32_u24 v{5+c}, 3277, v15
        v_lshrrev_b32 v{5+c}, 16, v{5+c}
        v_mul_u32_u24 v{5+c}, s{t[0]}, v{5+c}
        v_lshl_add_u32 v15, v15, 4, v14
        v_add_u32 v{5+c}, v{5+c}, v15
        """
    out = []
    for tt in range(4):
        pr, b = divmod(tt, 2)
        e = []
        for c in range(5):
            o = 16 + 4 * (5 * pr + c)
            a = acc_reg('V', tt, c)
            e += [f"v_cvt_pk_bf16_f32 v{o+2*b+h}, v{a+2*h}, v{a+2*h+1}" for h in range(2)]
            if b: e.append(f"buffer_store_dwordx4 v[{o}:{o+3}], v{5+c}, s[{sO}:{sO+3}], 0 offen offset:{1280 + pr*KV_TILE}{SC1}")
        out.append(e)
    return out + [[x.strip() for x in pre.strip().split("\n")]]

def side_jobs(k):
    t = sT
    LN, LG = k.uniq("nojob"), k.uniq("nogate")
    sJ, sA, sB1, sB2_, sCj = t[0], t[1], t[2], t[3], t[4]
    sSt, sCq = sFb0, sMode
    L = [k.uniq(f"ty{i}") for i in range(5)]
    k(f"""
    s_sub_u32 s{sJ}, s{sCb}, 10
    s_lshl_b32 s{sJ}, s{sJ}, 4
    s_add_u32 s{sJ}, s{sJ}, s{sRb}
    s_lshl_b32 s{sJ}, s{sJ}, 3
    s_add_u32 s{sJ}, s{sJ}, s{sW}
    s_cmp_ge_u32 s{sJ}, 740
    s_cbranch_scc1 {LN}
    s_mul_i32 s{sSt}, s{sJ}, 6554
    s_lshr_b32 s{sSt}, s{sSt}, 16
    s_mul_i32 s{sCq}, s{sSt}, 10
    s_sub_u32 s{sCq}, s{sJ}, s{sCq}
    s_mov_b32 s{sB1}, 4
    s_mov_b32 s{sCj}, 8
    s_cmp_ge_u32 s{sSt}, 70
    s_cbranch_scc1 {L[4]}
    s_cmp_ge_u32 s{sSt}, 54
    s_cbranch_scc1 {L[3]}
    s_cmp_ge_u32 s{sSt}, 50
    s_cbranch_scc1 {L[2]}
    s_cmp_ge_u32 s{sSt}, 40
    s_cbranch_scc1 {L[1]}
    s_lshr_b32 s{t[5]}, s{sSt}, 2
    s_and_b32 s{t[6]}, s{sSt}, 3
    s_mul_i32 s{sA}, s{t[5]}, 11
    s_cmp_eq_u32 s{t[5]}, 9
    s_cselect_b32 s{sA}, 98, s{sA}
    s_lshl_b32 s{t[7]}, s{t[6]}, 1
    s_add_u32 s{sA}, s{sA}, s{t[7]}
    s_min_u32 s{t[6]}, s{t[6]}, 2
    s_cmp_lt_u32 s{t[5]}, 8
    s_cselect_b32 s{t[6]}, s{t[6]}, 0
    s_add_u32 s{sA}, s{sA}, s{t[6]}
    s_lshl_b32 s{sA}, s{sA}, 4
    s_mov_b32 s{sB2_}, 8
    s_mov_b32 s{sCj}, 16
    s_branch {L[0]}
    {L[1]}:
    s_sub_u32 s{t[5]}, s{sSt}, 40
    s_mul_i32 s{sA}, s{t[5]}, 11
    s_cmp_eq_u32 s{t[5]}, 9
    s_cselect_b32 s{sA}, 98, s{sA}
    s_cmp_lt_u32 s{t[5]}, 8
    s_cselect_b32 s{t[6]}, 2, 8
    s_cselect_b32 s{sB2_}, 48, 16
    s_add_u32 s{sA}, s{sA}, s{t[6]}
    s_lshl_b32 s{sA}, s{sA}, 4
    s_branch {L[0]}
    {L[2]}:
    s_sub_u32 s{t[5]}, s{sSt}, 50
    s_mul_i32 s{sA}, s{t[5]}, {22*16}
    s_add_u32 s{sA}, s{sA}, 160
    s_mov_b32 s{sB2_}, {11*16}
    s_branch {L[0]}
    {L[3]}:
    s_sub_u32 s{t[5]}, s{sSt}, 54
    s_mul_i32 s{sA}, s{t[5]}, 40
    s_mov_b32 s{sB2_}, 20
    s_branch {L[0]}
    {L[4]}:
    s_sub_u32 s{t[5]}, s{sSt}, 70
    s_mul_i32 s{sA}, s{t[5]}, 160
    s_add_u32 s{sA}, s{sA}, 16
    s_mov_b32 s{sB1}, 40
    s_mov_b32 s{sB2_}, 80
    s_mov_b32 s{sCj}, 20
    {L[0]}:
    s_mov_b32 s{t[5]}, {1728*1280}
    s_cmp_ge_u32 s{sSt}, 54
    s_cselect_b32 s{sWt}, s{sPtr+4}, s{sPtr+12}
    s_cselect_b32 s{sWt+1}, s{sPtr+5}, s{sPtr+13}
    s_cselect_b32 s{sWt+2}, {640*1280}, s{t[5]}
    v_lshrrev_b32 v5, 5, v0
    v_mul_u32_u24 v5, s{sCj}, v5
    v_lshrrev_b32 v6, 3, v0
    v_and_b32 v6, 3, v6
    v_add_u32 v5, v5, v6
    v_mul_u32_u24 v5, 1280, v5
    v_and_b32 v6, 7, v0
    v_lshl_add_u32 v5, v6, 4, v5
    s_lshl_b32 s{t[5]}, s{sCq}, 7
    v_add_u32 v5, s{t[5]}, v5
    s_mul_i32 s{sA}, s{sA}, 1280
    s_mul_i32 s{sB1}, s{sB1}, 1280
    s_mul_i32 s{sB2_}, s{sB2_}, 1280
    s_lshl_b32 s{t[5]}, s{sW}, 12
    s_mov_b32 m0, s{t[5]}
    s_add_u32 s{t[6]}, s{sA}, s{sB1}
    buffer_load_dwordx4 v5, s[{sWt}:{sWt+3}], s{sA} offen lds
    s_add_u32 m0, m0, 1024
    s_add_u32 s{sA}, s{sA}, s{sB2_}
    buffer_load_dwordx4 v5, s[{sWt}:{sWt+3}], s{t[6]} offen lds
    s_add_u32 m0, m0, 1024
    s_add_u32 s{t[6]}, s{t[6]}, s{sB2_}
    buffer_load_dwordx4 v5, s[{sWt}:{sWt+3}], s{sA} offen lds
    s_add_u32 m0, m0, 1024
    s_mov_b32 s{sO+2}, {8*B2_BLK}
    buffer_load_dwordx4 v5, s[{sWt}:{sWt+3}], s{t[6]} offen lds
    s_add_u32 s{sO}, s{sWS}, {WS_B2}
    s_addc_u32 s{sO+1}, s{sWS+1}, 0
    v_lshrrev_b32 v6, 4, v0
    v_lshlrev_b32 v6, 10, v6
    v_lshrrev_b32 v7, 2, v0
    v_and_b32 v7, 3, v7
    v_lshl_add_u32 v6, v7, 7, v6
    v_and_b32 v7, 3, v0
    v_lshl_add_u32 v6, v7, 3, v6
    v_add_u32 v6, s{t[5]}, v6
    v_lshlrev_b32 v7, 4, v0
    s_lshl_b32 s{sCq}, s{sCq}, 2
    s_mul_i32 s{sSt}, s{sSt}, 5120
    s_waitcnt vmcnt(0)
    """)
    for i in range(4):
        for j in range(2): k(f"ds_read_b64_tr_b16 v[{16+4*i+2*j}:{17+4*i+2*j}], v6 offset:{32*i + 512*j}")
    for i in range(4):
        k(f"""
        s_mul_i32 s{t[5]}, s{sCq}, 13108
        s_lshr_b32 s{t[5]}, s{t[5]}, 16
        s_mul_i32 s{t[5]}, s{t[5]}, {B2_BLK - 5120}
        s_lshl_b32 s{t[6]}, s{sCq}, 10
        s_add_u32 s{t[5]}, s{t[5]}, s{t[6]}
        s_add_u32 s{t[5]}, s{t[5]}, s{sSt}
        s_add_u32 s{sCq}, s{sCq}, 1
        s_waitcnt lgkmcnt({6-2*i})
        buffer_store_dwordx4 v[{16+4*i}:{19+4*i}], v7, s[{sO}:{sO+3}], s{t[5]} offen{SC1}
        """)
    k.label(LN)
    k(f"""
    s_cmp_lt_u32 s{sCb}, 12
    s_cbranch_scc1 {LG}
    s_sub_u32 s{t[0]}, s{sCb}, 12
    s_lshl_b32 s{t[0]}, s{t[0]}, 3
    s_add_u32 s{t[0]}, s{t[0]}, s{sW}
    s_lshl_b32 s{t[0]}, s{t[0]}, 2
    v_lshrrev_b32 v5, 4, v0
    v_add_u32 v5, s{t[0]}, v5
    v_and_b32 v6, 15, v0
    v_lshlrev_b32 v6, 4, v6
    v_mul_u32_u24 v8, 1280, v5
    v_add_u32 v8, v8, v6
    s_mov_b32 s{sWt}, s{sPtr+14}
    s_mov_b32 s{sWt+1}, s{sPtr+15}
    s_mov_b32 s{sWt+2}, 1280
    """)
    for i in range(5):
        k(f"buffer_load_dwordx4 v[{32+4*i}:{35+4*i}], v8, s[{sX}:{sX+3}], 0 offen offset:{256*i}")
        k(f"buffer_load_dwordx4 v[{52+4*i}:{55+4*i}], v6, s[{sWt}:{sWt+3}], 0 offen offset:{256*i}")
    k(f"""
    s_lshl_b32 s{t[1]}, s{sRb}, 9
    s_add_u32 s{t[1]}, s{t[1]}, {WS_G}
    s_add_u32 s{sO}, s{sWS}, s{t[1]}
    s_addc_u32 s{sO+1}, s{sWS+1}, 0
    s_mov_b32 s{sO+2}, 512
    v_lshlrev_b32 v5, 2, v5
    v_lshlrev_b32 v6, 16, v6
    v_add_u32 v5, v5, v6
    v_mov_b32 v9, 0
    v_mov_b32 v10, 0
    s_waitcnt vmcnt(0)
    """)
    for r in range(20): k(f"v_dot2_f32_bf16 v{9+(r&1)}, v{32+r}, v{52+r}, v{9+(r&1)}")
    k("s_nop 3\nv_add_f32 v9, v9, v10")
    for sh in (8, 4, 2, 1): k(f"s_nop 1\nv_add_f32_dpp v9, v9, v9 row_ror:{sh} row_mask:0xf bank_mask:0xf")
    k(f"""
    v_mul_f32 v9, {f32hex(-1.4426950408889634)}, v9
    v_exp_f32 v9, v9
    s_nop 0
    v_add_f32 v9, 1.0, v9
    v_rcp_f32 v9, v9
    s_nop 0
    buffer_store_dword v9, v5, s[{sO}:{sO+3}], 0 offen{SC1}
    """)
    k.label(LG)

SGX, SGW = 192, 220
vSd, vSx, vSw, vSg = 244, 245, 246, 247
vBa, vBd = 240, 224
sJa, sJb, sJc, sJs, sJq = 56, 57, 58, 59, 54
LATE_SZ = WS_SYNC
BIGV = 0x7fff0000
def side_params(k, var):
    t = sT
    sJ, sA, sB1, sB2_, sCj = t[0], t[1], t[2], t[3], t[4]
    sSt, sCq = sJs, sJq
    L = [k.uniq(f"ty{i}") for i in range(5)]
    k(f"""
    s_lshl_b32 s{sJ}, s{sCb}, 4
    s_add_u32 s{sJ}, s{sJ}, s{sRb}
    """)
    if var == 'F24':
        k(f"s_lshl_b32 s{sJ}, s{sJ}, 2\ns_add_u32 s{sJ}, s{sJ}, s{sW}")
    else:
        k(f"""
        s_lshl_b32 s{sJ}, s{sJ}, 3
        s_add_u32 s{sJ}, s{sJ}, s{sW}
        s_sub_u32 s{sJ}, s{sJ}, 512
        s_min_u32 s{sJ}, s{sJ}, 740
        s_cmp_lt_u32 s{sCb}, 8
        s_cselect_b32 s{sJ}, 740, s{sJ}
        """)
    k(f"""
    s_mul_i32 s{sSt}, s{sJ}, 6554
    s_lshr_b32 s{sSt}, s{sSt}, 16
    s_mul_i32 s{sCq}, s{sSt}, 10
    s_sub_u32 s{sCq}, s{sJ}, s{sCq}
    s_mov_b32 s{sB1}, 4
    s_mov_b32 s{sCj}, 8
    s_cmp_ge_u32 s{sSt}, 70
    s_cbranch_scc1 {L[4]}
    s_cmp_ge_u32 s{sSt}, 54
    s_cbranch_scc1 {L[3]}
    s_cmp_ge_u32 s{sSt}, 50
    s_cbranch_scc1 {L[2]}
    s_cmp_ge_u32 s{sSt}, 40
    s_cbranch_scc1 {L[1]}
    s_lshr_b32 s{t[5]}, s{sSt}, 2
    s_and_b32 s{t[6]}, s{sSt}, 3
    s_mul_i32 s{sA}, s{t[5]}, 11
    s_cmp_eq_u32 s{t[5]}, 9
    s_cselect_b32 s{sA}, 98, s{sA}
    s_lshl_b32 s{t[7]}, s{t[6]}, 1
    s_add_u32 s{sA}, s{sA}, s{t[7]}
    s_min_u32 s{t[6]}, s{t[6]}, 2
    s_cmp_lt_u32 s{t[5]}, 8
    s_cselect_b32 s{t[6]}, s{t[6]}, 0
    s_add_u32 s{sA}, s{sA}, s{t[6]}
    s_lshl_b32 s{sA}, s{sA}, 4
    s_mov_b32 s{sB2_}, 8
    s_mov_b32 s{sCj}, 16
    s_branch {L[0]}
    {L[1]}:
    s_sub_u32 s{t[5]}, s{sSt}, 40
    s_mul_i32 s{sA}, s{t[5]}, 11
    s_cmp_eq_u32 s{t[5]}, 9
    s_cselect_b32 s{sA}, 98, s{sA}
    s_cmp_lt_u32 s{t[5]}, 8
    s_cselect_b32 s{t[6]}, 2, 8
    s_cselect_b32 s{sB2_}, 48, 16
    s_add_u32 s{sA}, s{sA}, s{t[6]}
    s_lshl_b32 s{sA}, s{sA}, 4
    s_branch {L[0]}
    {L[2]}:
    s_sub_u32 s{t[5]}, s{sSt}, 50
    s_mul_i32 s{sA}, s{t[5]}, {22*16}
    s_add_u32 s{sA}, s{sA}, 160
    s_mov_b32 s{sB2_}, {11*16}
    s_branch {L[0]}
    {L[3]}:
    s_sub_u32 s{t[5]}, s{sSt}, 54
    s_mul_i32 s{sA}, s{t[5]}, 40
    s_mov_b32 s{sB2_}, 20
    s_branch {L[0]}
    {L[4]}:
    s_sub_u32 s{t[5]}, s{sSt}, 70
    s_mul_i32 s{sA}, s{t[5]}, 160
    s_add_u32 s{sA}, s{sA}, 16
    s_mov_b32 s{sB1}, 40
    s_mov_b32 s{sB2_}, 80
    s_mov_b32 s{sCj}, 20
    {L[0]}:
    v_lshrrev_b32 v13, 5, v0
    v_mul_u32_u24 v13, s{sCj}, v13
    v_lshrrev_b32 v14, 3, v0
    v_and_b32 v14, 3, v14
    v_add_u32 v13, v13, v14
    v_mul_u32_u24 v13, 1280, v13
    v_and_b32 v14, 7, v0
    v_lshl_add_u32 v13, v14, 4, v13
    s_lshl_b32 s{t[5]}, s{sCq}, 7
    v_add_u32 v{vSd}, s{t[5]}, v13
    s_mul_i32 s{sJa}, s{sA}, 1280
    s_mul_i32 s{sJb}, s{sB1}, 1280
    s_mul_i32 s{sJc}, s{sB2_}, 1280
    s_cmp_ge_u32 s{sSt}, {NSTEP}
    s_cselect_b32 s{sJa}, 0x7f000000, s{sJa}
    """)
    if var == 'F20':
        k(f"""
        s_lshl_b32 s{t[0]}, s{sCb}, 2
        s_add_u32 s{t[0]}, s{t[0]}, s{sW}
        s_sub_u32 s{t[0]}, s{t[0]}, 4
        s_lshl_b32 s{t[0]}, s{t[0]}, 2
        s_cmp_ge_u32 s{sCb}, 8
        s_cselect_b32 s{t[0]}, 4096, s{t[0]}
        s_lshl_b32 s{t[1]}, s{sRb}, 9
        s_add_u32 s{t[1]}, s{t[1]}, {WS_G}
        v_lshrrev_b32 v13, 4, v0
        v_add_u32 v13, s{t[0]}, v13
        v_and_b32 v14, 15, v0
        v_lshlrev_b32 v{vSw}, 4, v14
        v_mul_u32_u24 v{vSx}, 1280, v13
        v_add_u32 v{vSx}, v{vSx}, v{vSw}
        v_lshl_add_u32 v13, v13, 2, s{t[1]}
        v_lshl_add_u32 v{vSg}, v14, 25, v13
        """)
def side_loads():
    t = sT
    g = [[f"s_mov_b32 s{t[5]}, {1728*1280}", f"s_cmp_ge_u32 s{sJs}, 54",
          f"s_cselect_b32 s{sWt}, s{sPtr+4}, s{sPtr+12}", f"s_cselect_b32 s{sWt+1}, s{sPtr+5}, s{sPtr+13}", f"s_cselect_b32 s{sWt+2}, {640*1280}, s{t[5]}",
          f"s_lshl_b32 s{t[5]}, s{sW}, 12", f"s_add_u32 m0, s{t[5]}, {W_BASE}", f"s_add_u32 s{t[6]}, s{sJa}, s{sJb}",
          f"buffer_load_dwordx4 v{vSd}, s[{sWt}:{sWt+3}], s{sJa} offen lds"],
         ["s_add_u32 m0, m0, 1024", f"s_add_u32 s{sJa}, s{sJa}, s{sJc}", f"buffer_load_dwordx4 v{vSd}, s[{sWt}:{sWt+3}], s{t[6]} offen lds"],
         ["s_add_u32 m0, m0, 1024", f"s_add_u32 s{t[6]}, s{t[6]}, s{sJc}", f"buffer_load_dwordx4 v{vSd}, s[{sWt}:{sWt+3}], s{sJa} offen lds"],
         ["s_add_u32 m0, m0, 1024", None, f"buffer_load_dwordx4 v{vSd}, s[{sWt}:{sWt+3}], s{t[6]} offen lds"]]
    h = []
    for i in range(5):
        h.append([f"buffer_load_dwordx4 v[{SGX+4*i}:{SGX+3+4*i}], v{vSx}, s[{sX}:{sX+3}], 0 offen offset:{256*i}"])
        h.append([f"global_load_dwordx4 v[{SGW+4*i}:{SGW+3+4*i}], v{vSw}, s[{sPtr+14}:{sPtr+15}] offset:{256*i}"])
    return g, h
def side_compute(k, var):
    t = sT
    LG, LJ = k.uniq("gate"), k.uniq("sidej")
    k("s_waitcnt vmcnt(0)")
    if var == 'F20': k(f"s_cmp_lt_u32 s{sCb}, 8\ns_cbranch_scc1 {LG}")
    k(f"""
    s_lshl_b32 s{t[5]}, s{sW}, 12
    s_add_u32 s{t[5]}, s{t[5]}, {W_BASE}
    v_lshrrev_b32 v6, 4, v0
    v_lshlrev_b32 v6, 10, v6
    v_lshrrev_b32 v7, 2, v0
    v_and_b32 v7, 3, v7
    v_lshl_add_u32 v6, v7, 7, v6
    v_and_b32 v7, 3, v0
    v_lshl_add_u32 v6, v7, 3, v6
    v_add_u32 v6, s{t[5]}, v6
    v_lshlrev_b32 v7, 4, v0
    s_lshl_b32 s{sJq}, s{sJq}, 2
    s_mul_i32 s{t[7]}, s{sJs}, 5120
    s_add_u32 s{t[7]}, s{t[7]}, {WS_B2}
    s_cmp_ge_u32 s{sJs}, {NSTEP}
    s_cselect_b32 s{t[7]}, {hex(BIGV)}, s{t[7]}
    """)
    for i in range(4):
        for j in range(2): k(f"ds_read_b64_tr_b16 v[{vBd+4*i+2*j}:{vBd+1+4*i+2*j}], v6 offset:{32*i + 512*j}")
    for i in range(4):
        k(f"""
        s_mul_i32 s{t[5]}, s{sJq}, 13108
        s_lshr_b32 s{t[5]}, s{t[5]}, 16
        s_mul_i32 s{t[5]}, s{t[5]}, {B2_BLK - 5120}
        s_lshl_b32 s{t[6]}, s{sJq}, 10
        s_add_u32 s{t[5]}, s{t[5]}, s{t[6]}
        s_add_u32 s{t[5]}, s{t[5]}, s{t[7]}
        s_add_u32 s{sJq}, s{sJq}, 1
        v_add_u32 v{vBa+i}, s{t[5]}, v7
        """)
    if var == 'F20':
        k(f"s_branch {LJ}")
        k.label(LG)
        k("v_mov_b32 v8, 0\nv_mov_b32 v9, 0")
        for i in range(4): k(f"v_mov_b32 v{vBa+i}, {hex(BIGV)}")
        for r in range(20): k(f"v_dot2_f32_bf16 v{8+(r&1)}, v{SGX+r}, v{SGW+r}, v{8+(r&1)}")
        k("s_nop 3\nv_add_f32 v9, v9, v8")
        for sh in (8, 4, 2, 1): k(f"s_nop 1\nv_add_f32_dpp v9, v9, v9 row_ror:{sh} row_mask:0xf bank_mask:0xf")
        k(f"""
        v_mul_f32 v9, {f32hex(-1.4426950408889634)}, v9
        v_exp_f32 v9, v9
        s_nop 0
        v_add_f32 v9, 1.0, v9
        v_rcp_f32 v9, v9
        s_nop 0
        buffer_store_dword v9, v{vSg}, s[{sO}:{sO+3}], 0 offen{SC1}
        """)
        k.label(LJ)
def late_setup(k, var):
    t = sT
    if var[0] != 'F':
        k(f"s_mov_b32 s{sO+2}, 0")
        for r in (HP + 24, HP + 25, HP + 26, HP + 27, vBa, vBa + 1, vBa + 2, vBa + 3): k(f"v_mov_b32 v{r}, {hex(BIGV)}")
        return
    k(f"""
    s_mov_b32 s{sO}, s{sWS}
    s_mov_b32 s{sO+1}, s{sWS+1}
    s_mov_b32 s{sO+2}, {LATE_SZ}
    s_lshl_b32 s{t[2]}, s{sRb}, 1
    s_add_u32 s{t[2]}, s{t[2]}, s{sTg}
    s_mul_i32 s{t[2]}, s{t[2]}, {A2_BLK}
    s_add_u32 s{t[2]}, s{t[2]}, {WS_A2}
    s_lshl_b32 s{t[0]}, s{sCb}, 2
    s_add_u32 s{t[0]}, s{t[0]}, s{sCg}
    s_lshl_b32 s{t[0]}, s{t[0]}, 12
    s_cmp_eq_u32 s{sMode}, 2
    s_cselect_b32 s{t[1]}, 2048, 0
    s_add_u32 s{t[1]}, s{t[1]}, s{t[2]}
    s_add_u32 s{t[0]}, s{t[0]}, s{t[1]}
    s_add_u32 s{t[1]}, s{t[1]}, s{sSt2}
    v_lshlrev_b32 v13, 4, v0
    v_add_u32 v{HP+24}, s{t[0]}, v13
    v_xor_b32 v{HP+25}, 2048, v{HP+24}
    v_and_b32 v{HP+26}, 512, v13
    v_add3_u32 v{HP+26}, v{HP+26}, v13, s{t[1]}
    """)
    k(f"v_add_u32 v{HP+27}, 2048, v{HP+26}" if var == 'F24' else f"v_mov_b32 v{HP+27}, {hex(BIGV)}")
def late_stores():
    out = [f"buffer_store_dwordx4 v[{HP+4*tt}:{HP+4*tt+3}], v{HP+24+(tt>>1)}, s[{sO}:{sO+3}], 0 offen offset:{(tt&1)*1024}{SC1}" for tt in range(4)]
    out += [f"buffer_store_dwordx4 v[{HP+16+4*pr}:{HP+19+4*pr}], v{HP+26+pr}, s[{sO}:{sO+3}], 0 offen{SC1}" for pr in range(2)]
    out += [f"buffer_store_dwordx4 v[{vBd+4*i}:{vBd+3+4*i}], v{vBa+i}, s[{sO}:{sO+3}], 0 offen{SC1}" for i in range(4)]
    return out

def gen_k1(name="p1_kernel", NW=5, prof=False, compute=True, area=0):
    k = Kern(name, block=512, grid=256, lds=163840, vgpr=256)
    END = name + "_end"
    k(f"s_cmp_ge_u32 s2, 256\ns_cbranch_scc1 {END}")
    p1_setup(k, prof)
    LQ, LV, L20, LD = name + "_qkv", name + "_v", name + "_f20", name + "_done"
    k(f"s_cmp_ge_u32 s{sCb}, 10\ns_cbranch_scc1 {LQ}")
    ffn_wave_params(k)
    k(f"s_cmp_lg_u32 s{sMode}, 0\ns_cbranch_scc1 {L20}")
    for var in ('F24', 'F20'):
        if var == 'F20': k.label(L20)
        p1_loop(k, var, NW, prof, compute)
        h_store_setup(k, var)
        for x in gelu_math(k, var): k(x)
        k(stamp(prof, 13 if prof == 'rt' else 3))
        k("s_nop 1")
        for x in h_stores(var): k(x)
        k(f"s_branch {LD}")
    k.label(LQ)
    k(f"s_cmp_ge_u32 s{sCb}, 14\ns_cbranch_scc1 {LV}")
    LS = name + "_side"
    p1_loop(k, 'QK', NW, prof, compute)
    k("s_nop 7")
    qk_epilogue(k)
    k(f"s_branch {LS}")
    k.label(LV)
    p1_loop(k, 'V', NW, prof, compute)
    k("s_nop 7")
    v_epilogue(k)
    k.label(LS)
    k(stamp(prof, 13 if prof == 'rt' else 3))
    side_jobs(k)
    k.label(LD)
    if prof: prof_out(k, 14 if prof == 'rt' else 4, sWS, sW, mode=prof, area=area)
    k.label(END)
    k("s_endpgm")
    return k

if __name__ == "__main__":
    k = gen_k1()
    for wg in range(0, 256, 9):
        for w in (0, 3, 5, 7):
            for e in check(k, init=dict(wg=wg, wave=w), verbose=(wg < 30 and w == 5)): print(e)
```

```python
from asmlib import *
from layout import *
import p1, p2, p3
from p1 import *
from p3 import sA, sB, sOut, sTb, sNb, sSa, sSb, sU0, sU1, sRe, sRl, vL, vL2, BUFA, BUFB, vG3

sTS = 96
sSY = 100
vIni = 255
vPo = 248
SPIN = 1 << 16

def spin_loop(k, name, load, cond, back, sCount=34):
    L = name + "_l"
    k.label(name)
    k(f"s_mov_b32 s{sCount}, {SPIN}")
    k.label(L)
    for x in load: k(x)
    k("s_waitcnt vmcnt(0)")
    for x in cond: k(x)
    k(f"""
    s_sub_u32 s{sCount}, s{sCount}, 1
    s_cbranch_scc1 {back}
    s_cbranch_vccnz {L}
    s_branch {back}
    """)

def gen(name, NW=5, prof=False, area=0, n0=3, bars=(1, 4, 9), prio={0: 3, 18: 2, 25: 1, 30: 0}, pattern=1, gsplit=12, xbar=24, pf0=14, warm=True, pbar=(), arr=9, paced=True, itail=True, obar=True, fine=False, pref=None, dbg=None, kvp=False, pub=2, fine2=None, rate=2, wsb=0, hst=(0, 0, 1, 1, 2, 2, 3, 3, 4, 4), omod=''):
    k = Kern(name, block=512, grid=256, lds=163840, vgpr=256, sgpr=102)
    END = name + "_end"
    tails = []
    st = lambda i: stamp(prof, i) if not ((fine and i < 13) or fine2) else ''
    sl = lambda i: [st(i)] if (prof and st(i)) else []
    k(f"s_cmp_ge_u32 s2, 256\ns_cbranch_scc1 {END}")
    p1_setup(k, prof, pref, wsb)
    LZ = k.uniq("noz")
    k(f"""
    s_add_u32 s{sSY}, s{sWS}, {WS_SYNC}
    s_addc_u32 s{sSY+1}, s{sWS+1}, 0
    s_or_b32 s{sT[0]}, s2, s{sW}
    s_cbranch_scc1 {LZ}
    v_mul_u32_u24 v5, {SY_STRIDE}, v0
    v_mov_b32 v6, 0
    s_mov_b32 exec_hi, {hex((1 << (SY_N - 32)) - 1)}
    global_store_dword v5, v6, s[{sSY}:{sSY+1}]{SC1}
    s_mov_b64 exec, -1
    {LZ}:
    """)
    def pro(extra=None):
        def f(k, vq):
            if pref:
                for g in pref_loads(*pref).get(-1, []): vq.add(k, g, 'pf')
            if extra: extra(k)
            k(f"s_mov_b32 s{sTS}, s{sCb}\ns_mov_b32 s{sTS+1}, s{sTg}\ns_mov_b32 s{sTS+2}, s{sCg}")
            p2.p2_ids(k)
            p2.o_addr(k, 44, vPo + 4, vPo + 5, 13, 14)
            k(f"s_mov_b32 s{sCb}, s{sTS}\ns_mov_b32 s{sTg}, s{sTS+1}\ns_mov_b32 s{sCg}, s{sTS+2}")
            for r in range(4): k(f"v_mov_b32 v{vPo+r}, -1")
        return f
    LI = lambda: k.uniq("noi")
    def hooks(side):
        l = LI()
        h = {1: [(None, [f"s_or_b32 s{sT[0]}, s2, s{sW}", f"s_cbranch_scc1 {l}", f"v_mov_b32 v13, 0", f"v_mov_b32 v14, 1", "s_mov_b64 exec, 1",
                         f" global_store_dword v13, v14, s[{sDBG}:{sDBG+1}]{SC1}", "s_mov_b64 exec, -1", l + ":"])],
             2: [('po', [f"buffer_store_dwordx4 v[{vPo}:{vPo+3}], v{vPo+4}, s[44:47], 0 offen{SC1}"]),
                 ('po', [f"buffer_store_dwordx2 v[{vPo}:{vPo+1}], v{vPo+5}, s[44:47], 0 offen{SC1}"])],
             8: [('ini', [f"v_mov_b32 v{vIni}, 0", f"global_load_dword v{vIni}, v{vIni}, s[{sDBG}:{sDBG+1}]{SC1}"])]}
        if pref:
            for when, gs in pref_loads(*pref).items():
                if when not in ('pre', -1): h.setdefault(when, []).extend(('pf', g) for g in gs)
        if side:
            g, gl = side_loads()
            s0 = max(max(s for s in range(20) if s % NW == j) for j in (0, 1))
            h[s0] = [('side', x) for x in g]
            if side == 'F20':
                h[s0 - 1] = [('side', x) for x in gl[:5]]
                h[s0] += [('side', x) for x in gl[5:]]
        return h
    def init_check():
        nm, back = k.uniq("ispin"), k.uniq("iback")
        k(f"v_cmp_ne_u32 vcc, 1, v{vIni}\ns_cbranch_vccnz {nm}")
        k.label(back)
        tails.append(lambda: spin_loop(k, nm, [f"v_mov_b32 v{vIni}, 0", f"global_load_dword v{vIni}, v{vIni}, s[{sDBG}:{sDBG+1}]{SC1}"],
                                       [f"v_cmp_ne_u32 vcc, 1, v{vIni}"], back))
    def qkv_wait():
        L, X = k.uniq("qspin"), k.uniq("qdone")
        k(f"""
        s_lshr_b32 s{p2.sT0}, s{p2.sHead}, 4
        s_add_u32 s{p2.sT0}, s{p2.sT0}, {SY_FLAG}
        v_lshl_add_u32 v5, v0, 1, s{p2.sT0}
        v_mul_u32_u24 v5, {SY_STRIDE}, v5
        s_mov_b32 s34, {SPIN}
        s_mov_b64 exec, 7
        {L}:
        global_load_dword v6, v5, s[{sSY}:{sSY+1}]{SC1}
        s_waitcnt vmcnt(0)
        v_cmp_ne_u32 vcc, 1, v6
        s_sub_u32 s34, s34, 1
        s_cbranch_scc1 {X}
        s_cbranch_vccnz {L}
        {X}:
        s_mov_b64 exec, -1
        """)
    LQ, LV, L20, LJ = name + "_qkv", name + "_v", name + "_f20", name + "_att"
    k(f"s_cmp_ge_u32 s{sCb}, 10\ns_cbranch_scc1 {LQ}")
    ffn_wave_params(k)
    k(f"s_cmp_lg_u32 s{sMode}, 0\ns_cbranch_scc1 {L20}")
    for var in ('F24', 'F20'):
        if var == 'F20': k.label(L20)
        p1_loop(k, var, NW, prof and not fine2 and prof, True, hooks(var), pro(lambda k: side_params(k, var)), pbar, fine, paced)
        late_setup(k, var)
        side_compute(k, var)
        g = gelu_math(k, var)
        n = len(g) // (12 if var == 'F24' else 10)
        g += ["s_nop 1"] + [x for x in h_stores(var) if not x.startswith("buffer")]
        cut = len(g) if gsplit >= 12 else n * (gsplit - (2 if var == 'F20' else 0))
        for x in g[:cut]: k(x)
        k(st(15) if not fine else '')
        p2.p2_init_regs(k)
        p3.p3_setup(k)
        init_check()
        p2.p2_setup(k)
        qkv_wait()
        k(st(3))
        p2.p2_first_loads(k, n0)
        for x in g[cut:]: k(x)
        k(p2.first_wait(n0, 0, bars) + " lgkmcnt(0)")
        k(f"s_branch {LJ}")
    k.label(LQ)
    k(f"s_cmp_ge_u32 s{sCb}, 14\ns_cbranch_scc1 {LV}")
    LS = name + "_side"
    p1_loop(k, 'QK', NW, prof and not fine2 and prof, True, hooks(None), pro(), pbar, fine, paced, qk_tail() if itail else None)
    if not itail:
        k("s_nop 7")
        qk_epilogue(k)
    k(f"s_branch {LS}")
    k.label(LV)
    p1_loop(k, 'V', NW, prof and not fine2 and prof, True, hooks(None), pro(), pbar, fine, paced, v_tail() if itail else None)
    if not itail:
        k("s_nop 7")
        v_epilogue(k)
    k.label(LS)
    init_check()
    LA, LF = k.uniq("noarr"), k.uniq("noflag")
    k(f"""
    s_sub_u32 s{sT[0]}, s{sCb}, 10
    s_mul_i32 s{sT[0]}, s{sT[0]}, {SY_STRIDE}
    v_mov_b32 v11, s{sT[0]}
    v_mov_b32 v1, 1
    v_mov_b32 v13, 0
    s_waitcnt vmcnt(0)
    s_barrier
    {st(15) if not fine else ''}
    s_cmp_lg_u32 s{sW}, 0
    s_cbranch_scc1 {LA}
    s_mov_b64 exec, 1
    global_atomic_add v13, v11, v1, s[{sSY}:{sSY+1}] sc0 sc1
    s_mov_b64 exec, -1
    {LA}:
    """)
    late_setup(k, 'Q')
    p2.p2_setup(k)
    p2.p2_init_regs(k)
    p3.p3_setup(k)
    k(f"""
    s_waitcnt vmcnt(0)
    v_cmp_eq_u32 vcc, 15, v13
    v_add_u32 v11, {SY_FLAG * SY_STRIDE}, v11
    s_cbranch_vccz {LF}
    s_mov_b64 exec, 1
    global_store_dword v11, v1, s[{sSY}:{sSY+1}]{SC1}
    s_mov_b64 exec, -1
    {LF}:
    """)
    qkv_wait()
    k(st(3))
    p2.p2_first_loads(k, n0)
    if kvp:
        k(f"""
        s_lshl_b32 s{p2.sT0}, s{p2.sQb}, 15
        s_add_u32 s{p2.sT0}, s{p2.sT0}, 16384
        s_mul_i32 s{p2.sT1}, s{p2.sQg}, {8192 - 1024}
        s_add_u32 s{p2.sT0}, s{p2.sT0}, s{p2.sT1}
        s_add_u32 s{p2.sT0}, s{p2.sT0}, s{p2.sCnt}
        s_cmp_lt_u32 s2, 64
        s_cselect_b32 s{p2.sT0}, s{p2.sT0}, 0x7f000000
        v_lshlrev_b32 v5, 7, v0
        buffer_load_dword v125, v5, s[{p2.sKV}:{p2.sKV+3}], s{p2.sT0} offen{SC1}
        """)
    k(p2.first_wait(n0, 1 if kvp else 0, bars) + " lgkmcnt(0)")
    k.label(LJ)
    LD, LD2 = k.uniq("nodone"), k.uniq("nolast")
    mark = []
    def arrive(vq):
        mark.append(vq.total)
        return [f"s_cmp_lg_u32 s{sW}, 0", f"s_cbranch_scc1 {LD}", f"s_and_b32 s{sU0}, s2, 15", f"s_add_u32 s{sU0}, s{sU0}, {SY_P1}", f"s_mul_i32 s{sU0}, s{sU0}, {SY_STRIDE}",
                f"v_mov_b32 v8, s{sU0}", "v_mov_b32 v10, 1", "s_mov_b64 exec, 1", f"global_atomic_add v9, v8, v10, s[{sSY}:{sSY+1}] sc0 sc1", "s_mov_b64 exec, -1", LD + ":"]
    def publish(vq):
        return [f"s_cmp_lg_u32 s{sW}, 0", f"s_cbranch_scc1 {LD2}", "s_mov_b64 exec, 1", f"s_waitcnt vmcnt({vq.total - mark[0]})", "v_cmp_eq_u32 vcc, 15, v9",
                f"v_add_u32 v8, {(SY_P1F - SY_P1) * SY_STRIDE}, v8", "s_and_b64 exec, exec, vcc", f"s_cbranch_execz {LD2}",
                f"global_store_dword v8, v10, s[{sSY}:{sSY+1}]{SC1}", LD2 + ":", "s_mov_b64 exec, -1"]
    pload = [f"global_load_dword v6, v5, s[{sSY}:{sSY+1}]{SC1}"]
    pcond = ["v_cmp_ne_u32 vcc, 1, v6"]
    nm, back = k.uniq("pspin"), k.uniq("pback")
    tails.append(lambda: spin_loop(k, nm, ["s_sleep 4"] + pload, pcond, back))
    extra = {}
    def put(u, tag, g): extra.setdefault(u, []).append((tag, g))
    put(pf0 - 2, 'p1', ["v_and_b32 v5, 15, v0", f"v_add_u32 v5, {SY_P1F}, v5", f"v_mul_u32_u24 v5, {SY_STRIDE}, v5"] + pload)
    put(pf0, None, lambda vq: [f"s_waitcnt vmcnt({vq.wait('p1')})"] + pcond + [f"s_cbranch_vccnz {nm}", back + ":"] + sl(6))
    for i, x in enumerate(late_stores()):
        if hst[i] is not None: put(hst[i], 'h', [x])
    seq = []
    for s in range(4):
        if s < 3:
            l = p3.slot_loads(s, s, "a"); i = len(l) - 4
            seq += [(('a', s), l[:i + 1])] + [(('a', s), [x]) for x in l[i + 1:]]
        l = p3.slot_loads(s, s, "b"); i = len(l) - 5
        seq += [(('b', s), l[:i + 1])] + [(('b', s), [x]) for x in l[i + 1:]]
    if warm:
        w = [f"s_lshr_b32 s{sU0}, s2, 3", f"s_cmp_lt_u32 s{sW}, 4", f"s_cselect_b32 s{sTS}, s{sA}, s{sB}", f"s_cselect_b32 s{sTS+1}, s{sA+1}, s{sB+1}",
             f"s_cselect_b32 s{sTS+2}, s{sA+2}, s{sB+2}", f"s_mov_b32 s{sTS+3}, 0x00020000",
             f"s_lshr_b32 s{sU1}, s{sU0}, 3", f"s_lshl_b32 s{sU1}, s{sU1}, 2", f"s_add_u32 s{sU1}, s{sU1}, s{sW}", f"s_lshl_b32 s{sU1}, s{sU1}, 13", f"s_add_u32 s{sU1}, s{sU1}, {22*4096}",
             f"s_and_b32 s{sU0}, s{sU0}, 7", f"s_lshl_b32 s{sU0}, s{sU0}, 1", f"s_and_b32 s34, s{sW}, 1", f"s_add_u32 s{sU0}, s{sU0}, s34", f"s_lshl_b32 s{sU0}, s{sU0}, 13",
             f"s_add_u32 s{sU0}, s{sU0}, {54*5120 - 131072}", f"s_cmp_lt_u32 s{sW}, 4", f"s_cselect_b32 s34, s{sU1}, s{sU0}",
             f"v_lshlrev_b32 v5, 7, v0", f"buffer_load_dword v125, v5, s[{sTS}:{sTS+3}], s34 offen{SC1}"]
        seq += [('w', w), ('w', [f"buffer_load_dword v126, v5, s[{sTS}:{sTS+3}], s34 offen offset:64{SC1}"])]
    seq += p2.g_load()
    u = pf0 + 1
    per = -(-len(seq) // (xbar - u))
    for i, (tag, g) in enumerate(seq): put(u + i // per, tag, g)
    seq = []
    for i, s in enumerate((7, 8, 9)):
        for nt in range(5):
            g = []
            if nt == 0: g += p3.so_b(s)
            if nt in (0, 4): g += [f"s_add_u32 m0, s{sRe}, {5120 * i + 1024 * nt}", None]
            g += [f"buffer_load_dwordx4 v{vL if nt < 4 else vL2}, s[{sB}:{sB+3}], s{sSb} offen offset:{1024 * (nt & 3)}{SC1} lds"]
            seq.append((('l', s), g))
    u = xbar + 1
    per = -(-len(seq) // (31 - u))
    for i, (tag, g) in enumerate(seq): put(u + i // per, tag, g)
    ab = {9: sl(5), xbar: sl(7)}
    if fine2: ab = {u: [stamp(prof, i + 2)] for i, u in enumerate(fine2)}
    ab[arr] = ab.get(arr, []) + [arrive]
    ab[arr + pub] = ab.get(arr + pub, []) + [publish]
    vq = p2.p2_loop(k, n0=n0, rate=rate, also={arr: 'h'}, bars=bars, prio=prio, extra=extra, prof=prof, pattern=pattern, xbars=(xbar,), afterbar=ab, stamps=(13, 15) if fine else ((1, 15) if fine2 else (4, 8)))
    fb = p2.p2_finish(k, vq.wait('g2'), sRl)
    vq.q += ['o', 'o']
    if obar: k('s_barrier')
    k(st(9))
    tails.append(fb)
    vq.add(k, p3.slot_loads(3, 3, "a"), ('a', 3))
    vq.add(k, p3.g_loads(), 'g')
    k(f"v_add_u32 v{p3.vRe}, s{sRe}, v{vL}")
    def lds_b(buf, i):
        return [f"ds_read_b128 v[{BUFB[buf]+4*nt}:{BUFB[buf]+4*nt+3}], v{p3.vRe} offset:{5120*i + 1024*nt}" for nt in range(5)]
    for s in range(7):
        p3.compute_slot(k, vq, s, s % 4, nxt=(s + 4 if s < 6 else None), part=("ab" if s < 3 else "a"), first=(s == 0))
        if 3 <= s < 6:
            for x in lds_b(s % 4, s - 3): k(x)
        if s == 3: k(st(10))
    k("s_nop 7")
    p3.scale(k, vq)
    k(st(11))
    oregs = [BUFA[b] + r for b in (3, 0, 1) for r in range(16)]
    chk = [f"v_max3_u32 v5, v{oregs[0]}, v{oregs[1]}, v{oregs[2]}"] + [f"v_max3_u32 v5, v5, v{a}, v{b}" for a, b in zip(oregs[3::2], oregs[4::2])] + \
          [f"v_max_u32 v5, v5, v{oregs[-1]}", "v_cmp_eq_u32 vcc, -1, v5"]
    nm2, back2 = k.uniq("ospin"), k.uniq("oback")
    k("s_waitcnt vmcnt(0) lgkmcnt(0)")
    for x in chk: k(x)
    k(f"s_cbranch_vccnz {nm2}")
    k.label(back2)
    k(st(12))
    tails.append(lambda: spin_loop(k, nm2, [x for s, b in ((7, 3), (8, 0), (9, 1)) for x in p3.slot_loads(s, b, "a")], chk, back2))
    p3.o_phase(k, [3, 0, 1])
    k(st(13) if not fine else '')
    p3.reduce_store(k, omod)
    if dbg:
        cond = None
        if dbg[1] is not None:
            m = sum(1 << i for i in range(16) if CB_TABLE[i] >= 10)
            cond = f"s_and_b32 s20, s2, 6\ns_lshl_b32 s20, s20, 1\ns_lshr_b32 s21, s2, 6\ns_add_u32 s20, s20, s21\ns_mov_b32 s21, {m}\ns_bitcmp1_b32 s21, s20\ns_cbranch_scc{1 - dbg[1]}"
        prof_dbg(k, 14, sDBG, op=dbg[0], cond=cond)
    elif prof: prof_out(k, 14, sWS, sW, area=area, mode=prof)
    k.label(END)
    k("s_endpgm")
    for t in tails: t()
    return k

if __name__ == "__main__":
    k = gen("f_kernel"); seen = set()
    for wg in (0, 3, 77, 71, 200, 255, 196):
        for w in (0, 3, 4, 7):
            for e in check(k, init=dict(wg=wg, wave=w), verbose=(w == 0)):
                if e not in seen: seen.add(e); print(e)
```

```python
from asmlib import *
from layout import *
from p1 import f32hex, sWS, sDBG, sW, SC1

vKa, vKt, vVa = 2, 3, 4
S0, S1, OA, OB, P = 16, 32, 48, 64, 80
QA, QB = 88, 94
Kb = [100, 106]
Vs0 = 112
Vs1 = [116, 120]
vG = 124
sKV, sQ, sA2 = 8, 12, 16
sHead, sQb, sQg, sKh, sT0, sT1, sCnt = 21, 22, 23, 24, 25, 26, 27
sMask = 28
sTile = 30
vD = 14

def p2_ids(k):
    k(f"""
    s_and_b32 s{sT0}, s2, 7
    s_lshr_b32 s{sT1}, s2, 3
    s_lshl_b32 s{sHead}, s{sT0}, 2
    s_and_b32 s{sT0}, s{sT1}, 3
    s_add_u32 s{sHead}, s{sHead}, s{sT0}
    s_lshr_b32 s{sQb}, s{sT1}, 2
    s_and_b32 s{sQg}, s{sW}, 3
    s_lshr_b32 s{sKh}, s{sW}, 2
    s_lshl_b32 s{sTile}, s{sQb}, 2
    s_add_u32 s{sTile}, s{sTile}, s{sQg}
    """)
def p2_setup(k):
    p2_ids(k)
    k(f"""
    v_lshlrev_b32 v{vD}, 4, v0
    v_and_b32 v5, 31, v0
    v_lshlrev_b32 v{vKt}, 3, v5
    v_lshrrev_b32 v6, 5, v0
    v_mul_u32_u24 v{vVa}, 320, v6
    v_lshl_add_u32 v{vVa}, v5, 4, v{vVa}
    v_lshlrev_b32 v7, 20, v6
    v_add_u32 v7, v7, v{vKt}
    s_mul_i32 s{sT0}, s{sHead}, {KV_HEAD}
    s_lshl_b32 s{sT1}, s{sHead}, 5
    s_add_u32 s{sT1}, s{sT1}, s{sTile}
    s_mul_i32 s{sT1}, s{sT1}, {2*Q_TILE}
    s_add_u32 s{sT1}, s{sT1}, {WS_Q}
    s_mov_b32 s{sKV+2}, {KV_HEAD}
    s_mov_b32 s{sKV+3}, 0x00020000
    s_mov_b32 s{sQ+2}, {2*Q_TILE}
    s_mov_b32 s{sQ+3}, 0x00020000
    s_add_u32 s{sKV}, s{sWS}, s{sT0}
    s_addc_u32 s{sKV+1}, s{sWS+1}, 0
    s_add_u32 s{sQ}, s{sWS}, s{sT1}
    s_addc_u32 s{sQ+1}, s{sWS+1}, 0
    s_mul_i32 s{sT0}, s{sKh}, 81920
    s_lshl_b32 s{sT1}, s{sQg}, 10
    s_add_u32 s{sCnt}, s{sT0}, s{sT1}
    v_add_u32 v{vKa}, s{sT0}, v{vD}
    v_add_u32 v{vKt}, s{sT0}, v{vKt}
    v_add_u32 v{vVa}, s{sT0}, v{vVa}
    """)

def kv_dma(i):
    return [f"s_add_u32 m0, s{sCnt}, {4096*i}", None, f"buffer_load_dwordx4 v{vD}, s[{sKV}:{sKV+3}], m0 offen{SC1} lds"]

def p2_first_loads(k, n0):
    k(f"""
    buffer_load_dwordx4 v[{QA}:{QA+3}], v{vD}, s[{sQ}:{sQ+3}], 0 offen{SC1}
    buffer_load_dwordx2 v[{QA+4}:{QA+5}], v7, s[{sQ}:{sQ+3}], 0 offen offset:1024{SC1}
    """)
    for i in range(n0):
        for x in kv_dma(i): k(x or "s_nop 0")
        if i == 0:
            k(f"""
            buffer_load_dwordx4 v[{QB}:{QB+3}], v{vD}, s[{sQ}:{sQ+3}], 0 offen offset:1280{SC1}
            buffer_load_dwordx2 v[{QB+4}:{QB+5}], v7, s[{sQ}:{sQ+3}], 0 offen offset:2304{SC1}
            """)

def p2_init_regs(k):
    k(f"""
    s_mov_b32 s{sMask}, 0x000fffff
    s_mov_b32 s{sMask+1}, 0x000fffff
    v_and_b32 v10, 27, v0
    v_cmp_eq_u32 vcc, 24, v10
    v_mov_b32 v10, 0x3f803f80
    """)
    for r in range(32): k(f"v_mov_b32 v{OA+r}, 0")
    for r in range(8): k(f"v_mov_b32 v{P+r}, 0")
    for r in range(12): k(f"v_cndmask_b32 v{Vs0+r}, 0, v10, vcc")

def qk(Sd, Kr, Q):
    return [f"v_mfma_f32_32x32x16_bf16 v[{Sd}:{Sd+15}], v[{Kr}:{Kr+3}], v[{Q}:{Q+3}], 0",
            f"v_mfma_f32_32x32x8_bf16 v[{Sd}:{Sd+15}], v[{Kr+4}:{Kr+5}], v[{Q+4}:{Q+5}], v[{Sd}:{Sd+15}]"]
def pv(O, V, Pr):
    return f"v_mfma_f32_32x32x16_bf16 v[{O}:{O+15}], v[{V}:{V+3}], v[{Pr}:{Pr+3}], v[{O}:{O+15}]"

def need(upto_tile):
    by = min((upto_tile + 1) * KV_TILE + 1280, 81920)
    return (by + 4095) // 4096 - 1
def first_wait(n0, later, bars):
    return f"s_waitcnt vmcnt({n0 - 1 - need(bars[0]) + later})"

def p2_loop(k, n0=4, bars=(3, 9), rate=2, prio=None, extra=None, prof=False, pattern=0, xbars=(), afterbar=None, stamps=(2, 3), also={}):
    afterbar = afterbar or {}
    extra = extra or {}
    base = [0]
    def rdK(buf, t):
        t -= base[0]
        return [f"ds_read_b128 v[{Kb[buf]}:{Kb[buf]+3}], v{vKa} offset:{t*KV_TILE}",
                f"ds_read_b64 v[{Kb[buf]+4}:{Kb[buf]+5}], v{vKt} offset:{t*KV_TILE+1024}"]
    def rdV(buf, t):
        t -= base[0]
        return [f"s_mov_b64 exec, s[{sMask}:{sMask+1}]",
                f"ds_read_b128 v[{Vs0}:{Vs0+3}], v{vVa} offset:{t*KV_TILE+1280}",
                f"ds_read_b128 v[{Vs1[buf]}:{Vs1[buf]+3}], v{vVa} offset:{t*KV_TILE+1280+640}",
                "s_mov_b64 exec, -1"]
    vq = VQ(range(need(bars[0]) + 1, n0))
    nxt = [n0]
    def wait_for(piece):
        assert piece < nxt[0], piece
        return vq.wait(piece)
    bars = list(bars)
    k("s_barrier")
    k(stamp(prof, stamps[0]))
    for x in rdK(0, 0) + rdK(1, 1) + rdV(0, 0): k(x)
    k("s_waitcnt lgkmcnt(4)")
    for x in qk(S0, Kb[0], QA): k(x)
    k("s_nop 11")
    def slot(Sx, M, pre4=[], post4=[], pre=[], mid=[[], [], []]):
        e = lambda r: f"v_exp_f32 v{Sx+r}, v{Sx+r}"
        c = lambda r: f"v_cvt_pk_bf16_f32 v{P+r//2}, v{Sx+r}, v{Sx+r+1}"
        if pattern == 0:
            seq = pre + [M[0], e(0), e(1), e(2), c(0), e(3)] + mid[0] + [
                   M[1], e(4), c(2), e(5), e(6), c(4), e(7)] + mid[1] + [
                   M[2], e(8), c(6), e(9), e(10), c(8), e(11)] + mid[2] + pre4 + [M[3]] + post4 + [
                   e(12), c(10), e(13), e(14), e(15), c(12), c(14)]
        else:
            seq = pre + [M[0], e(0), e(1), e(2), e(3), c(0)] + mid[0] + [
                   M[1], e(4), e(5), c(2), e(6), e(7), c(4)] + mid[1] + [
                   M[2], e(8), e(9), c(6), e(10), e(11), c(8)] + mid[2] + pre4 + [M[3]] + post4 + [
                   e(12), e(13), c(10), e(14), e(15), c(12), c(14)]
        for x in seq: k(x)
    pad = ["s_nop 0"] if pattern else []
    k(".p2align 3")
    for u in range(32):
        p = u & 1
        mids = [[[], [], []], [[], [], []]]
        groups = []
        for _ in range(rate if isinstance(rate, int) else rate[min(u, len(rate) - 1)]):
            if nxt[0] < 20:
                groups.append((nxt[0], kv_dma(nxt[0]))); nxt[0] += 1
        groups += extra.get(u, [])
        places = [(0, 0), (0, 1), (0, 2), (1, 0), (1, 1), (1, 2)]
        order = []
        for j, (pid, g) in enumerate(groups):
            sl, m = places[j * 6 // len(groups)]
            order.append((sl, m, j, pid, g))
        order.sort(key=lambda x: x[:3])
        pre = [f"s_setprio {prio[u]}"] + pad if (prio and u in prio) else []
        if u == 16:
            pre += [f"v_add_u32 v{r}, {16*KV_TILE}, v{r}" for r in (vKa, vKt, vVa)]
            base[0] = 16
        def emit(sl):
            for (s_, m, j, pid, g) in order:
                if s_ == sl:
                    if callable(g): g = g(vq)
                    mids[sl][m] += [x or "s_nop 0" for x in vq.note(g, pid)]
        emit(0)
        qB = qk(S1, Kb[p], QB)
        slot(S0, [qB[0], qB[1], pv(OB, Vs1[p ^ 1], P + 4), pv(OA, Vs0, P)], pre4=["s_waitcnt lgkmcnt(0)"] + pad, pre=pre, mid=mids[0])
        emit(1)
        qA = qk(S0, Kb[p ^ 1], QA)
        post = []
        if u in bars:
            i = bars.index(u)
            up = bars[i + 1] if i + 1 < len(bars) else 32
            assert need(up) < nxt[0]
            post += [f"s_waitcnt vmcnt({vq.wait(need(up), also.get(u))})", "s_barrier"]
        elif u in also:
            post += [f"s_waitcnt vmcnt({vq.wait(also[u])})", "s_barrier"]
        elif u in xbars:
            post += ["s_barrier"] + pad
        for x in afterbar.get(u, []): post += x(vq) if callable(x) else [x]
        if u < 30: post += rdK(p, u + 2)
        if u < 31: post += rdV(p ^ 1, u + 1)
        if u == 31: qA = ["s_nop 0", "s_nop 0"]
        slot(S1, [qA[0], qA[1], pv(OA, Vs1[p], P + 4), pv(OB, Vs0, P)], post4=post, mid=mids[1])
    k("s_nop 1")
    k(pv(OB, Vs1[1], P + 4))
    if prio: k("s_setprio 0")
    k(stamp(prof, stamps[1]))
    return vq

def g_load():
    return [('g2', [f"s_lshl_b32 s{sT0}, s{sTile}, 8", f"s_lshl_b32 s{sT1}, s{sKh}, 7", f"s_add_u32 s{sT0}, s{sT0}, s{sT1}", f"s_add_u32 s{sT0}, s{sT0}, {WS_G}",
             f"s_add_u32 s{sQ}, s{sWS}, s{sT0}", f"s_addc_u32 s{sQ+1}, s{sWS+1}, 0", f"s_mov_b32 s{sQ+2}, 128",
             f"v_and_b32 v{vG}, 31, v0", f"v_lshlrev_b32 v{vG}, 2, v{vG}",
             f"buffer_load_dword v{vG}, v{vG}, s[{sQ}:{sQ+3}], 0 offen{SC1}"])]

def o_addr(k, sD, vOm, vOt, va, vb):
    k(f"""
    s_mul_i32 s{sT1}, s{sTile}, {A2_BLK}
    s_add_u32 s{sT1}, s{sT1}, {WS_A2}
    s_add_u32 s{sD}, s{sWS}, s{sT1}
    s_addc_u32 s{sD+1}, s{sWS+1}, 0
    s_mov_b32 s{sD+2}, {A2_BLK}
    s_mov_b32 s{sD+3}, 0x00020000
    s_lshr_b32 s{sT0}, s{sHead}, 1
    s_add_u32 s{sT0}, s{sT0}, {STEP_O}
    s_lshl_b32 s{sT0}, s{sT0}, 1
    s_add_u32 s{sT0}, s{sT0}, s{sKh}
    s_lshl_b32 s{sT0}, s{sT0}, 2
    s_and_b32 s{sT1}, s{sHead}, 1
    s_add_u32 s{sT0}, s{sT0}, s{sT1}
    s_lshl_b32 s{sT0}, s{sT0}, 9
    v_and_b32 v{va}, 15, v0
    v_lshlrev_b32 v{va}, 4, v{va}
    v_and_b32 v{vb}, 16, v0
    v_lshl_add_u32 v{va}, v{vb}, 6, v{va}
    v_and_b32 v{vb}, 32, v0
    v_lshl_add_u32 v{vOm}, v{vb}, 3, v{va}
    v_add_u32 v{vOm}, s{sT0}, v{vOm}
    s_lshr_b32 s{sT0}, s{sHead}, 3
    s_add_u32 s{sT0}, s{sT0}, {STEP_OT}
    s_lshl_b32 s{sT0}, s{sT0}, 1
    s_add_u32 s{sT0}, s{sT0}, s{sKh}
    s_lshl_b32 s{sT0}, s{sT0}, 11
    s_lshl_b32 s{sT1}, s{sT1}, 3
    s_add_u32 s{sT0}, s{sT0}, s{sT1}
    s_and_b32 s{sT1}, s{sHead}, 6
    s_lshl_b32 s{sT1}, s{sT1}, 7
    s_add_u32 s{sT0}, s{sT0}, s{sT1}
    v_lshl_add_u32 v{vOt}, v{vb}, 19, v{va}
    v_add_u32 v{vOt}, s{sT0}, v{vOt}
    """)

def p2_finish(k, gwait, sLate=None):
    vX, vR = 5, 6
    vOm, vOt = 8, 9
    o_addr(k, sA2, vOm, vOt, 10, 11)
    if sLate is None:
        k(f"s_lshl_b32 s{sT0}, s{sW}, 12\ns_xor_b32 s{sT1}, s{sT0}, 16384")
    else:
        k(f"""
        s_mov_b32 s{sT0}, s{sLate}
        s_add_u32 s{sT1}, s{sT0}, 81920
        s_sub_u32 s{sCnt}, s{sT0}, 81920
        s_cmp_eq_u32 s{sKh}, 0
        s_cselect_b32 s{sT1}, s{sT1}, s{sCnt}
        """)
    k(f"""
    v_add_u32 v{vX}, s{sT1}, v{vD}
    v_add_u32 v{vR}, s{sT0}, v{vD}
    s_waitcnt lgkmcnt(0)
    s_barrier
    s_cmp_eq_u32 s{sKh}, 0
    """)
    L1, L2 = k.uniq("kh0"), k.uniq("sent")
    k(f"s_cbranch_scc1 {L1}")
    def send(O):
        for j in range(3): k(f"ds_write_b128 v{vX}, v[{O+4*j}:{O+4*j+3}] offset:{1024*j}")
        k(f"ds_write_b32 v{vX}, v{O+12} offset:3072")
    send(OA)
    k("s_nop 7")
    for r in range(6): k(f"v_mov_b32 v{QA+r}, v{QB+r}")
    for r in range(13): k(f"v_mov_b32 v{OA+r}, v{OB+r}")
    k(f"s_branch {L2}")
    k.label(L1)
    k("s_nop 7")
    send(OB)
    k.label(L2)
    k("s_waitcnt lgkmcnt(0)\ns_barrier")
    for j in range(3): k(f"ds_read_b128 v[{S0+4*j}:{S0+4*j+3}], v{vR} offset:{1024*j}")
    k(f"ds_read_b32 v{S0+12}, v{vR} offset:3072")
    k(f"""
    s_mov_b32 s{sT0}, {f32hex(2.0**-24)}
    s_mov_b32 s{sT1}, {f32hex(2.0**64)}
    s_waitcnt lgkmcnt(0)
    """)
    for r in range(13): k(f"v_add_f32 v{OA+r}, v{OA+r}, v{S0+r}")
    k(f"v_mul_f32 v11, 0, v{OA}")
    for r in range(1, 12): k(f"v_fma_f32 v11, v{OA+r}, 0, v11")
    k(f"""
    v_add_f32 v11, v11, v{OA+12}
    v_cmp_nle_f32 vcc, s{sT0}, v11
    v_cmp_nle_f32 s[32:33], v11, s{sT1}
    s_nop 1
    s_or_b64 vcc, vcc, s[32:33]
    """)
    SLOW, FIN = k.name + "_slow", k.name + "_fin"
    k(f"s_cbranch_vccnz {SLOW}")
    k.label(FIN)
    k(f"v_rcp_f32 v11, v{OA+12}")
    k(f"s_waitcnt vmcnt({gwait})")
    k(f"v_mul_f32 v11, v11, v{vG}")
    for r in range(12): k(f"v_mul_f32 v{OA+r}, v{OA+r}, v11")
    for r in range(6): k(f"v_cvt_pk_bf16_f32 v{P+r}, v{OA+2*r}, v{OA+2*r+1}")
    k(f"""
    buffer_store_dwordx4 v[{P}:{P+3}], v{vOm}, s[{sA2}:{sA2+3}], 0 offen{SC1}
    buffer_store_dwordx2 v[{P+4}:{P+5}], v{vOt}, s[{sA2}:{sA2+3}], 0 offen{SC1}
    """)
    def fallback():
        k.label(SLOW)
        vM = 12
        k(f"""
        v_and_b32 v5, 31, v0
        v_lshlrev_b32 v{vKt}, 3, v5
        v_lshrrev_b32 v6, 5, v0
        v_mul_u32_u24 v{vVa}, 320, v6
        v_lshl_add_u32 v{vVa}, v5, 4, v{vVa}
        v_mov_b32 v{vM}, 0xff800000
        s_mov_b32 s{sCnt}, 0
        """)
        def ldK():
            k(f"buffer_load_dwordx4 v[{Kb[0]}:{Kb[0]+3}], v{vD}, s[{sKV}:{sKV+3}], s{sCnt} offen{SC1}")
            k(f"buffer_load_dwordx2 v[{Kb[0]+4}:{Kb[0]+5}], v{vKt}, s[{sKV}:{sKV+3}], s{sCnt} offen offset:1024{SC1}")
        LP1, LP2 = k.name + "_slow1", k.name + "_slow2"
        k.label(LP1)
        ldK()
        k("s_waitcnt vmcnt(0)")
        for x in qk(S0, Kb[0], QA): k(x)
        k("s_nop 15")
        for r in range(0, 16, 2): k(f"v_max3_f32 v{vM}, v{S0+r}, v{S0+r+1}, v{vM}")
        k(f"""
        s_add_u32 s{sCnt}, s{sCnt}, {KV_TILE}
        s_cmp_lt_u32 s{sCnt}, {KV_HEAD}
        s_cbranch_scc1 {LP1}
        v_mov_b32 v13, v{vM}
        s_nop 1
        v_permlane32_swap_b32 v{vM}, v13
        v_max_f32 v{vM}, v{vM}, v13
        s_mov_b32 s{sCnt}, 0
        """)
        for r in range(16): k(f"v_mov_b32 v{OA+r}, 0")
        k.label(LP2)
        ldK()
        k(f"""
        s_mov_b64 exec, s[{sMask}:{sMask+1}]
        buffer_load_dwordx4 v[{Vs0}:{Vs0+3}], v{vVa}, s[{sKV}:{sKV+3}], s{sCnt} offen offset:1280{SC1}
        buffer_load_dwordx4 v[{Vs1[0]}:{Vs1[0]+3}], v{vVa}, s[{sKV}:{sKV+3}], s{sCnt} offen offset:1920{SC1}
        s_mov_b64 exec, -1
        s_waitcnt vmcnt(0)
        """)
        for x in qk(S0, Kb[0], QA): k(x)
        k("s_nop 15")
        for r in range(16): k(f"v_sub_f32 v{S0+r}, v{S0+r}, v{vM}")
        for r in range(16): k(f"v_exp_f32 v{S0+r}, v{S0+r}")
        k("s_nop 0")
        for r in range(8): k(f"v_cvt_pk_bf16_f32 v{P+r}, v{S0+2*r}, v{S0+2*r+1}")
        k("s_nop 1")
        k(pv(OA, Vs0, P)); k(pv(OA, Vs1[0], P + 4))
        k(f"""
        s_add_u32 s{sCnt}, s{sCnt}, {KV_TILE}
        s_cmp_lt_u32 s{sCnt}, {KV_HEAD}
        s_cbranch_scc1 {LP2}
        s_nop 15
        s_branch {FIN}
        """)
    return fallback

def gen_k2(name="p2_kernel", prof=False, area=0, **kw):
    k = Kern(name, block=512, grid=256, lds=163840, vgpr=128)
    END = name + "_end"
    k(f"""
    s_cmp_ge_u32 s2, 256
    s_cbranch_scc1 {END}
    s_load_dwordx2 s[{sWS}:{sWS+1}], s[0:1], 80
    {stamp(prof, 0)}
    v_lshrrev_b32 v1, 6, v0
    v_and_b32 v0, 63, v0
    s_nop 0
    v_readfirstlane_b32 s{sW}, v1
    s_waitcnt lgkmcnt(0)
    """)
    p2_setup(k)
    n0 = kw.get("n0", 4)
    p2_first_loads(k, n0)
    p2_init_regs(k)
    k(stamp(prof, 1))
    k(first_wait(n0, 0, kw.get("bars", (3, 9))))
    q = p2_loop(k, extra={20: g_load()}, prof=prof, **kw)
    fb = p2_finish(k, 0)
    if prof: prof_out(k, 4, sWS, sW, area=area)
    k.label(END)
    k("s_endpgm")
    fb()
    return k

if __name__ == "__main__":
    k = gen_k2()
    for w in (0, 5):
        for br in ({}, {k.name + "_slow": True}):
            for e in check(k, init=dict(wg=3, wave=w), branch=br, verbose=True): print(e)
```

```python
from asmlib import *
from layout import *
import p1, p2, p3
from p1 import *
from p3 import sA, sB, sOut, sTb, sNb, sSa, sSb, sU0, sU1, sRe, sRl, vL, vL2, BUFA, BUFB, vG3

sTS = 96
sSY = 100
vIni = 255
vPo = 248
SPIN = 1 << 16

def spin_loop(k, name, load, cond, back, sCount=34):
    L = name + "_l"
    k.label(name)
    k(f"s_mov_b32 s{sCount}, {SPIN}")
    k.label(L)
    for x in load: k(x)
    k("s_waitcnt vmcnt(0)")
    for x in cond: k(x)
    k(f"""
    s_sub_u32 s{sCount}, s{sCount}, 1
    s_cbranch_scc1 {back}
    s_cbranch_vccnz {L}
    s_branch {back}
    """)

def gen(name, NW=(4, 5), prof=False, area=0, n0=3, bars=(1, 4, 9), prio={0: 3, 18: 2, 25: 1, 30: 0}, pattern=1, gsplit=7, xbar=24, pf0=16, warm=True, pbar=(), arr=9, paced=True, itail=True, obar=True, fine=False, pref=(('pre', -1, -1, -1, -1),) * 2, dbg=None, kvp=False, pub=2, fine2=None, rate=2, wsb=0, hst=(0, 1, 2, 3, 4, 5), omod=' nt', cp=None, bearly=(10, 3), poll=(1, 0)):
    k = Kern(name, block=512, grid=256, lds=163840, vgpr=256, sgpr=102)
    END = name + "_end"
    tails = []
    st = lambda i: stamp(prof, i) if not ((fine and i < 13) or fine2) else ''
    sl = lambda i: [st(i)] if (prof and st(i)) else []
    k(f"s_cmp_ge_u32 s2, 256\ns_cbranch_scc1 {END}")
    LSD = name + "_side"
    p1_setup(k, prof, pref, wsb, LSD)
    LZ = k.uniq("noz")
    assert CB_TABLE[0] != 9 and 128 <= SY_N <= 192
    sy = f"s_add_u32 s{sSY}, s{sWS}, {WS_SYNC}\ns_addc_u32 s{sSY+1}, s{sWS+1}, 0"
    k(sy)
    k(f"""
    s_or_b32 s{sT[0]}, s2, s{sW}
    s_cbranch_scc1 {LZ}
    v_mul_u32_u24 v5, {SY_STRIDE}, v0
    v_mov_b32 v6, 0
    global_store_dword v5, v6, s[{sSY}:{sSY+1}]{SC1}
    v_add_u32 v7, {64 * SY_STRIDE}, v5
    global_store_dword v7, v6, s[{sSY}:{sSY+1}]{SC1}
    v_add_u32 v8, {(SY_N - 64) * SY_STRIDE}, v5
    global_store_dword v8, v6, s[{sSY}:{sSY+1}]{SC1}
    {LZ}:
    """)
    def pro(extra=None, pf=True):
        def f(k, vq):
            if pref and pf:
                for g in pref_loads(*pref).get(-1, []): vq.add(k, g, 'pf')
            if extra: extra(k)
            k(f"s_mov_b32 s{sTS}, s{sCb}\ns_mov_b32 s{sTS+1}, s{sTg}\ns_mov_b32 s{sTS+2}, s{sCg}")
            p2.p2_ids(k)
            p2.o_addr(k, 44, vPo + 4, vPo + 5, 13, 14)
            k(f"s_mov_b32 s{sCb}, s{sTS}\ns_mov_b32 s{sTg}, s{sTS+1}\ns_mov_b32 s{sCg}, s{sTS+2}")
            for r in range(4): k(f"v_mov_b32 v{vPo+r}, -1")
        return f
    LI = lambda: k.uniq("noi")
    def hooks():
        l = LI()
        h = {1: [(None, [f"s_or_b32 s{sT[0]}, s2, s{sW}", f"s_cbranch_scc1 {l}", f"v_mov_b32 v13, 0", f"v_mov_b32 v14, 1", "s_mov_b64 exec, 1",
                         f" global_store_dword v13, v14, s[{sDBG}:{sDBG+1}]{SC1}", "s_mov_b64 exec, -1", l + ":"])],
             2: [('po', [f"buffer_store_dwordx4 v[{vPo}:{vPo+3}], v{vPo+4}, s[44:47], 0 offen{SC1}"]),
                 ('po', [f"buffer_store_dwordx2 v[{vPo}:{vPo+1}], v{vPo+5}, s[44:47], 0 offen{SC1}"])],
             8: [('ini', [f"v_mov_b32 v{vIni}, 0", f"global_load_dword v{vIni}, v{vIni}, s[{sDBG}:{sDBG+1}]{SC1}"])]}
        if pref:
            for when, gs in pref_loads(*pref).items():
                if when not in ('pre', -1): h.setdefault(when, []).extend(('pf', g) for g in gs)
        return h
    def init_check():
        nm, back = k.uniq("ispin"), k.uniq("iback")
        k(f"v_cmp_ne_u32 vcc, 1, v{vIni}\ns_cbranch_vccnz {nm}")
        k.label(back)
        tails.append(lambda: spin_loop(k, nm, [f"v_mov_b32 v{vIni}, 0", f"global_load_dword v{vIni}, v{vIni}, s[{sDBG}:{sDBG+1}]{SC1}"],
                                       [f"v_cmp_ne_u32 vcc, 1, v{vIni}"], back))
    def qkv_addr(k):
        k(f"""
        s_lshr_b32 s{p2.sT0}, s{p2.sHead}, 4
        s_mul_i32 s{p2.sT0}, s{p2.sT0}, 0x1011
        s_add_u32 s{p2.sT0}, s{p2.sT0}, 0x1053
        s_lshl_b32 s{p2.sT1}, s{p2.sQb}, 1
        v_cmp_gt_u32 vcc, 48, v0
        v_lshrrev_b32 v1, 4, v0
        v_lshlrev_b32 v1, 2, v1
        v_bfe_u32 v1, s{p2.sT0}, v1, 4
        v_and_b32 v11, 1, v0
        v_add_u32 v11, s{p2.sT1}, v11
        v_and_b32 v13, 15, v0
        v_cndmask_b32 v11, v11, v13, vcc
        v_lshl_add_u32 v1, v1, 4, v11
        v_mul_u32_u24 v1, {SY_STRIDE}, v1
        """)
    def qkv_wait():
        L, X = k.uniq("qspin"), k.uniq("qdone")
        k(f"""
        s_mov_b32 s34, {SPIN}
        {f"s_cmp_ge_u32 s{sW}, {poll[0]}" if poll[0] < 8 else ""}
        {f"s_cbranch_scc1 {X}" if poll[0] < 8 else ""}
        {L}:
        {f"s_sleep {poll[1]}" if poll[1] else ""}
        global_load_dword v6, v1, s[{sSY}:{sSY+1}] offset:{SY_FLAG * SY_STRIDE}{SC1}
        s_waitcnt vmcnt(0)
        v_cmp_ne_u32 vcc, 1, v6
        s_sub_u32 s34, s34, 1
        s_cbranch_scc1 {X}
        s_cbranch_vccnz {L}
        {X}:
        {"s_barrier" if poll[0] < 8 else ""}
        """)
    def groups(n, *fs):
        q = Kern("tmp", 0, 0, 0, 0)
        for f in fs: f(q)
        out = []
        for x in q.lines:
            if not out or (len(out[-1]) >= n and not x.startswith(("s_addc", "s_cselect"))): out.append([])
            out[-1].append(x)
        return [(None, g) for g in out]
    LQ, LV, LJ, LS = name + "_qkv", name + "_v", name + "_att", name + "_pub"
    k(f"s_cmp_ge_u32 s{sCb}, 10\ns_cbranch_scc1 {LQ}")
    h = hooks()
    h[12] = groups(3, lambda q: late_setup(q, 'F'), gelu_consts)
    h[16] = groups(3, p2.p2_setup)
    h[17] = groups(3, p3.p3_setup)
    h[18] = groups(2, qkv_addr)
    p1_loop(k, 'F', NW[0], prof and not fine2 and prof, True, h, pro(), pbar, fine, paced)
    init_check()
    g = gelu_math('F')
    n = len(g) // 12
    g += ["s_nop 1"] + h_swaps()
    cut = len(g) if gsplit >= 12 else n * gsplit
    k("s_nop 1")
    for x in g[:cut]: k(x)
    k(st(15) if not fine else '')
    qkv_wait()
    k(st(3))
    p2.p2_first_loads(k, n0)
    for x in g[cut:]: k(x)
    p2.p2_init_regs(k)
    k(p2.first_wait(n0, 0, bars) + " lgkmcnt(0)")
    k(f"s_branch {LJ}")
    k.label(LSD)
    k(sy)
    def smid(k, vq):
        pro(pf=False)(k, vq)
        h = hooks()
        for tag, g in h[2] + h[8]: vq.add(k, g, tag)
    k(st(1))
    side_prog(k, VQ(), smid)
    k(st(2))
    k(f"s_branch {LS}")
    k.label(LQ)
    k(f"s_cmp_ge_u32 s{sCb}, 14\ns_cbranch_scc1 {LV}")
    p1_loop(k, 'QK', NW[1], prof and not fine2 and prof, True, hooks(), pro(), pbar, fine, paced, qk_tail() if itail else None)
    if not itail:
        k("s_nop 7")
        qk_epilogue(k)
    k(f"s_branch {LS}")
    k.label(LV)
    p1_loop(k, 'V', NW[1], prof and not fine2 and prof, True, hooks(), pro(), pbar, fine, paced, v_tail() if itail else None)
    if not itail:
        k("s_nop 7")
        v_epilogue(k)
    k.label(LS)
    init_check()
    LA = k.uniq("noarr")
    k(f"""
    s_sub_u32 s{sT[0]}, s{sCb}, 9
    s_lshl_b32 s{sT[0]}, s{sT[0]}, 4
    s_add_u32 s{sT[0]}, s{sT[0]}, s{sRb}
    s_mul_i32 s{sT[0]}, s{sT[0]}, {SY_STRIDE}
    v_mov_b32 v11, s{sT[0]}
    v_mov_b32 v1, 1
    s_waitcnt vmcnt(0)
    s_barrier
    {st(15) if not fine else ''}
    s_cmp_lg_u32 s{sW}, 0
    s_cbranch_scc1 {LA}
    s_mov_b64 exec, 1
    global_store_dword v11, v1, s[{sSY}:{sSY+1}] offset:{SY_FLAG * SY_STRIDE}{SC1}
    s_mov_b64 exec, -1
    {LA}:
    """)
    late_setup(k, 'Q')
    p2.p2_setup(k)
    p2.p2_init_regs(k)
    p3.p3_setup(k)
    qkv_addr(k)
    qkv_wait()
    k(st(3))
    p2.p2_first_loads(k, n0)
    if kvp:
        k(f"""
        s_lshl_b32 s{p2.sT0}, s{p2.sQb}, 15
        s_add_u32 s{p2.sT0}, s{p2.sT0}, 16384
        s_mul_i32 s{p2.sT1}, s{p2.sQg}, {8192 - 1024}
        s_add_u32 s{p2.sT0}, s{p2.sT0}, s{p2.sT1}
        s_add_u32 s{p2.sT0}, s{p2.sT0}, s{p2.sCnt}
        s_cmp_lt_u32 s2, 64
        s_cselect_b32 s{p2.sT0}, s{p2.sT0}, 0x7f000000
        v_lshlrev_b32 v5, 7, v0
        buffer_load_dword v125, v5, s[{p2.sKV}:{p2.sKV+3}], s{p2.sT0} offen{SC1}
        """)
    k(p2.first_wait(n0, 1 if kvp else 0, bars) + " lgkmcnt(0)")
    k.label(LJ)
    LD, LD2 = k.uniq("nodone"), k.uniq("nolast")
    mark = []
    def arrive(vq):
        mark.append(vq.total)
        return [f"s_cmp_lg_u32 s{sW}, 0", f"s_cbranch_scc1 {LD}", f"s_and_b32 s{sU0}, s2, 15", f"s_add_u32 s{sU0}, s{sU0}, {SY_P1}", f"s_mul_i32 s{sU0}, s{sU0}, {SY_STRIDE}",
                f"v_mov_b32 v8, s{sU0}", "v_mov_b32 v10, 1", "s_mov_b64 exec, 1", f"global_atomic_add v9, v8, v10, s[{sSY}:{sSY+1}] sc0 sc1", "s_mov_b64 exec, -1", LD + ":"]
    def publish(vq):
        return [f"s_cmp_lg_u32 s{sW}, 0", f"s_cbranch_scc1 {LD2}", "s_mov_b64 exec, 1", f"s_waitcnt vmcnt({vq.total - mark[0]})", "v_cmp_eq_u32 vcc, 15, v9",
                f"v_add_u32 v8, {(SY_P1F - SY_P1) * SY_STRIDE}, v8", "s_and_b64 exec, exec, vcc", f"s_cbranch_execz {LD2}",
                f"global_store_dword v8, v10, s[{sSY}:{sSY+1}]{SC1}", LD2 + ":", "s_mov_b64 exec, -1"]
    pload = [f"global_load_dword v6, v5, s[{sSY}:{sSY+1}]{SC1}"]
    pcond = ["v_cmp_ne_u32 vcc, 1, v6"]
    nm, back = k.uniq("pspin"), k.uniq("pback")
    tails.append(lambda: spin_loop(k, nm, ["s_sleep 4"] + pload, pcond, back))
    extra = {}
    def put(u, tag, g): extra.setdefault(u, []).append((tag, g))
    put(pf0 - 2, 'p1', ["v_and_b32 v5, 15, v0", f"v_add_u32 v5, {SY_P1F}, v5", f"v_mul_u32_u24 v5, {SY_STRIDE}, v5"] + pload)
    put(pf0, None, lambda vq: [f"s_waitcnt vmcnt({vq.wait('p1')})"] + pcond + [f"s_cbranch_vccnz {nm}", back + ":"] + sl(6))
    for i, x in enumerate(late_stores()):
        if hst[i] is not None: put(hst[i], 'h', [x])
    seq, seqb = [], []
    for s in range(4):
        if s < 3:
            l = p3.slot_loads(s, s, "a"); i = len(l) - 4
            seq += [(('a', s), l[:i + 1])] + [(('a', s), [x]) for x in l[i + 1:]]
        l = p3.slot_loads(s, s, "b"); i = len(l) - 5
        (seqb if bearly else seq).extend([(('b', s), l[:i + 1])] + [(('b', s), [x]) for x in l[i + 1:]])
    if bearly:
        for i, (tag, g) in enumerate(seqb): put(bearly[0] + i // bearly[1], tag, g)
    if warm:
        w = [f"s_lshr_b32 s{sU0}, s2, 3", f"s_cmp_lt_u32 s{sW}, 4", f"s_cselect_b32 s{sTS}, s{sA}, s{sB}", f"s_cselect_b32 s{sTS+1}, s{sA+1}, s{sB+1}",
             f"s_cselect_b32 s{sTS+2}, s{sA+2}, s{sB+2}", f"s_mov_b32 s{sTS+3}, 0x00020000",
             f"s_lshr_b32 s{sU1}, s{sU0}, 3", f"s_lshl_b32 s{sU1}, s{sU1}, 2", f"s_add_u32 s{sU1}, s{sU1}, s{sW}", f"s_lshl_b32 s{sU1}, s{sU1}, 13", f"s_add_u32 s{sU1}, s{sU1}, {22*4096}",
             f"s_and_b32 s{sU0}, s{sU0}, 7", f"s_lshl_b32 s{sU0}, s{sU0}, 1", f"s_and_b32 s34, s{sW}, 1", f"s_add_u32 s{sU0}, s{sU0}, s34", f"s_lshl_b32 s{sU0}, s{sU0}, 13",
             f"s_add_u32 s{sU0}, s{sU0}, {54*5120 - 131072}", f"s_cmp_lt_u32 s{sW}, 4", f"s_cselect_b32 s34, s{sU1}, s{sU0}",
             f"v_lshlrev_b32 v5, 7, v0", f"buffer_load_dword v125, v5, s[{sTS}:{sTS+3}], s34 offen{SC1}"]
        seq += [('w', w), ('w', [f"buffer_load_dword v126, v5, s[{sTS}:{sTS+3}], s34 offen offset:64{SC1}"])]
    seq += p2.g_load()
    u = pf0 + 1
    per = -(-len(seq) // (xbar - u))
    for i, (tag, g) in enumerate(seq): put(u + i // per, tag, g)
    seq = []
    for i, s in enumerate((7, 8, 9)):
        for nt in range(5):
            g = []
            if nt == 0: g += p3.so_b(s)
            if nt in (0, 4): g += [f"s_add_u32 m0, s{sRe}, {5120 * i + 1024 * nt}", None]
            g += [f"buffer_load_dwordx4 v{vL if nt < 4 else vL2}, s[{sB}:{sB+3}], s{sSb} offen offset:{1024 * (nt & 3)}{SC1} lds"]
            seq.append((('l', s), g))
    u = xbar + 1
    per = -(-len(seq) // (31 - u))
    for i, (tag, g) in enumerate(seq): put(u + i // per, tag, g)
    ab = {9: sl(5), xbar: sl(7)}
    if fine2: ab = {u: [stamp(prof, i + 2)] for i, u in enumerate(fine2)}
    ab[arr] = ab.get(arr, []) + [arrive]
    ab[arr + pub] = ab.get(arr + pub, []) + [publish]
    vq = p2.p2_loop(k, cp=cp, n0=n0, rate=rate, also={arr: 'h'}, bars=bars, prio=prio, extra=extra, prof=prof, pattern=pattern, xbars=(xbar,), afterbar=ab, stamps=(13, 15) if fine else ((1, 15) if fine2 else (4, 8)))
    fb = p2.p2_finish(k, vq.wait('g2'), sRl)
    vq.q += ['o', 'o']
    if obar: k('s_barrier')
    k(st(9))
    tails.append(fb)
    vq.add(k, p3.slot_loads(3, 3, "a"), ('a', 3))
    vq.add(k, p3.g_loads(), 'g')
    k(f"v_add_u32 v{p3.vRe}, s{sRe}, v{vL}")
    def lds_b(buf, i):
        return [f"ds_read_b128 v[{BUFB[buf]+4*nt}:{BUFB[buf]+4*nt+3}], v{p3.vRe} offset:{5120*i + 1024*nt}" for nt in range(5)]
    for s in range(7):
        p3.compute_slot(k, vq, s, s % 4, nxt=(s + 4 if s < 6 else None), part=("ab" if s < 3 else "a"), first=(s == 0))
        if 3 <= s < 6:
            for x in lds_b(s % 4, s - 3): k(x)
        if s == 3: k(st(10))
    k("s_nop 7")
    p3.scale(k, vq)
    k(st(11))
    oregs = [BUFA[b] + r for b in (3, 0, 1) for r in range(16)]
    chk = [f"v_max3_u32 v5, v{oregs[0]}, v{oregs[1]}, v{oregs[2]}"] + [f"v_max3_u32 v5, v5, v{a}, v{b}" for a, b in zip(oregs[3::2], oregs[4::2])] + \
          [f"v_max_u32 v5, v5, v{oregs[-1]}", "v_cmp_eq_u32 vcc, -1, v5"]
    nm2, back2 = k.uniq("ospin"), k.uniq("oback")
    k("s_waitcnt vmcnt(0) lgkmcnt(0)")
    for x in chk: k(x)
    k(f"s_cbranch_vccnz {nm2}")
    k.label(back2)
    k(st(12))
    tails.append(lambda: spin_loop(k, nm2, [x for s, b in ((7, 3), (8, 0), (9, 1)) for x in p3.slot_loads(s, b, "a")], chk, back2))
    p3.o_phase(k, [3, 0, 1])
    k(st(13) if not fine else '')
    p3.reduce_store(k, omod)
    if dbg:
        cond = None
        if dbg[1] is not None:
            m = sum(1 << i for i in range(16) if CB_TABLE[i] >= 10)
            cond = f"s_and_b32 s20, s2, 6\ns_lshl_b32 s20, s20, 1\ns_lshr_b32 s21, s2, 6\ns_add_u32 s20, s20, s21\ns_mov_b32 s21, {m}\ns_bitcmp1_b32 s21, s20\ns_cbranch_scc{1 - dbg[1]}"
        prof_dbg(k, 14, sDBG, op=dbg[0], cond=cond)
    elif prof: prof_out(k, 14, sWS, sW, area=area, mode=prof)
    k.label(END)
    k("s_endpgm")
    for t in tails: t()
    return k

if __name__ == "__main__":
    k = gen("f_kernel"); seen = set()
    for wg in (0, 3, 77, 71, 200, 255, 196):
        for w in (0, 3, 4, 7):
            for e in check(k, init=dict(wg=wg, wave=w), verbose=(w == 0)):
                if e not in seen: seen.add(e); print(e)
```

```python
S, D, H, DH, F = 2048, 640, 32, 20, 1728
WS_KV = 0
KV_TILE = 2560
KV_HEAD = 64 * KV_TILE
WS_Q = 0x500000
Q_TILE = 1280
NSTEP = 74
STEP_O = 54
STEP_OT = 70
WS_A2 = 0x800000
A2_BLK = NSTEP * 4096
WS_B2 = 0x1200000
B2_BLK = NSTEP * 5120
WS_G = 0x1600000
WS_SYNC = 0x1700000
SY_STRIDE = 1280
SY_FLAG, SY_P1, SY_P1F, SY_N = 0, 112, 128, 144
QSCALE = (20 ** -0.5) * 1.4426950408889634

def k_order():
    ko = [[[None] * 8 for _ in range(4)] for _ in range(NSTEP)]
    for fb in range(9):
        for cg in range(4):
            for kg in range(4):
                for j in range(8):
                    ko[fb * 4 + cg][kg][j] = 16 * (12 * fb + cg + 4 * (j >> 2)) + 4 * kg + (j & 3)
            for k2 in range(2):
                for j in range(8):
                    ko[36 + 2 * fb + (cg >> 1)][2 * (cg & 1) + k2][j] = 16 * (12 * fb + cg + 8) + 4 * k2 + 8 * (j >> 2) + (j & 3)
    for m in range(16):
        for kg in range(4):
            for j in range(8):
                ko[STEP_O + m][kg][j] = F + 20 * (2 * m + (kg >> 1)) + 4 * (kg & 1) + 8 * (j >> 2) + (j & 3)
    for m in range(4):
        for kg in range(4):
            for j in range(8):
                ko[STEP_OT + m][kg][j] = F + 20 * (8 * m + 2 * kg + (j >> 2)) + 16 + (j & 3)
    flat = sorted(x for a in ko for b in a for x in b)
    assert flat == list(range(F + D))
    return ko
CB_TABLE = [0, 1, 2, 9, 10, 12, 3, 4, 14, 15, 5, 6, 11, 13, 7, 8]
if __name__ == "__main__":
    k_order()
    for M, d, n in ((2731, 24, 768), (1561, 42, 1536), (3277, 20, 320)):
        assert all((u * M) >> 16 == u // d for u in range(n)), (M, d)
    print("ok")
```

```python
from asmlib import *
from layout import *
import struct
def f32hex(x): return "0x%08x" % struct.unpack("<I", struct.pack("<f", x))[0]

sWS, sDBG, sW = 4, 6, 3
sX, sWt, sO = 8, 12, 16
sRb, sCb, sTg, sCg = 20, 21, 22, 23
sT = [24, 25, 26, 27, 28, 29, 30, 31]
sM0x, sM0w = 32, [33, 34, 35]
sSoX, sSoW, sStr = 36, 37, 38
sSwz = 39
sC = 42
sPtr = 48
X_SLOT, W_BASE, W_UP = 16384, 49152, 12288
def wslot(var): return 24576 if var == 'F' else 21504
vDx, vDw = 1, [2, 3, 4]
vXa = [[5, 6], [7, 8]]
vWa = [9, 10]
FR = [16, 56]
ACC = 96
HP = 192
SC1 = " sc1"

def p1_setup(k, prof=False, pref=None, wsb=0, side=None):
    t = sT
    lo = sum(CB_TABLE[i] << (4 * i) for i in range(8)); hi = sum(CB_TABLE[8 + i] << (4 * i) for i in range(8))
    k(f"""
    s_load_dwordx16 s[{sPtr}:{sPtr+15}], s[0:1], 0
    s_load_dwordx2 s[{sWS}:{sWS+1}], s[0:1], 80
    s_load_dwordx2 s[{sDBG}:{sDBG+1}], s[0:1], 72
    {stamp(prof, 0)}
    v_lshrrev_b32 v1, 6, v0
    v_and_b32 v0, 63, v0
    s_and_b32 s{t[0]}, s2, 1
    v_readfirstlane_b32 s{sW}, v1
    s_lshl_b32 s{t[0]}, s{t[0]}, 3
    s_lshr_b32 s{t[1]}, s2, 3
    s_and_b32 s{t[2]}, s{t[1]}, 7
    s_add_u32 s{sRb}, s{t[0]}, s{t[2]}
    s_lshr_b32 s{t[1]}, s{t[1]}, 3
    s_and_b32 s{t[0]}, s2, 2
    s_lshl_b32 s{t[0]}, s{t[0]}, 1
    s_add_u32 s{t[1]}, s{t[1]}, s{t[0]}
    s_lshl_b32 s{t[1]}, s{t[1]}, 2
    s_and_b32 s{t[0]}, s2, 4
    s_mov_b32 s{t[2]}, {hex(hi)}
    s_cmp_eq_u32 s{t[0]}, 0
    s_cselect_b32 s{t[0]}, {hex(lo)}, s{t[2]}
    s_lshr_b32 s{t[0]}, s{t[0]}, s{t[1]}
    s_and_b32 s{sCb}, s{t[0]}, 15
    s_and_b32 s{sTg}, s{sW}, 1
    s_lshr_b32 s{sCg}, s{sW}, 1
    """)
    k(f"""
    s_lshl_b32 s{sM0x}, s{sW}, 10
    s_lshl_b32 s{t[0]}, s{sW}, 2
    v_lshrrev_b32 v5, 4, v0
    v_add_u32 v5, s{t[0]}, v5
    v_xor_b32 v5, v5, v0
    v_and_b32 v5, 7, v5
    v_lshlrev_b32 v5, 4, v5
    v_lshrrev_b32 v6, 3, v0
    s_mul_i32 s{t[0]}, s{sW}, {8*1280}
    v_mul_u32_u24 v6, 1280, v6
    v_add3_u32 v{vDx}, v5, v6, s{t[0]}
    s_mul_i32 s{t[1]}, s{sRb}, {128*1280}
    s_mov_b32 s{sX+2}, {128*1280}
    s_mov_b32 s{sX+3}, 0x00020000
    s_mov_b32 s{sWt+3}, 0x00020000
    s_mov_b32 s{sO+3}, 0x00020000
    """)
    LQ, LJ = k.uniq("qkvpar"), k.uniq("parj")
    k(f"""
    s_mov_b32 s{sSoX}, s{t[1]}
    s_cmp_ge_u32 s{sCb}, 10
    s_cbranch_scc1 {LQ}
    s_mov_b32 s{sSwz}, 6
    s_mov_b32 s{t[2]}, 2731
    s_mov_b32 s{t[3]}, 24
    s_mov_b32 s{t[4]}, 3456
    s_mul_i32 s{t[5]}, s{sCb}, 384
    s_and_b32 s{t[6]}, s{sW}, 3
    s_mov_b32 s{t[7]}, 4
    s_mov_b32 s{sC}, 24
    s_lshr_b32 s{sC+1}, s{sW}, 2
    s_mul_i32 s{sC+1}, s{sC+1}, {W_UP}
    s_mov_b32 s{sWt+2}, {640*3456}
    s_branch {LJ}
    {LQ}:
    s_mov_b32 s{sSwz}, 0
    s_mov_b32 s{t[2]}, 1561
    s_mov_b32 s{t[3]}, 42
    s_mov_b32 s{t[4]}, 3840
    s_sub_u32 s{t[5]}, s{sCb}, 10
    s_mul_i32 s{t[5]}, s{t[5]}, 640
    s_mov_b32 s{t[6]}, s{sW}
    s_mov_b32 s{t[7]}, 8
    s_mov_b32 s{sC}, 40
    s_mov_b32 s{sC+1}, 0
    s_mov_b32 s{sWt+2}, {640*3840}
    {LJ}:
    s_lshl_b32 s{sStr}, s{t[4]}, 5
    s_mov_b32 s{sSoW}, 0
    v_mov_b32 v13, 0x7fff0000
    """)
    for i in range(3):
        k(f"""
        s_lshl_b32 s{t[0]}, s{t[6]}, 6
        v_add_u32 v5, s{t[0]}, v0
        v_mul_u32_u24 v6, s{t[2]}, v5
        v_lshrrev_b32 v6, 16, v6
        v_mul_u32_u24 v7, s{t[3]}, v6
        v_sub_u32 v7, v5, v7
        v_and_b32 v8, 0x13, v6
        v_and_b32 v9, 4, v6
        v_lshl_or_b32 v8, v9, 1, v8
        v_and_b32 v9, 8, v6
        v_lshrrev_b32 v9, 1, v9
        v_or_b32 v8, v8, v9
        v_mul_u32_u24 v8, s{t[4]}, v8
        v_cmp_gt_u32 vcc, s{sC}, v7
        v_and_b32 v9, s{sSwz}, v6
        v_xor_b32 v7, v7, v9
        v_lshl_add_u32 v8, v7, 4, v8
        v_add_u32 v8, s{t[5]}, v8
        v_cndmask_b32 v8, v13, v8, vcc
        v_cmp_gt_u32 vcc, 32, v6
        s_lshl_b32 s{t[0]}, s{t[6]}, 10
        s_add_u32 s{t[0]}, s{t[0]}, s{sC+1}
        v_cndmask_b32 v{vDw[i]}, v13, v8, vcc
        s_lshl_b32 s{t[1]}, s{t[6]}, 1
        s_cmp_lt_u32 s{t[1]}, s{t[3]}
        s_cselect_b32 s{sM0w[i]}, s{t[0]}, {163840 - W_BASE}
        s_add_u32 s{t[6]}, s{t[6]}, s{t[7]}
        """)
    if pref: pref_setup(k)
    k(f"""
    s_mov_b32 m0, s{sM0x}
    s_mov_b32 s{t[0]}, {64*1280}
    s_cmp_lt_u32 s{sW}, 4
    s_waitcnt lgkmcnt(0)
    s_cselect_b32 s{sWt}, s{sPtr+8}, s{sPtr+10}
    s_cselect_b32 s{sWt+1}, s{sPtr+9}, s{sPtr+11}
    s_cmp_ge_u32 s{sCb}, 10
    s_cselect_b32 s{sWt}, s{sPtr+2}, s{sWt}
    s_cselect_b32 s{sWt+1}, s{sPtr+3}, s{sWt+1}
    s_add_u32 s{sX}, s{sPtr}, s{sSoX}
    s_addc_u32 s{sX+1}, s{sPtr+1}, 0
    """)
    if wsb: k(f"s_add_u32 s{sWS}, s{sWS}, {hex(wsb)}\ns_addc_u32 s{sWS+1}, s{sWS+1}, 0")
    if side: k(f"s_cmp_eq_u32 s{sCb}, 9\ns_cbranch_scc1 {side}")
    pre = pref_loads(*pref).get('pre', []) if pref else []
    for g in pre:
        for x in g: k(x)
    k(f"""
    buffer_load_dwordx4 v{vDx}, s[{sX}:{sX+3}], 0 offen lds
    s_add_u32 m0, s{sM0x}, 8192
    s_nop 0
    buffer_load_dwordx4 v{vDx}, s[{sX}:{sX+3}], s{t[0]} offen lds
    """)
    for i in range(3):
        k(f"""
        s_add_u32 m0, s{sM0w[i]}, {W_BASE}
        s_nop 0
        buffer_load_dwordx4 v{vDw[i]}, s[{sWt}:{sWt+3}], 0 offen lds
        """)

vPf = 240
def pref_setup(k):
    t = sT
    k(f"""
    s_movk_i32 s{sC+2}, 320
    s_lshr_b32 s{t[6]}, s{sW}, 2
    s_lshl_b32 s{t[6]}, s{t[6]}, 1
    s_cmp_ge_u32 s{sCb}, 10
    s_cselect_b32 s{t[0]}, 3, 2
    s_cselect_b32 s{t[1]}, 7, 3
    s_cselect_b32 s{t[6]}, s{t[6]}, 0
    s_cselect_b32 s{t[2]}, 512, s{sC+2}
    s_and_b32 s{t[3]}, s{sW}, 3
    s_lshl_b32 s{t[3]}, s{t[3]}, 3
    s_and_b32 s{t[7]}, s{sRb}, 7
    s_add_u32 s{t[3]}, s{t[3]}, s{t[7]}
    s_lshl_b32 s{t[3]}, s{t[3]}, 2
    s_add_u32 s{t[6]}, s{t[6]}, s{t[3]}
    v_lshrrev_b32 v5, s{t[0]}, v0
    v_add_u32 v5, s{t[6]}, v5
    v_mul_u32_u24 v5, s{t[4]}, v5
    v_and_b32 v6, s{t[1]}, v0
    v_lshlrev_b32 v6, 7, v6
    v_min_u32 v6, s{t[2]}, v6
    v_cmp_gt_u32 vcc, 16, v0
    v_add3_u32 v5, v5, v6, s{t[5]}
    s_lshr_b32 s{t[0]}, s2, 6
    v_cndmask_b32 v{vPf}, v13, v5, vcc
    s_lshl_b32 s{t[0]}, s{t[0]}, 3
    s_add_u32 s{t[0]}, s{t[0]}, s{sW}
    s_mul_i32 s{t[0]}, s{t[0]}, {4*1280}
    v_lshrrev_b32 v5, 1, v0
    v_mul_u32_u24 v5, 1280, v5
    v_and_b32 v6, 1, v0
    v_lshlrev_b32 v6, 7, v6
    v_cmp_gt_u32 vcc, 8, v0
    v_add3_u32 v5, v5, v6, s{t[0]}
    s_nop 0
    v_cndmask_b32 v{vPf+1}, v13, v5, vcc
    """)
def pref_loads(ww, wx, mod=""):
    t = sT
    out = {}
    for j in range(5):
        out.setdefault(wx[j], []).append([f"buffer_load_dword v{vPf+3}, v{vPf+1}, s[{sX}:{sX+3}], 0 offen offset:{256*j}{mod}"])
        out.setdefault(ww[j], []).append([f"s_mul_i32 s{t[1]}, s{sStr}, {4*j}", f"buffer_load_dword v{vPf+2}, v{vPf}, s[{sWt}:{sWt+3}], s{t[1]} offen{mod}"])
    out.pop(None, None)
    return out

def dma_group(n, NW, var):
    out = []
    if n >= 20: return out
    out.append([f"s_add_u32 s{sSoW}, s{sSoW}, s{sStr}"])
    for i in range(3):
        out.append([f"s_add_u32 m0, s{sM0w[i]}, {W_BASE + (n % NW) * wslot(var)}", None, f"buffer_load_dwordx4 v{vDw[i]}, s[{sWt}:{sWt+3}], s{sSoW} offen lds"])
    if n % 2 == 0:
        c = n // 2
        for h in range(2):
            out.append([f"s_add_u32 m0, s{sM0x}, {(c % 3) * X_SLOT + h * 8192}", f"s_mov_b32 s{sSoX}, {h * 64 * 1280 + c * 128}",
                        f"buffer_load_dwordx4 v{vDx}, s[{sX}:{sX+3}], s{sSoX} offen lds"])
    return out
def ndma(n): return 0 if n >= 20 else (5 if n % 2 == 0 else 3)

def p1_addr(k, var):
    t = sT
    pitch = 384 if var == 'F' else 672
    k(f"""
    v_and_b32 v13, 15, v0
    v_lshrrev_b32 v14, 4, v0
    v_lshrrev_b32 v15, 1, v13
    v_xor_b32 v15, v15, v14
    v_lshlrev_b32 v15, 4, v15
    v_lshl_add_u32 v15, v13, 7, v15
    s_lshl_b32 s{t[0]}, s{sTg}, 13
    v_add_u32 v{vXa[0][0]}, s{t[0]}, v15
    v_xor_b32 v{vXa[0][1]}, 4096, v{vXa[0][0]}
    v_xor_b32 v{vXa[1][0]}, 64, v{vXa[0][0]}
    v_xor_b32 v{vXa[1][1]}, 64, v{vXa[0][1]}
    v_lshrrev_b32 v13, 2, v0
    v_and_b32 v15, 7, v13
    v_and_b32 v13, 8, v13
    v_lshl_or_b32 v15, v13, 1, v15
    v_mul_u32_u24 v15, {pitch}, v15
    v_and_b32 v13, 3, v0
    v_mul_u32_u24 v13, {40 if var == 'QK' else 8}, v13
    """)
    if var == 'F':
        k(f"""
        v_bfe_u32 v14, v0, 3, 2
        v_xor_b32 v14, s{sCg}, v14
        v_lshl_add_u32 v13, v14, 5, v13
        s_mov_b32 s{t[0]}, {W_BASE}
        """)
    else:
        k(f"s_mul_i32 s{t[0]}, s{sCg}, 160\ns_add_u32 s{t[0]}, s{t[0]}, {W_BASE}")
    k(f"""
    v_add3_u32 v{vWa[0]}, v13, v15, s{t[0]}
    v_add_u32 v{vWa[1]}, {2*wslot(var)}, v{vWa[0]}
    """)

def frag_reads(var, s, NW):
    fs = FR[s & 1]
    out = []
    for tt in range(4):
        out.append(f"ds_read_b128 v[{fs+4*tt}:{fs+4*tt+3}], v{vXa[s & 1][tt >> 1]} offset:{((s // 2) % 3) * X_SLOT + (tt & 1) * 2048}")
    slot = s % NW
    hb = 1 if slot >= 2 else 0
    so = (slot - 2 * hb) * wslot(var)
    w0 = fs + 16
    if var == 'F':
        for sl in range(3):
            for up in range(2):
                r = w0 + 4 * (2 * sl + up)
                for j in range(2):
                    out.append(f"ds_read_b64_tr_b16 v[{r+2*j}:{r+2*j+1}], v{vWa[hb]} offset:{so + up * W_UP + 128 * sl + j * 8 * 384}")
    else:
        for tl in range(5):
            r = w0 + 4 * tl
            for j in range(2):
                out.append(f"ds_read_b64_tr_b16 v[{r+2*j}:{r+2*j+1}], v{vWa[hb]} offset:{so + tl * (8 if var == 'QK' else 32) + j * 8 * 672}")
    return out

def acc_reg(var, tt, c):
    return ACC + 4 * (tt * (6 if var == 'F' else 5) + c)
def mfmas(var, s):
    fs = FR[s & 1]
    out = []
    nc = 6 if var == 'F' else 5
    for tt in range(4):
        for c in range(nc):
            d = acc_reg(var, tt, c)
            X, W = f"v[{fs+4*tt}:{fs+4*tt+3}]", f"v[{fs+16+4*c}:{fs+19+4*c}]"
            a, b = (X, W) if var == 'V' else (W, X)
            out.append(f"v_mfma_f32_16x16x32_bf16 v[{d}:{d+3}], {a}, {b}, " + ("0" if s == 0 else f"v[{d}:{d+3}]"))
    return out

def p1_loop(k, var, NW, prof=False, compute=True, hooks=None, pro=None, pbar=(0, 1), fine=True, paced=False, tail=None):
    hooks = hooks or {}
    vq = VQ([0] * 5)
    nxt = 2 if paced else NW
    for n in range(1, nxt):
        if n - 1 in pbar: k("s_barrier")
        for g in dma_group(n, NW, var): vq.add(k, g, n)
    p1_addr(k, var)
    if pro: pro(k, vq)
    k(f"s_waitcnt vmcnt({vq.wait(0)})")
    k("s_barrier")
    k(stamp(prof, 1))
    for x in frag_reads(var, 0, NW): k(x)
    for (tag, y) in hooks.get('b', []): vq.add(k, y, tag)
    if paced:
        for g in dma_group(2, NW, var): vq.add(k, g, 2)
        nxt = 3
    for s in range(20):
        k(f"s_waitcnt vmcnt({vq.wait(s + 1)}) lgkmcnt(0)")
        k("s_barrier")
        if prof == "rt" and fine and s % 2 == 1: k(stamp(prof, 2 + s // 2))
        m = mfmas(var, s) if compute else []
        r = frag_reads(var, s + 1, NW) if (s < 19 and compute) else []
        g = list(hooks.get(s - 0.5, []))
        for _ in range(2):
            if nxt <= s + NW and nxt < 20:
                y = dma_group(nxt, NW, var)
                g += [(nxt, y[0] + y[1])] + [(nxt, z) for z in y[2:]]
                nxt += 1
        g += [(tag, y) for (tag, y) in hooks.get(s, [])]
        seq = []
        ri = gi = 0
        slots = len(m) - (len(r) + 1) // 2
        every = 2 if slots >= 2 * len(g) else 1
        for i, x in enumerate(m):
            seq.append(x)
            if ri < len(r):
                seq += r[ri:ri + 2]; ri += 2
            elif gi < len(g) and (i % every == 0):
                seq += vq.note(g[gi][1], g[gi][0]); gi += 1
        for y in g[gi:]: seq += vq.note(y[1], y[0])
        if s == 19 and tail:
            seq, nc = [], len(m) // 4
            for i, x in enumerate(m):
                seq.append(x)
                tt, c = divmod(i, nc)
                if tt >= 2:
                    e = tail[tt - 2]
                    seq += e[c * len(e) // nc:(c + 1) * len(e) // nc]
                elif i == 0: seq += tail[4]
            seq += tail[2] + tail[3]
        for x in seq: k(x or "s_nop 0")
    k(stamp(prof, 12 if (prof == 'rt' and fine) else 2))
    return vq

def gelu_consts(k):
    c1 = -2.0 * 1.4426950408889634 * (2.0 / 3.141592653589793) ** 0.5
    k(f"""
    s_mov_b32 s60, {f32hex(c1 * 0.044715)}
    s_mov_b32 s61, {f32hex(c1 * 0.044715)}
    v_mov_b32 v220, {f32hex(c1)}
    v_mov_b32 v221, {f32hex(c1)}
    """)
def gelu_math(var):
    items = []
    for tt in range(4):
        for sl in range(2): items.append((tt, sl, HP + 4 * tt + 2 * sl))
        items.append((tt, 2, HP + 16 + 2 * tt))
    P = lambda r: f"v[{r}:{r+1}]"
    def stage(n, ph):
        tt, sl, dst = items[n]
        g, u = acc_reg(var, tt, 2 * sl), acc_reg(var, tt, 2 * sl + 1)
        z = 16 + 4 * (n % 4)
        if ph == 0:
            return [f"v_pk_mul_f32 {P(z+2*h)}, {P(g+2*h)}, {P(g+2*h)}" for h in range(2)] + \
                   [f"v_pk_fma_f32 {P(z+2*h)}, {P(z+2*h)}, s[60:61], v[220:221]" for h in range(2)] + \
                   [f"v_pk_mul_f32 {P(z+2*h)}, {P(z+2*h)}, {P(g+2*h)}" for h in range(2)]
        if ph == 1:
            return [f"v_exp_f32 v{z+i}, v{z+i}" for i in range(4)] + [f"v_pk_mul_f32 {P(u+2*h)}, {P(u+2*h)}, {P(g+2*h)}" for h in range(2)] + \
                   [f"v_pk_add_f32 {P(z+2*h)}, {P(z+2*h)}, 1.0 op_sel_hi:[1,0]" for h in range(2)]
        return [f"v_rcp_f32 v{z+i}, v{z+i}" for i in range(4)] + ["s_nop 0"] + [f"v_pk_mul_f32 {P(u+2*h)}, {P(u+2*h)}, {P(z+2*h)}" for h in range(2)] + \
               [f"v_cvt_pk_bf16_f32 v{dst+h}, v{u+2*h}, v{u+2*h+1}" for h in range(2)]
    out = []
    for n in range(len(items)):
        for ph in range(3): out += stage(n, ph)
    return out

def h_swaps():
    return [f"v_permlane32_swap_b32 v{HP+16+4*pr+h}, v{HP+18+4*pr+h}" for pr in range(2) for h in range(2)]

def qk_epilogue(k):
    t = sT
    LK, LJ = k.uniq("isk"), k.uniq("qkj")
    k(f"""
    s_and_b32 s{t[3]}, s{sCb}, 1
    s_lshl_b32 s{t[3]}, s{t[3]}, 2
    s_add_u32 s{t[3]}, s{t[3]}, s{sCg}
    s_lshl_b32 s{t[3]}, s{t[3]}, 8
    s_lshl_b32 s{t[4]}, s{sRb}, 2
    s_add_u32 s{t[3]}, s{t[3]}, s{t[4]}
    s_lshl_b32 s{t[4]}, s{sTg}, 1
    s_add_u32 s{t[3]}, s{t[3]}, s{t[4]}
    v_and_b32 v13, 15, v0
    v_lshrrev_b32 v14, 4, v0
    s_cmp_ge_u32 s{sCb}, 12
    s_cbranch_scc1 {LK}
    s_mov_b32 s{t[0]}, {WS_Q}
    s_mov_b32 s{t[1]}, {Q_TILE}
    s_mov_b32 s{t[5]}, 16
    s_mov_b32 s{sC}, {f32hex(QSCALE)}
    s_mov_b32 s{sC+1}, {f32hex(QSCALE)}
    """)
    for r in range(0, 80, 2): k(f"v_pk_mul_f32 v[{ACC+r}:{ACC+r+1}], v[{ACC+r}:{ACC+r+1}], s[{sC}:{sC+1}]")
    k(f"""
    s_branch {LJ}
    {LK}:
    s_mov_b32 s{t[0]}, {WS_KV}
    s_mov_b32 s{t[1]}, {KV_TILE}
    s_mov_b32 s{t[5]}, 8
    v_and_b32 v15, 8, v13
    v_add_u32 v13, v13, v15
    {LJ}:
    s_mul_i32 s{t[3]}, s{t[3]}, s{t[1]}
    s_add_u32 s{t[0]}, s{t[0]}, s{t[3]}
    s_add_u32 s{sO}, s{sWS}, s{t[0]}
    s_addc_u32 s{sO+1}, s{sWS+1}, 0
    s_lshl_b32 s{t[2]}, s{t[1]}, 6
    s_lshl_b32 s{sO+2}, s{t[1]}, 8
    v_mul_u32_u24 v14, s{t[2]}, v14
    v_add_u32 v15, s{t[5]}, v13
    v_lshl_add_u32 v5, v13, 4, v14
    v_lshl_add_u32 v6, v15, 4, v14
    v_lshl_add_u32 v7, v13, 3, v14
    v_lshl_add_u32 v8, v15, 3, v14
    """)
    for tt in range(4):
        o = 16 + 12 * tt
        for c in range(5):
            a = acc_reg('QK', tt, c)
            for h in range(2): k(f"v_cvt_pk_bf16_f32 v{o+2*c+h}, v{a+2*h}, v{a+2*h+1}")
        so = "0" if tt < 2 else f"s{t[1]}"
        k(f"buffer_store_dwordx4 v[{o}:{o+3}], v{5+(tt&1)}, s[{sO}:{sO+3}], {so} offen{SC1}")
        k(f"buffer_store_dwordx4 v[{o+4}:{o+7}], v{5+(tt&1)}, s[{sO}:{sO+3}], {so} offen offset:512{SC1}")
        k(f"buffer_store_dwordx2 v[{o+8}:{o+9}], v{7+(tt&1)}, s[{sO}:{sO+3}], {so} offen offset:1024{SC1}")

def v_epilogue(k):
    t = sT
    k(f"""
    s_and_b32 s{t[3]}, s{sCb}, 1
    s_lshl_b32 s{t[3]}, s{t[3]}, 2
    s_add_u32 s{t[3]}, s{t[3]}, s{sCg}
    s_lshl_b32 s{t[3]}, s{t[3]}, 8
    s_lshl_b32 s{t[4]}, s{sRb}, 2
    s_add_u32 s{t[3]}, s{t[3]}, s{t[4]}
    s_lshl_b32 s{t[4]}, s{sTg}, 1
    s_add_u32 s{t[3]}, s{t[3]}, s{t[4]}
    s_mul_i32 s{t[3]}, s{t[3]}, {KV_TILE}
    s_add_u32 s{t[3]}, s{t[3]}, {WS_KV}
    s_add_u32 s{sO}, s{sWS}, s{t[3]}
    s_addc_u32 s{sO+1}, s{sWS+1}, 0
    s_mov_b32 s{sO+2}, {4*KV_HEAD}
    s_mov_b32 s{t[0]}, {KV_HEAD - 320}
    v_lshrrev_b32 v14, 4, v0
    v_mul_u32_u24 v14, 320, v14
    v_and_b32 v13, 15, v0
    """)
    for c in range(5):
        k(f"""
        v_add_u32 v15, {16*c}, v13
        v_mul_u32_u24 v{5+c}, 3277, v15
        v_lshrrev_b32 v{5+c}, 16, v{5+c}
        v_mul_u32_u24 v{5+c}, s{t[0]}, v{5+c}
        v_lshl_add_u32 v15, v15, 4, v14
        v_add_u32 v{5+c}, v{5+c}, v15
        """)
    n = 0
    for pr in range(2):
        for c in range(5):
            o = 16 + 4 * n; n += 1
            for b in range(2):
                a = acc_reg('V', 2 * pr + b, c)
                for h in range(2): k(f"v_cvt_pk_bf16_f32 v{o+2*b+h}, v{a+2*h}, v{a+2*h+1}")
            k(f"buffer_store_dwordx4 v[{o}:{o+3}], v{5+c}, s[{sO}:{sO+3}], 0 offen offset:{1280 + pr*KV_TILE}{SC1}")

def qk_tail():
    t = sT
    pre = f"""
    s_and_b32 s{t[3]}, s{sCb}, 1
    s_lshl_b32 s{t[3]}, s{t[3]}, 2
    s_add_u32 s{t[3]}, s{t[3]}, s{sCg}
    s_lshl_b32 s{t[3]}, s{t[3]}, 8
    s_lshl_b32 s{t[4]}, s{sRb}, 2
    s_add_u32 s{t[3]}, s{t[3]}, s{t[4]}
    s_lshl_b32 s{t[4]}, s{sTg}, 1
    s_add_u32 s{t[3]}, s{t[3]}, s{t[4]}
    v_and_b32 v13, 15, v0
    v_lshrrev_b32 v14, 4, v0
    s_mov_b32 s{t[0]}, {WS_Q}
    s_mov_b32 s{t[1]}, {Q_TILE}
    s_mov_b32 s{sC}, {f32hex(QSCALE)}
    s_cmp_ge_u32 s{sCb}, 12
    s_cselect_b32 s{t[0]}, {WS_KV}, s{t[0]}
    s_cselect_b32 s{t[1]}, {KV_TILE}, s{t[1]}
    s_cselect_b32 s{t[5]}, 8, 16
    s_cselect_b32 s{t[6]}, 8, 0
    s_cselect_b32 s{sC}, 1.0, s{sC}
    s_mov_b32 s{sC+1}, s{sC}
    v_and_b32 v15, s{t[6]}, v13
    v_add_u32 v13, v13, v15
    s_mul_i32 s{t[3]}, s{t[3]}, s{t[1]}
    s_add_u32 s{t[0]}, s{t[0]}, s{t[3]}
    s_add_u32 s{sO}, s{sWS}, s{t[0]}
    s_addc_u32 s{sO+1}, s{sWS+1}, 0
    s_lshl_b32 s{t[2]}, s{t[1]}, 6
    s_lshl_b32 s{sO+2}, s{t[1]}, 8
    v_mul_u32_u24 v14, s{t[2]}, v14
    v_add_u32 v15, s{t[5]}, v13
    v_lshl_add_u32 v5, v13, 4, v14
    v_lshl_add_u32 v6, v15, 4, v14
    v_lshl_add_u32 v7, v13, 3, v14
    v_lshl_add_u32 v8, v15, 3, v14
    """
    out = []
    for tt in range(4):
        o = 16 + 12 * tt
        e = []
        for c in range(5):
            a = acc_reg('QK', tt, c)
            e += [f"v_pk_mul_f32 v[{a+2*h}:{a+2*h+1}], v[{a+2*h}:{a+2*h+1}], s[{sC}:{sC+1}]" for h in range(2)]
            e += [f"v_cvt_pk_bf16_f32 v{o+2*c+h}, v{a+2*h}, v{a+2*h+1}" for h in range(2)]
            so = "0" if tt < 2 else f"s{t[1]}"
            if c == 1: e.append(f"buffer_store_dwordx4 v[{o}:{o+3}], v{5+(tt&1)}, s[{sO}:{sO+3}], {so} offen{SC1}")
            if c == 3: e.append(f"buffer_store_dwordx4 v[{o+4}:{o+7}], v{5+(tt&1)}, s[{sO}:{sO+3}], {so} offen offset:512{SC1}")
            if c == 4: e.append(f"buffer_store_dwordx2 v[{o+8}:{o+9}], v{7+(tt&1)}, s[{sO}:{sO+3}], {so} offen offset:1024{SC1}")
        out.append(e)
    return out + [[x.strip() for x in pre.strip().split("\n")]]

def v_tail():
    t = sT
    pre = f"""
    s_and_b32 s{t[3]}, s{sCb}, 1
    s_lshl_b32 s{t[3]}, s{t[3]}, 2
    s_add_u32 s{t[3]}, s{t[3]}, s{sCg}
    s_lshl_b32 s{t[3]}, s{t[3]}, 8
    s_lshl_b32 s{t[4]}, s{sRb}, 2
    s_add_u32 s{t[3]}, s{t[3]}, s{t[4]}
    s_lshl_b32 s{t[4]}, s{sTg}, 1
    s_add_u32 s{t[3]}, s{t[3]}, s{t[4]}
    s_mul_i32 s{t[3]}, s{t[3]}, {KV_TILE}
    s_add_u32 s{t[3]}, s{t[3]}, {WS_KV}
    s_add_u32 s{sO}, s{sWS}, s{t[3]}
    s_addc_u32 s{sO+1}, s{sWS+1}, 0
    s_mov_b32 s{sO+2}, {4*KV_HEAD}
    s_mov_b32 s{t[0]}, {KV_HEAD - 320}
    v_lshrrev_b32 v14, 4, v0
    v_mul_u32_u24 v14, 320, v14
    v_and_b32 v13, 15, v0
    """
    for c in range(5):
        pre += f"""v_add_u32 v15, {16*c}, v13
        v_mul_u32_u24 v{5+c}, 3277, v15
        v_lshrrev_b32 v{5+c}, 16, v{5+c}
        v_mul_u32_u24 v{5+c}, s{t[0]}, v{5+c}
        v_lshl_add_u32 v15, v15, 4, v14
        v_add_u32 v{5+c}, v{5+c}, v15
        """
    out = []
    for tt in range(4):
        pr, b = divmod(tt, 2)
        e = []
        for c in range(5):
            o = 16 + 4 * (5 * pr + c)
            a = acc_reg('V', tt, c)
            e += [f"v_cvt_pk_bf16_f32 v{o+2*b+h}, v{a+2*h}, v{a+2*h+1}" for h in range(2)]
            if b: e.append(f"buffer_store_dwordx4 v[{o}:{o+3}], v{5+c}, s[{sO}:{sO+3}], 0 offen offset:{1280 + pr*KV_TILE}{SC1}")
        out.append(e)
    return out + [[x.strip() for x in pre.strip().split("\n")]]

LATE_SZ = WS_SYNC
BIGV = 0x7fff0000
def side_prog(k, vq, mid=None):
    t = sT
    sJ, sA, sB1, sB2_, sCj, sSt, sCq = t[0], t[1], t[2], t[3], t[4], t[5], t[6]
    sK = 32
    vRow, vHi, vAd, vTr, vSt = 1, 2, 3, 4, 5
    k(f"""
    v_bfe_u32 v6, v0, 3, 2
    v_mul_u32_u24 v6, 1280, v6
    v_and_b32 v7, 7, v0
    v_lshl_add_u32 v{vRow}, v7, 4, v6
    v_lshrrev_b32 v6, 5, v0
    v_mul_u32_u24 v{vHi}, 1280, v6
    v_lshrrev_b32 v6, 4, v0
    v_lshlrev_b32 v6, 10, v6
    v_bfe_u32 v7, v0, 2, 2
    v_lshl_add_u32 v6, v7, 7, v6
    v_and_b32 v7, 3, v0
    v_lshl_add_u32 v6, v7, 3, v6
    s_mul_i32 s{sSoX}, s{sW}, 20480
    v_add_u32 v{vTr}, s{sSoX}, v6
    v_lshlrev_b32 v{vSt}, 4, v0
    s_add_u32 s{sO}, s{sWS}, {WS_B2}
    s_addc_u32 s{sO+1}, s{sWS+1}, 0
    s_mov_b32 s{sO+2}, {8*B2_BLK}
    """)
    sSo = 56
    k(f"s_mov_b32 s{sSo}, s{sSoX}")
    def loads(i, slot):
        L = [k.uniq(f"ty{j}") for j in range(4)]
        k(f"""
        s_lshl_b32 s{sJ}, s{sRb}, 3
        s_add_u32 s{sJ}, s{sJ}, s{sW}
        s_add_u32 s{sJ}, s{sJ}, {128 * i}
        s_mul_i32 s{sSt}, s{sJ}, 6554
        s_lshr_b32 s{sSt}, s{sSt}, 16
        s_mul_i32 s{sCq}, s{sSt}, 10
        s_sub_u32 s{sCq}, s{sJ}, s{sCq}
        s_mov_b32 s{sB1}, {4*1280}
        s_mov_b32 s{sCj}, 8
        """)
        lo, hi = 128 * i // 10, (128 * i + 127) // 10
        kinds = [(0, 36), (36, 54), (54, 70), (70, 77)]
        use = [j for j, (a, b) in enumerate(kinds) if a <= hi and b > lo]
        for j in use[1:][::-1]: k(f"s_cmp_ge_u32 s{sSt}, {kinds[j][0]}\ns_cbranch_scc1 {L[j]}")
        LJ = k.uniq("tyj")
        for j in use:
            if j != use[0]: k.label(L[j])
            if j == 0:
                k(f"""
                s_lshr_b32 s{sA}, s{sSt}, 2
                s_lshl_b32 s{sA}, s{sA}, 3
                s_add_u32 s{sA}, s{sA}, s{sSt}
                s_lshl_b32 s{sA}, s{sA}, 4
                s_mov_b32 s{sB2_}, {8*1280}
                s_mov_b32 s{sCj}, 64
                """)
            elif j == 1:
                k(f"""
                s_sub_u32 s{sA}, s{sSt}, 36
                s_lshr_b32 s{t[7]}, s{sA}, 1
                s_lshl_b32 s{t[7]}, s{t[7]}, 2
                s_add_u32 s{sA}, s{sA}, s{t[7]}
                s_add_u32 s{sA}, s{sA}, 4
                s_lshl_b32 s{sA}, s{sA}, 5
                s_mov_b32 s{sB2_}, {16*1280}
                """)
            elif j == 2:
                k(f"s_sub_u32 s{sA}, s{sSt}, 54\ns_mul_i32 s{sA}, s{sA}, 40\ns_mov_b32 s{sB2_}, {20*1280}")
            else:
                k(f"""
                s_sub_u32 s{sA}, s{sSt}, 70
                s_mul_i32 s{sA}, s{sA}, 160
                s_add_u32 s{sA}, s{sA}, 16
                s_mov_b32 s{sB1}, {40*1280}
                s_mov_b32 s{sB2_}, {80*1280}
                s_mov_b32 s{sCj}, 20
                """)
            if j != use[-1]: k(f"s_branch {LJ}")
        k.label(LJ)
        k(f"""
        v_mad_u32_u24 v{vAd}, v{vHi}, s{sCj}, v{vRow}
        s_mul_i32 s{sA}, s{sA}, 1280
        s_lshl_b32 s{t[7]}, s{sCq}, 7
        s_add_u32 s{sA}, s{sA}, s{t[7]}
        s_lshl_b32 s{sK+2*i+1}, s{sCq}, 2
        s_mul_i32 s{sK+2*i}, s{sSt}, 5120
        s_mov_b32 s{t[7]}, {1728*1280}
        s_cmp_ge_u32 s{sSt}, 54
        s_cselect_b32 s{sWt}, s{sPtr+4}, s{sPtr+12}
        s_cselect_b32 s{sWt+1}, s{sPtr+5}, s{sPtr+13}
        s_cselect_b32 s{sWt+2}, {640*1280}, s{t[7]}
        """)
        if hi >= NSTEP:
            k(f"""
            s_cmp_ge_u32 s{sSt}, {NSTEP}
            s_cselect_b32 s{sA}, 0x7f000000, s{sA}
            s_cselect_b32 s{sK+2*i}, 0x7f000000, s{sK+2*i}
            """)
        ld = lambda so: f"buffer_load_dwordx4 v{vAd}, s[{sWt}:{sWt+3}], s{so} offen lds"
        vq.add(k, [f"s_add_u32 m0, s{sSo}, {4096*slot}", f"s_add_u32 s{sB1}, s{sA}, s{sB1}", ld(sA),
                   "s_add_u32 m0, m0, 1024", f"s_add_u32 s{sA}, s{sA}, s{sB2_}", ld(sB1),
                   "s_add_u32 m0, m0, 1024", f"s_add_u32 s{sB1}, s{sB1}, s{sB2_}", ld(sA),
                   "s_add_u32 m0, m0, 1024", None, ld(sB1)], ('j', i))
    for i in range(5): loads(i, i)
    if mid: mid(k, vq)
    for i in range(6):
        D = 16 + 16 * i
        k(f"s_waitcnt vmcnt({vq.wait(('j', i))})")
        for c in range(4):
            for j in range(2): k(f"ds_read_b64_tr_b16 v[{D+4*c+2*j}:{D+4*c+2*j+1}], v{vTr} offset:{4096*(i % 5) + 32*c + 512*j}")
        if i == 0:
            k("s_waitcnt lgkmcnt(0)")
            loads(5, 0)
        for c in range(4):
            vq.add(k, [f"s_mul_i32 s{t[0]}, s{sK+2*i+1}, 13108", f"s_lshr_b32 s{t[0]}, s{t[0]}, 16", f"s_mul_i32 s{t[0]}, s{t[0]}, {B2_BLK - 5120}",
                       f"s_lshl_b32 s{t[1]}, s{sK+2*i+1}, 10", f"s_add_u32 s{t[0]}, s{t[0]}, s{t[1]}", f"s_add_u32 s{t[0]}, s{t[0]}, s{sK+2*i}",
                       f"s_add_u32 s{sK+2*i+1}, s{sK+2*i+1}, 1", f"s_waitcnt lgkmcnt({6 - 2*c})",
                       f"buffer_store_dwordx4 v[{D+4*c}:{D+4*c+3}], v{vSt}, s[{sO}:{sO+3}], s{t[0]} offen{SC1}"], 'st')
    GX, GW = 112, 192
    k(f"""
    s_mul_i32 s{t[0]}, s{sW}, {16*1280}
    v_lshrrev_b32 v6, 4, v0
    v_mul_u32_u24 v7, 1280, v6
    v_and_b32 v8, 15, v0
    v_lshlrev_b32 v9, 4, v8
    v_add3_u32 v7, v7, v9, s{t[0]}
    """)
    vq.add(k, [f"global_load_dwordx4 v[{GW+4*i}:{GW+3+4*i}], v9, s[{sPtr+14}:{sPtr+15}] offset:{256*i}" for i in range(5)], 'gw')
    for r in range(4):
        vq.add(k, [f"s_mov_b32 s{t[1]}, {5120*r}"] + [f"buffer_load_dwordx4 v[{GX+20*r+4*i}:{GX+20*r+3+4*i}], v7, s[{sX}:{sX+3}], s{t[1]} offen offset:{256*i}" for i in range(5)], ('gx', r))
    k(f"""
    s_lshl_b32 s{t[1]}, s{sRb}, 9
    s_add_u32 s{t[1]}, s{t[1]}, {WS_G}
    s_add_u32 s{sO}, s{sWS}, s{t[1]}
    s_addc_u32 s{sO+1}, s{sWS+1}, 0
    s_mov_b32 s{sO+2}, 512
    s_lshl_b32 s{t[0]}, s{sW}, 4
    v_and_b32 v9, 3, v0
    v_lshl_add_u32 v6, v9, 2, v6
    v_add_u32 v6, s{t[0]}, v6
    v_lshlrev_b32 v6, 2, v6
    v_and_b32 v8, 12, v0
    v_lshl_add_u32 v6, v8, 20, v6
    """)
    for r in range(4):
        k(f"v_mov_b32 v{16+2*r}, 0\nv_mov_b32 v{17+2*r}, 0")
        k(f"s_waitcnt vmcnt({vq.wait('gw', ('gx', r))})")
        for i in range(20): k(f"v_dot2_f32_bf16 v{16+2*r+(i&1)}, v{GX+20*r+i}, v{GW+i}, v{16+2*r+(i&1)}")
    k("s_nop 3")
    for r in range(4): k(f"v_add_f32 v{16+2*r}, v{16+2*r}, v{17+2*r}")
    for sh in (8, 4, 2, 1):
        k("s_nop 0")
        for r in range(4): k(f"v_add_f32_dpp v{16+2*r}, v{16+2*r}, v{16+2*r} row_ror:{sh} row_mask:0xf bank_mask:0xf")
    for r in range(1, 4): k(f"v_cmp_eq_u32 vcc, {r}, v9\ns_nop 1\nv_cndmask_b32 v16, v16, v{16+2*r}, vcc")
    k(f"""
    v_mul_f32 v16, {f32hex(-1.4426950408889634)}, v16
    v_exp_f32 v16, v16
    s_nop 0
    v_add_f32 v16, 1.0, v16
    v_rcp_f32 v16, v16
    s_nop 0
    buffer_store_dword v16, v6, s[{sO}:{sO+3}], 0 offen{SC1}
    """)

def late_setup(k, var):
    t = sT
    if var != 'F':
        k(f"s_mov_b32 s{sO+2}, 0")
        for r in (HP + 24, HP + 25, HP + 26): k(f"v_mov_b32 v{r}, {hex(BIGV)}")
        return
    k(f"""
    s_lshl_b32 s{t[2]}, s{sRb}, 1
    s_add_u32 s{t[2]}, s{t[2]}, s{sTg}
    s_mul_i32 s{t[2]}, s{t[2]}, {A2_BLK}
    s_add_u32 s{t[2]}, s{t[2]}, {WS_A2}
    s_add_u32 s{sO}, s{sWS}, s{t[2]}
    s_addc_u32 s{sO+1}, s{sWS+1}, 0
    s_mov_b32 s{sO+2}, {A2_BLK}
    s_lshl_b32 s{t[0]}, s{sCb}, 2
    s_add_u32 s{t[0]}, s{t[0]}, s{sCg}
    s_lshl_b32 s{t[0]}, s{t[0]}, 12
    s_lshl_b32 s{t[1]}, s{sCb}, 1
    s_lshr_b32 s{t[2]}, s{sCg}, 1
    s_add_u32 s{t[1]}, s{t[1]}, s{t[2]}
    s_add_u32 s{t[1]}, s{t[1]}, 36
    s_lshl_b32 s{t[1]}, s{t[1]}, 3
    s_and_b32 s{t[2]}, s{sCg}, 1
    s_add_u32 s{t[1]}, s{t[1]}, s{t[2]}
    s_lshl_b32 s{t[1]}, s{t[1]}, 9
    v_lshlrev_b32 v13, 4, v0
    v_add_u32 v{HP+24}, s{t[0]}, v13
    v_xor_b32 v{HP+25}, 2048, v{HP+24}
    v_and_b32 v{HP+26}, 512, v13
    v_add3_u32 v{HP+26}, v{HP+26}, v13, s{t[1]}
    """)
def late_stores():
    out = [f"buffer_store_dwordx4 v[{HP+4*tt}:{HP+4*tt+3}], v{HP+24+(tt>>1)}, s[{sO}:{sO+3}], 0 offen offset:{(tt&1)*1024}{SC1}" for tt in range(4)]
    out += [f"buffer_store_dwordx4 v[{HP+16+4*pr}:{HP+19+4*pr}], v{HP+26}, s[{sO}:{sO+3}], 0 offen offset:{2048*pr}{SC1}" for pr in range(2)]
    return out
```

```python
from asmlib import *
from layout import *
from p1 import f32hex, sWS, sDBG, sW, SC1

vKa, vKt, vVa = 2, 3, 4
S0, S1, OA, OB, P = 16, 32, 48, 64, 80
QA, QB = 88, 94
Kb = [100, 106]
Vs0 = 112
Vs1 = [116, 120]
vG = 124
sKV, sQ, sA2 = 8, 12, 16
sHead, sQb, sQg, sKh, sT0, sT1, sCnt = 21, 22, 23, 24, 25, 26, 27
sMask = 28
sTile = 30
vD = 14
vQt = 12

def p2_ids(k):
    k(f"""
    s_and_b32 s{sT0}, s2, 7
    s_lshr_b32 s{sT1}, s2, 3
    s_lshl_b32 s{sHead}, s{sT0}, 2
    s_and_b32 s{sT0}, s{sT1}, 3
    s_add_u32 s{sHead}, s{sHead}, s{sT0}
    s_lshr_b32 s{sQb}, s{sT1}, 2
    s_and_b32 s{sQg}, s{sW}, 3
    s_lshr_b32 s{sKh}, s{sW}, 2
    s_lshl_b32 s{sTile}, s{sQb}, 2
    s_add_u32 s{sTile}, s{sTile}, s{sQg}
    """)
def p2_setup(k):
    p2_ids(k)
    k(f"""
    v_lshlrev_b32 v{vD}, 4, v0
    v_and_b32 v11, 31, v0
    v_lshlrev_b32 v{vKt}, 3, v11
    v_lshrrev_b32 v13, 5, v0
    v_mul_u32_u24 v{vVa}, 320, v13
    v_lshl_add_u32 v{vVa}, v11, 4, v{vVa}
    v_lshl_add_u32 v{vQt}, v13, 20, v{vKt}
    s_mul_i32 s{sT0}, s{sHead}, {KV_HEAD}
    s_lshl_b32 s{sT1}, s{sHead}, 5
    s_add_u32 s{sT1}, s{sT1}, s{sTile}
    s_mul_i32 s{sT1}, s{sT1}, {2*Q_TILE}
    s_add_u32 s{sT1}, s{sT1}, {WS_Q}
    s_mov_b32 s{sKV+2}, {KV_HEAD}
    s_mov_b32 s{sKV+3}, 0x00020000
    s_mov_b32 s{sQ+2}, {2*Q_TILE}
    s_mov_b32 s{sQ+3}, 0x00020000
    s_add_u32 s{sKV}, s{sWS}, s{sT0}
    s_addc_u32 s{sKV+1}, s{sWS+1}, 0
    s_add_u32 s{sQ}, s{sWS}, s{sT1}
    s_addc_u32 s{sQ+1}, s{sWS+1}, 0
    s_mul_i32 s{sT0}, s{sKh}, 81920
    s_lshl_b32 s{sT1}, s{sQg}, 10
    s_add_u32 s{sCnt}, s{sT0}, s{sT1}
    v_add_u32 v{vKa}, s{sT0}, v{vD}
    v_add_u32 v{vKt}, s{sT0}, v{vKt}
    v_add_u32 v{vVa}, s{sT0}, v{vVa}
    """)

def kv_dma(i):
    return [f"s_add_u32 m0, s{sCnt}, {4096*i}", None, f"buffer_load_dwordx4 v{vD}, s[{sKV}:{sKV+3}], m0 offen{SC1} lds"]

def p2_first_loads(k, n0):
    k(f"""
    buffer_load_dwordx4 v[{QA}:{QA+3}], v{vD}, s[{sQ}:{sQ+3}], 0 offen{SC1}
    buffer_load_dwordx2 v[{QA+4}:{QA+5}], v{vQt}, s[{sQ}:{sQ+3}], 0 offen offset:1024{SC1}
    """)
    for i in range(n0):
        for x in kv_dma(i): k(x or "s_nop 0")
        if i == 0:
            k(f"""
            buffer_load_dwordx4 v[{QB}:{QB+3}], v{vD}, s[{sQ}:{sQ+3}], 0 offen offset:1280{SC1}
            buffer_load_dwordx2 v[{QB+4}:{QB+5}], v{vQt}, s[{sQ}:{sQ+3}], 0 offen offset:2304{SC1}
            """)

def p2_init_regs(k):
    k(f"""
    s_mov_b32 s{sMask}, 0x000fffff
    s_mov_b32 s{sMask+1}, 0x000fffff
    v_and_b32 v10, 27, v0
    v_cmp_eq_u32 vcc, 24, v10
    v_mov_b32 v10, 0x3f803f80
    """)
    k("s_nop 0")
    for r in range(12): k(f"v_cndmask_b32 v{Vs0+r}, 0, v10, vcc")

def qk(Sd, Kr, Q):
    return [f"v_mfma_f32_32x32x16_bf16 v[{Sd}:{Sd+15}], v[{Kr}:{Kr+3}], v[{Q}:{Q+3}], 0",
            f"v_mfma_f32_32x32x8_bf16 v[{Sd}:{Sd+15}], v[{Kr+4}:{Kr+5}], v[{Q+4}:{Q+5}], v[{Sd}:{Sd+15}]"]
def pv(O, V, Pr, first=False):
    return f"v_mfma_f32_32x32x16_bf16 v[{O}:{O+15}], v[{V}:{V+3}], v[{Pr}:{Pr+3}], " + ("0" if first else f"v[{O}:{O+15}]")

def need(upto_tile):
    by = min((upto_tile + 1) * KV_TILE + 1280, 81920)
    return (by + 4095) // 4096 - 1
def first_wait(n0, later, bars):
    return f"s_waitcnt vmcnt({n0 - 1 - need(bars[0]) + later})"

def p2_loop(k, n0=4, bars=(3, 9), rate=2, prio=None, extra=None, prof=False, pattern=0, xbars=(), afterbar=None, stamps=(2, 3), also={}, cp=None):
    afterbar = afterbar or {}
    extra = extra or {}
    base = [0]
    def rdK(buf, t):
        t -= base[0]
        return [f"ds_read_b128 v[{Kb[buf]}:{Kb[buf]+3}], v{vKa} offset:{t*KV_TILE}",
                f"ds_read_b64 v[{Kb[buf]+4}:{Kb[buf]+5}], v{vKt} offset:{t*KV_TILE+1024}"]
    def rdV(buf, t):
        t -= base[0]
        return [f"s_mov_b64 exec, s[{sMask}:{sMask+1}]",
                f"ds_read_b128 v[{Vs0}:{Vs0+3}], v{vVa} offset:{t*KV_TILE+1280}",
                f"ds_read_b128 v[{Vs1[buf]}:{Vs1[buf]+3}], v{vVa} offset:{t*KV_TILE+1280+640}",
                "s_mov_b64 exec, -1"]
    vq = VQ(range(need(bars[0]) + 1, n0))
    nxt = [n0]
    def wait_for(piece):
        assert piece < nxt[0], piece
        return vq.wait(piece)
    bars = list(bars)
    k("s_barrier")
    k(stamp(prof, stamps[0]))
    for x in rdK(0, 0) + rdK(1, 1) + rdV(0, 0): k(x)
    k("s_waitcnt lgkmcnt(4)")
    for x in qk(S0, Kb[0], QA): k(x)
    k("s_nop 11")
    def slot(Sx, M, pre4=[], post4=[], pre=[], mid=[[], [], []]):
        e = lambda r: f"v_exp_f32 v{Sx+r}, v{Sx+r}"
        c = lambda r: f"v_cvt_pk_bf16_f32 v{P+r//2}, v{Sx+r}, v{Sx+r+1}"
        if pattern == 0:
            seq = pre + [M[0], e(0), e(1), e(2), c(0), e(3)] + mid[0] + [
                   M[1], e(4), c(2), e(5), e(6), c(4), e(7)] + mid[1] + [
                   M[2], e(8), c(6), e(9), e(10), c(8), e(11)] + mid[2] + pre4 + [M[3]] + post4 + [
                   e(12), c(10), e(13), e(14), e(15), c(12), c(14)]
        else:
            seq = pre + [M[0], e(0), e(1), e(2), e(3), c(0)] + mid[0] + [
                   M[1], e(4), e(5), c(2), e(6), e(7), c(4)] + mid[1] + [
                   M[2], e(8), e(9), c(6), e(10), e(11), c(8)] + mid[2] + pre4 + [M[3]] + post4 + [
                   e(12), e(13), c(10), e(14), e(15), c(12), c(14)]
        for x in seq: k(x)
    pad = ["s_nop 0"] if pattern else []
    k(".p2align 3")
    for u in range(32):
        p = u & 1
        mids = [[[], [], []], [[], [], []]]
        groups = []
        for _ in range(rate if isinstance(rate, int) else rate[min(u, len(rate) - 1)]):
            if nxt[0] < 20:
                groups.append((nxt[0], kv_dma(nxt[0]))); nxt[0] += 1
        groups += extra.get(u, [])
        places = [(0, 0), (0, 1), (0, 2), (1, 0), (1, 1), (1, 2)]
        order = []
        for j, (pid, g) in enumerate(groups):
            sl, m = places[j * 6 // len(groups)]
            order.append((sl, m, j, pid, g))
        order.sort(key=lambda x: x[:3])
        pre = [f"s_setprio {prio[u]}"] + pad if (prio and u in prio) else []
        if u == 16:
            pre += [f"v_add_u32 v{r}, {16*KV_TILE}, v{r}" for r in (vKa, vKt, vVa)]
            base[0] = 16
        def emit(sl):
            for (s_, m, j, pid, g) in order:
                if s_ == sl:
                    if callable(g): g = g(vq)
                    mids[sl][m] += [x or "s_nop 0" for x in vq.note(g, pid)]
        emit(0)
        qB = qk(S1, Kb[p], QB)
        slot(S0, [qB[0], qB[1], pv(OB, Vs1[p ^ 1], P + 4) if u else "s_nop 0\ns_nop 0", pv(OA, Vs0, P, u == 0)], pre4=["s_waitcnt lgkmcnt(0)"] + ([f"s_setprio {cp[2*u]}"] if cp and cp[2*u] is not None else pad), pre=pre, mid=mids[0])
        emit(1)
        qA = qk(S0, Kb[p ^ 1], QA)
        post = []
        if u in bars:
            i = bars.index(u)
            up = bars[i + 1] if i + 1 < len(bars) else 32
            assert need(up) < nxt[0]
            post += [f"s_waitcnt vmcnt({vq.wait(need(up), also.get(u))})", "s_barrier"]
        elif u in also:
            post += [f"s_waitcnt vmcnt({vq.wait(also[u])})", "s_barrier"]
        elif u in xbars:
            post += ["s_barrier"] + pad
        for x in afterbar.get(u, []): post += x(vq) if callable(x) else [x]
        if u < 30: post += rdK(p, u + 2)
        if u < 31: post += rdV(p ^ 1, u + 1)
        if cp and cp[2*u+1] is not None: post += [f"s_setprio {cp[2*u+1]}"] + pad
        if u == 31: qA = ["s_nop 0", "s_nop 0"]
        slot(S1, [qA[0], qA[1], pv(OA, Vs1[p], P + 4), pv(OB, Vs0, P, u == 0)], post4=post, mid=mids[1])
    k("s_nop 1")
    k(pv(OB, Vs1[1], P + 4))
    if prio or cp: k("s_setprio 0")
    k(stamp(prof, stamps[1]))
    return vq

def g_load():
    return [('g2', [f"s_lshl_b32 s{sT0}, s{sTile}, 8", f"s_lshl_b32 s{sT1}, s{sKh}, 7", f"s_add_u32 s{sT0}, s{sT0}, s{sT1}", f"s_add_u32 s{sT0}, s{sT0}, {WS_G}",
             f"s_add_u32 s{sQ}, s{sWS}, s{sT0}", f"s_addc_u32 s{sQ+1}, s{sWS+1}, 0", f"s_mov_b32 s{sQ+2}, 128",
             f"v_and_b32 v{vG}, 31, v0", f"v_lshlrev_b32 v{vG}, 2, v{vG}",
             f"buffer_load_dword v{vG}, v{vG}, s[{sQ}:{sQ+3}], 0 offen{SC1}"])]

def o_addr(k, sD, vOm, vOt, va, vb):
    k(f"""
    s_mul_i32 s{sT1}, s{sTile}, {A2_BLK}
    s_add_u32 s{sT1}, s{sT1}, {WS_A2}
    s_add_u32 s{sD}, s{sWS}, s{sT1}
    s_addc_u32 s{sD+1}, s{sWS+1}, 0
    s_mov_b32 s{sD+2}, {A2_BLK}
    s_mov_b32 s{sD+3}, 0x00020000
    s_lshr_b32 s{sT0}, s{sHead}, 1
    s_add_u32 s{sT0}, s{sT0}, {STEP_O}
    s_lshl_b32 s{sT0}, s{sT0}, 1
    s_add_u32 s{sT0}, s{sT0}, s{sKh}
    s_lshl_b32 s{sT0}, s{sT0}, 2
    s_and_b32 s{sT1}, s{sHead}, 1
    s_add_u32 s{sT0}, s{sT0}, s{sT1}
    s_lshl_b32 s{sT0}, s{sT0}, 9
    v_and_b32 v{va}, 15, v0
    v_lshlrev_b32 v{va}, 4, v{va}
    v_and_b32 v{vb}, 16, v0
    v_lshl_add_u32 v{va}, v{vb}, 6, v{va}
    v_and_b32 v{vb}, 32, v0
    v_lshl_add_u32 v{vOm}, v{vb}, 3, v{va}
    v_add_u32 v{vOm}, s{sT0}, v{vOm}
    s_lshr_b32 s{sT0}, s{sHead}, 3
    s_add_u32 s{sT0}, s{sT0}, {STEP_OT}
    s_lshl_b32 s{sT0}, s{sT0}, 1
    s_add_u32 s{sT0}, s{sT0}, s{sKh}
    s_lshl_b32 s{sT0}, s{sT0}, 11
    s_lshl_b32 s{sT1}, s{sT1}, 3
    s_add_u32 s{sT0}, s{sT0}, s{sT1}
    s_and_b32 s{sT1}, s{sHead}, 6
    s_lshl_b32 s{sT1}, s{sT1}, 7
    s_add_u32 s{sT0}, s{sT0}, s{sT1}
    v_lshl_add_u32 v{vOt}, v{vb}, 19, v{va}
    v_add_u32 v{vOt}, s{sT0}, v{vOt}
    """)

def p2_finish(k, gwait, sLate=None):
    vX, vR = 5, 6
    vOm, vOt = 8, 9
    o_addr(k, sA2, vOm, vOt, 10, 11)
    if sLate is None:
        k(f"s_lshl_b32 s{sT0}, s{sW}, 12\ns_xor_b32 s{sT1}, s{sT0}, 16384")
    else:
        k(f"""
        s_mov_b32 s{sT0}, s{sLate}
        s_add_u32 s{sT1}, s{sT0}, 81920
        s_sub_u32 s{sCnt}, s{sT0}, 81920
        s_cmp_eq_u32 s{sKh}, 0
        s_cselect_b32 s{sT1}, s{sT1}, s{sCnt}
        """)
    k(f"""
    v_add_u32 v{vX}, s{sT1}, v{vD}
    v_add_u32 v{vR}, s{sT0}, v{vD}
    s_waitcnt lgkmcnt(0)
    s_barrier
    s_cmp_eq_u32 s{sKh}, 0
    """)
    L1, L2 = k.uniq("kh0"), k.uniq("sent")
    k(f"s_cbranch_scc1 {L1}")
    def send(O):
        for j in range(3): k(f"ds_write_b128 v{vX}, v[{O+4*j}:{O+4*j+3}] offset:{1024*j}")
        k(f"ds_write_b32 v{vX}, v{O+12} offset:3072")
    send(OA)
    k("s_nop 7")
    for r in range(6): k(f"v_mov_b32 v{QA+r}, v{QB+r}")
    for r in range(13): k(f"v_mov_b32 v{OA+r}, v{OB+r}")
    k(f"s_branch {L2}")
    k.label(L1)
    k("s_nop 7")
    send(OB)
    k.label(L2)
    k("s_waitcnt lgkmcnt(0)\ns_barrier")
    for j in range(3): k(f"ds_read_b128 v[{S0+4*j}:{S0+4*j+3}], v{vR} offset:{1024*j}")
    k(f"ds_read_b32 v{S0+12}, v{vR} offset:3072")
    k(f"""
    s_mov_b32 s{sT0}, {f32hex(2.0**-24)}
    s_mov_b32 s{sT1}, {f32hex(2.0**64)}
    s_waitcnt lgkmcnt(0)
    """)
    for r in range(13): k(f"v_add_f32 v{OA+r}, v{OA+r}, v{S0+r}")
    k(f"v_mul_f32 v11, 0, v{OA}")
    for r in range(1, 12): k(f"v_fma_f32 v11, v{OA+r}, 0, v11")
    k(f"""
    v_add_f32 v11, v11, v{OA+12}
    v_cmp_nle_f32 vcc, s{sT0}, v11
    v_cmp_nle_f32 s[32:33], v11, s{sT1}
    s_nop 1
    s_or_b64 vcc, vcc, s[32:33]
    """)
    SLOW, FIN = k.name + "_slow", k.name + "_fin"
    k(f"s_cbranch_vccnz {SLOW}")
    k.label(FIN)
    k(f"v_rcp_f32 v11, v{OA+12}")
    k(f"s_waitcnt vmcnt({gwait})")
    k(f"v_mul_f32 v11, v11, v{vG}")
    for r in range(12): k(f"v_mul_f32 v{OA+r}, v{OA+r}, v11")
    for r in range(6): k(f"v_cvt_pk_bf16_f32 v{P+r}, v{OA+2*r}, v{OA+2*r+1}")
    k(f"""
    buffer_store_dwordx4 v[{P}:{P+3}], v{vOm}, s[{sA2}:{sA2+3}], 0 offen{SC1}
    buffer_store_dwordx2 v[{P+4}:{P+5}], v{vOt}, s[{sA2}:{sA2+3}], 0 offen{SC1}
    """)
    def fallback():
        k.label(SLOW)
        vM = 12
        k(f"""
        v_and_b32 v5, 31, v0
        v_lshlrev_b32 v{vKt}, 3, v5
        v_lshrrev_b32 v6, 5, v0
        v_mul_u32_u24 v{vVa}, 320, v6
        v_lshl_add_u32 v{vVa}, v5, 4, v{vVa}
        v_mov_b32 v{vM}, 0xff800000
        s_mov_b32 s{sCnt}, 0
        """)
        def ldK():
            k(f"buffer_load_dwordx4 v[{Kb[0]}:{Kb[0]+3}], v{vD}, s[{sKV}:{sKV+3}], s{sCnt} offen{SC1}")
            k(f"buffer_load_dwordx2 v[{Kb[0]+4}:{Kb[0]+5}], v{vKt}, s[{sKV}:{sKV+3}], s{sCnt} offen offset:1024{SC1}")
        LP1, LP2 = k.name + "_slow1", k.name + "_slow2"
        k.label(LP1)
        ldK()
        k("s_waitcnt vmcnt(0)")
        for x in qk(S0, Kb[0], QA): k(x)
        k("s_nop 15")
        for r in range(0, 16, 2): k(f"v_max3_f32 v{vM}, v{S0+r}, v{S0+r+1}, v{vM}")
        k(f"""
        s_add_u32 s{sCnt}, s{sCnt}, {KV_TILE}
        s_cmp_lt_u32 s{sCnt}, {KV_HEAD}
        s_cbranch_scc1 {LP1}
        v_mov_b32 v13, v{vM}
        s_nop 1
        v_permlane32_swap_b32 v{vM}, v13
        v_max_f32 v{vM}, v{vM}, v13
        s_mov_b32 s{sCnt}, 0
        """)
        for r in range(16): k(f"v_mov_b32 v{OA+r}, 0")
        k.label(LP2)
        ldK()
        k(f"""
        s_mov_b64 exec, s[{sMask}:{sMask+1}]
        buffer_load_dwordx4 v[{Vs0}:{Vs0+3}], v{vVa}, s[{sKV}:{sKV+3}], s{sCnt} offen offset:1280{SC1}
        buffer_load_dwordx4 v[{Vs1[0]}:{Vs1[0]+3}], v{vVa}, s[{sKV}:{sKV+3}], s{sCnt} offen offset:1920{SC1}
        s_mov_b64 exec, -1
        s_waitcnt vmcnt(0)
        """)
        for x in qk(S0, Kb[0], QA): k(x)
        k("s_nop 15")
        for r in range(16): k(f"v_sub_f32 v{S0+r}, v{S0+r}, v{vM}")
        for r in range(16): k(f"v_exp_f32 v{S0+r}, v{S0+r}")
        k("s_nop 0")
        for r in range(8): k(f"v_cvt_pk_bf16_f32 v{P+r}, v{S0+2*r}, v{S0+2*r+1}")
        k("s_nop 1")
        k(pv(OA, Vs0, P)); k(pv(OA, Vs1[0], P + 4))
        k(f"""
        s_add_u32 s{sCnt}, s{sCnt}, {KV_TILE}
        s_cmp_lt_u32 s{sCnt}, {KV_HEAD}
        s_cbranch_scc1 {LP2}
        s_nop 15
        s_branch {FIN}
        """)
    return fallback

def gen_k2(name="p2_kernel", prof=False, area=0, **kw):
    k = Kern(name, block=512, grid=256, lds=163840, vgpr=128)
    END = name + "_end"
    k(f"""
    s_cmp_ge_u32 s2, 256
    s_cbranch_scc1 {END}
    s_load_dwordx2 s[{sWS}:{sWS+1}], s[0:1], 80
    {stamp(prof, 0)}
    v_lshrrev_b32 v1, 6, v0
    v_and_b32 v0, 63, v0
    s_nop 0
    v_readfirstlane_b32 s{sW}, v1
    s_waitcnt lgkmcnt(0)
    """)
    p2_setup(k)
    n0 = kw.get("n0", 4)
    p2_first_loads(k, n0)
    p2_init_regs(k)
    k(stamp(prof, 1))
    k(first_wait(n0, 0, kw.get("bars", (3, 9))))
    q = p2_loop(k, extra={20: g_load()}, prof=prof, **kw)
    fb = p2_finish(k, 0)
    if prof: prof_out(k, 4, sWS, sW, area=area)
    k.label(END)
    k("s_endpgm")
    fb()
    return k

if __name__ == "__main__":
    k = gen_k2()
    for w in (0, 5):
        for br in ({}, {k.name + "_slow": True}):
            for e in check(k, init=dict(wg=3, wave=w), branch=br, verbose=True): print(e)
```

```python
from build import *
from fused import gen
import sys
B = dict(prof="rt")
BASE = dict()
F2 = (1,3,5,7,9,11,13,15,18,21,24,28)
def cyc_t(ph, per=4):
    return [(3 - ((s // 2 + ph) % per) * 4 // per) if s % 2 == 0 else None for s in range(64)]
def cyc_s(ph):
    return [3 - ((s + ph) % 4) for s in range(64)]
if __name__ == "__main__":
    V = eval(sys.argv[1])
    ks = [gen(n + "_kernel", **{**B, **BASE, **kw}) for n, kw in V.items()]
    for k in ks:
        seen = set()
        for wg in (0, 200, 255, 196, 68):
            for w in (0, 7):
                for e in check(k, init=dict(wg=wg, wave=w)):
                    if e not in seen and "SMEM" not in e: seen.add(e); print(e)
    build("; test\n", ks, [(k, 256) for k in ks], "out_f")
```

```python
from asmlib import *
from layout import *
import p1, p2, p3
from p1 import *
from p3 import sA, sB, sOut, sTb, sNb, sSa, sSb, sU0, sU1, sRe, sRl, vL, vL2, BUFA, BUFB, vG3

sTS = 96
sSY = 100
vIni = 255
vPo = 248
SPIN = 1 << 16

def spin_loop(k, name, load, cond, back, sCount=34):
    L = name + "_l"
    k.label(name)
    k(f"s_mov_b32 s{sCount}, {SPIN}")
    k.label(L)
    for x in load: k(x)
    k("s_waitcnt vmcnt(0)")
    for x in cond: k(x)
    k(f"""
    s_sub_u32 s{sCount}, s{sCount}, 1
    s_cbranch_scc1 {back}
    s_cbranch_vccnz {L}
    s_branch {back}
    """)

def gen(name, NW=(4, 5), prof=False, area=0, n0=3, bars=(1, 4, 9), prio={0: 3, 18: 2, 25: 1, 30: 0}, pattern=1, gsplit=8, xbar=25, pf0=17, warm=True, pbar=(), arr=9, paced=True, itail=True, obar=True, fine=False, pref=(('pre', -1, -1, -1, -1),) * 2, dbg=None, kvp=False, pub=2, fine2=None, rate=2, wsb=0, hst=(0, 1, 2, 3, 4, 5), omod=' nt', cp=None, bearly=(10, 3), poll=(1, 0), skip='', nobar=(), il=1, kst=False):
    k = Kern(name, block=512, grid=256, lds=163840, vgpr=256, sgpr=102)
    END = name + "_end"
    tails = []
    st = lambda i: stamp(prof, i) if not ((fine and i < 13) or fine2) else ''
    sl = lambda i: [st(i)] if (prof and st(i)) else []
    k(f"s_cmp_ge_u32 s2, 256\ns_cbranch_scc1 {END}")
    LSD = name + "_side"
    p1_setup(k, prof, pref, wsb, LSD, 5 if kst else None)
    LZ = k.uniq("noz")
    assert CB_TABLE[0] != 9 and 128 <= SY_N <= 192
    sy = f"s_add_u32 s{sSY}, s{sWS}, {WS_SYNC}\ns_addc_u32 s{sSY+1}, s{sWS+1}, 0"
    k(sy)
    k(f"""
    s_or_b32 s{sT[0]}, s2, s{sW}
    s_cbranch_scc1 {LZ}
    v_mul_u32_u24 v5, {SY_STRIDE}, v0
    v_mov_b32 v6, 0
    global_store_dword v5, v6, s[{sSY}:{sSY+1}]{SC1}
    v_add_u32 v7, {64 * SY_STRIDE}, v5
    global_store_dword v7, v6, s[{sSY}:{sSY+1}]{SC1}
    v_add_u32 v8, {(SY_N - 64) * SY_STRIDE}, v5
    global_store_dword v8, v6, s[{sSY}:{sSY+1}]{SC1}
    {LZ}:
    """)
    def pro(extra=None, pf=True):
        def f(k, vq):
            if pref and pf:
                for g in pref_loads(*pref).get(-1, []): vq.add(k, g, 'pf')
            if extra: extra(k)
            k(f"s_mov_b32 s{sTS}, s{sCb}\ns_mov_b32 s{sTS+1}, s{sTg}\ns_mov_b32 s{sTS+2}, s{sCg}")
            p2.p2_ids(k)
            p2.o_addr(k, 44, vPo + 4, vPo + 5, 13, 14)
            k(f"s_mov_b32 s{sCb}, s{sTS}\ns_mov_b32 s{sTg}, s{sTS+1}\ns_mov_b32 s{sCg}, s{sTS+2}")
            for r in range(4): k(f"v_mov_b32 v{vPo+r}, -1")
        return f
    LI = lambda: k.uniq("noi")
    def hooks():
        l = LI()
        h = {1: [(None, [f"s_or_b32 s{sT[0]}, s2, s{sW}", f"s_cbranch_scc1 {l}", f"v_mov_b32 v13, 0", f"v_mov_b32 v14, 1", "s_mov_b64 exec, 1",
                         f" global_store_dword v13, v14, s[{sDBG}:{sDBG+1}]{SC1}", "s_mov_b64 exec, -1", l + ":"])],
             2: [('po', [f"buffer_store_dwordx4 v[{vPo}:{vPo+3}], v{vPo+4}, s[44:47], 0 offen{SC1}"]),
                 ('po', [f"buffer_store_dwordx2 v[{vPo}:{vPo+1}], v{vPo+5}, s[44:47], 0 offen{SC1}"])],
             8: [('ini', [f"v_mov_b32 v{vIni}, 0", f"global_load_dword v{vIni}, v{vIni}, s[{sDBG}:{sDBG+1}]{SC1}"])]}
        if pref:
            for when, gs in pref_loads(*pref).items():
                if when not in ('pre', -1): h.setdefault(when, []).extend(('pf', g) for g in gs)
        return h
    def init_check():
        nm, back = k.uniq("ispin"), k.uniq("iback")
        k(f"v_cmp_ne_u32 vcc, 1, v{vIni}\ns_cbranch_vccnz {nm}")
        k.label(back)
        tails.append(lambda: spin_loop(k, nm, [f"v_mov_b32 v{vIni}, 0", f"global_load_dword v{vIni}, v{vIni}, s[{sDBG}:{sDBG+1}]{SC1}"],
                                       [f"v_cmp_ne_u32 vcc, 1, v{vIni}"], back))
    def qkv_addr(k):
        k(f"""
        s_lshr_b32 s{p2.sT0}, s{p2.sHead}, 4
        s_mul_i32 s{p2.sT0}, s{p2.sT0}, 0x1011
        s_add_u32 s{p2.sT0}, s{p2.sT0}, 0x1053
        s_lshl_b32 s{p2.sT1}, s{p2.sQb}, 1
        v_cmp_gt_u32 vcc, 48, v0
        v_lshrrev_b32 v1, 4, v0
        v_lshlrev_b32 v1, 2, v1
        v_bfe_u32 v1, s{p2.sT0}, v1, 4
        v_and_b32 v11, 1, v0
        v_add_u32 v11, s{p2.sT1}, v11
        v_and_b32 v13, 15, v0
        v_cndmask_b32 v11, v11, v13, vcc
        v_lshl_add_u32 v1, v1, 4, v11
        v_mul_u32_u24 v1, {SY_STRIDE}, v1
        """)
    def qkv_wait():
        L, X = k.uniq("qspin"), k.uniq("qdone")
        k(f"""
        s_mov_b32 s34, {SPIN}
        {f"s_cmp_ge_u32 s{sW}, {poll[0]}" if poll[0] < 8 else ""}
        {f"s_cbranch_scc1 {X}" if poll[0] < 8 else ""}
        {L}:
        {f"s_sleep {poll[1]}" if poll[1] else ""}
        global_load_dword v6, v1, s[{sSY}:{sSY+1}] offset:{SY_FLAG * SY_STRIDE}{SC1}
        s_waitcnt vmcnt(0)
        v_cmp_ne_u32 vcc, 1, v6
        s_sub_u32 s34, s34, 1
        s_cbranch_scc1 {X}
        s_cbranch_vccnz {L}
        {X}:
        {"s_barrier" if poll[0] < 8 else ""}
        """)
    def groups(n, *fs):
        q = Kern("tmp", 0, 0, 0, 0)
        for f in fs: f(q)
        out = []
        for x in q.lines:
            if not out or (len(out[-1]) >= n and not x.startswith(("s_addc", "s_cselect"))): out.append([])
            out[-1].append(x)
        return [(None, g) for g in out]
    LQ, LV, LJ, LS = name + "_qkv", name + "_v", name + "_att", name + "_pub"
    k(f"s_cmp_ge_u32 s{sCb}, 10\ns_cbranch_scc1 {LQ}")
    h = hooks()
    h[12] = groups(3, lambda q: late_setup(q, 'F'), gelu_consts)
    h[16] = groups(3, p2.p2_setup)
    h[17] = groups(3, p3.p3_setup)
    h[18] = groups(2, qkv_addr)
    p1_loop(k, 'F', NW[0], prof and not fine2 and prof, True, h, pro(), pbar, fine, paced, None, nobar, il)
    init_check()
    g = gelu_math('F')
    n = len(g) // 12
    g += ["s_nop 1"] + h_swaps()
    cut = len(g) if gsplit >= 12 else n * gsplit
    k("s_nop 1")
    for x in g[:cut]: k(x)
    k(st(15) if not fine else '')
    qkv_wait()
    k(st(3))
    p2.p2_first_loads(k, n0)
    for x in g[cut:]: k(x)
    p2.p2_init_regs(k)
    k(p2.first_wait(n0, 0, bars) + " lgkmcnt(0)")
    k(f"s_branch {LJ}")
    k.label(LSD)
    k(sy)
    def smid(k, vq):
        pro(pf=False)(k, vq)
        h = hooks()
        for tag, g in h[2] + h[8]: vq.add(k, g, tag)
    k(st(1))
    side_prog(k, VQ(), smid)
    k(st(2))
    k(f"s_branch {LS}")
    k.label(LQ)
    k(f"s_cmp_ge_u32 s{sCb}, 14\ns_cbranch_scc1 {LV}")
    p1_loop(k, 'QK', NW[1], prof and not fine2 and prof, True, hooks(), pro(), pbar, fine, paced, qk_tail() if itail else None, nobar, il)
    if not itail:
        k("s_nop 7")
        qk_epilogue(k)
    k(f"s_branch {LS}")
    k.label(LV)
    p1_loop(k, 'V', NW[1], prof and not fine2 and prof, True, hooks(), pro(), pbar, fine, paced, v_tail() if itail else None, nobar, il)
    if not itail:
        k("s_nop 7")
        v_epilogue(k)
    k.label(LS)
    init_check()
    LA = k.uniq("noarr")
    k(f"""
    s_sub_u32 s{sT[0]}, s{sCb}, 9
    s_lshl_b32 s{sT[0]}, s{sT[0]}, 4
    s_add_u32 s{sT[0]}, s{sT[0]}, s{sRb}
    s_mul_i32 s{sT[0]}, s{sT[0]}, {SY_STRIDE}
    v_mov_b32 v11, s{sT[0]}
    v_mov_b32 v1, 1
    s_waitcnt vmcnt(0)
    s_barrier
    {st(15) if not fine else ''}
    s_cmp_lg_u32 s{sW}, 0
    s_cbranch_scc1 {LA}
    s_mov_b64 exec, 1
    global_store_dword v11, v1, s[{sSY}:{sSY+1}] offset:{SY_FLAG * SY_STRIDE}{SC1}
    s_mov_b64 exec, -1
    {LA}:
    """)
    late_setup(k, 'Q')
    p2.p2_setup(k)
    p2.p2_init_regs(k)
    p3.p3_setup(k)
    qkv_addr(k)
    qkv_wait()
    k(st(3))
    p2.p2_first_loads(k, n0)
    if kvp:
        k(f"""
        s_lshl_b32 s{p2.sT0}, s{p2.sQb}, 15
        s_add_u32 s{p2.sT0}, s{p2.sT0}, 16384
        s_mul_i32 s{p2.sT1}, s{p2.sQg}, {8192 - 1024}
        s_add_u32 s{p2.sT0}, s{p2.sT0}, s{p2.sT1}
        s_add_u32 s{p2.sT0}, s{p2.sT0}, s{p2.sCnt}
        s_cmp_lt_u32 s2, 64
        s_cselect_b32 s{p2.sT0}, s{p2.sT0}, 0x7f000000
        v_lshlrev_b32 v5, 7, v0
        buffer_load_dword v125, v5, s[{p2.sKV}:{p2.sKV+3}], s{p2.sT0} offen{SC1}
        """)
    k(p2.first_wait(n0, 1 if kvp else 0, bars) + " lgkmcnt(0)")
    k.label(LJ)
    LD, LD2 = k.uniq("nodone"), k.uniq("nolast")
    mark = []
    def arrive(vq):
        mark.append(vq.total)
        return [f"s_cmp_lg_u32 s{sW}, 0", f"s_cbranch_scc1 {LD}", f"s_and_b32 s{sU0}, s2, 15", f"s_add_u32 s{sU0}, s{sU0}, {SY_P1}", f"s_mul_i32 s{sU0}, s{sU0}, {SY_STRIDE}",
                f"v_mov_b32 v8, s{sU0}", "v_mov_b32 v10, 1", "s_mov_b64 exec, 1", f"global_atomic_add v9, v8, v10, s[{sSY}:{sSY+1}] sc0 sc1", "s_mov_b64 exec, -1", LD + ":"]
    def publish(vq):
        return [f"s_cmp_lg_u32 s{sW}, 0", f"s_cbranch_scc1 {LD2}", "s_mov_b64 exec, 1", f"s_waitcnt vmcnt({vq.total - mark[0]})", "v_cmp_eq_u32 vcc, 15, v9",
                f"v_add_u32 v8, {(SY_P1F - SY_P1) * SY_STRIDE}, v8", "s_and_b64 exec, exec, vcc", f"s_cbranch_execz {LD2}",
                f"global_store_dword v8, v10, s[{sSY}:{sSY+1}]{SC1}", LD2 + ":", "s_mov_b64 exec, -1"]
    pload = [f"global_load_dword v6, v5, s[{sSY}:{sSY+1}]{SC1}"]
    pcond = ["v_cmp_ne_u32 vcc, 1, v6"]
    nm, back = k.uniq("pspin"), k.uniq("pback")
    tails.append(lambda: spin_loop(k, nm, ["s_sleep 4"] + pload, pcond, back))
    extra = {}
    def put(u, tag, g):
        if tag and tag[0] in skip: g = [x for x in g if not (x and x.startswith("buffer_"))]
        extra.setdefault(u, []).append((tag, g))
    put(pf0 - 2, 'p1', ["v_and_b32 v5, 15, v0", f"v_add_u32 v5, {SY_P1F}, v5", f"v_mul_u32_u24 v5, {SY_STRIDE}, v5"] + pload)
    put(pf0, None, lambda vq: [f"s_waitcnt vmcnt({vq.wait('p1')})"] + pcond + [f"s_cbranch_vccnz {nm}", back + ":"] + sl(6))
    for i, x in enumerate(late_stores()):
        if hst[i] is not None: put(hst[i], 'h', [x])
    seq, seqb = [], []
    for s in range(4):
        if s < 3:
            l = p3.slot_loads(s, s, "a"); i = len(l) - 4
            seq += [(('a', s), l[:i + 1])] + [(('a', s), [x]) for x in l[i + 1:]]
        l = p3.slot_loads(s, s, "b"); i = len(l) - 5
        (seqb if bearly else seq).extend([(('b', s), l[:i + 1])] + [(('b', s), [x]) for x in l[i + 1:]])
    if bearly:
        for i, (tag, g) in enumerate(seqb): put(bearly[0] + i // bearly[1], tag, g)
    if warm is True:
        w = [f"s_lshr_b32 s{sU0}, s2, 3", f"s_cmp_lt_u32 s{sW}, 4", f"s_cselect_b32 s{sTS}, s{sA}, s{sB}", f"s_cselect_b32 s{sTS+1}, s{sA+1}, s{sB+1}",
             f"s_cselect_b32 s{sTS+2}, s{sA+2}, s{sB+2}", f"s_mov_b32 s{sTS+3}, 0x00020000",
             f"s_lshr_b32 s{sU1}, s{sU0}, 3", f"s_lshl_b32 s{sU1}, s{sU1}, 2", f"s_add_u32 s{sU1}, s{sU1}, s{sW}", f"s_lshl_b32 s{sU1}, s{sU1}, 13", f"s_add_u32 s{sU1}, s{sU1}, {22*4096}",
             f"s_and_b32 s{sU0}, s{sU0}, 7", f"s_lshl_b32 s{sU0}, s{sU0}, 1", f"s_and_b32 s34, s{sW}, 1", f"s_add_u32 s{sU0}, s{sU0}, s34", f"s_lshl_b32 s{sU0}, s{sU0}, 13",
             f"s_add_u32 s{sU0}, s{sU0}, {54*5120 - 131072}", f"s_cmp_lt_u32 s{sW}, 4", f"s_cselect_b32 s34, s{sU1}, s{sU0}",
             f"v_lshlrev_b32 v5, 7, v0", f"buffer_load_dword v125, v5, s[{sTS}:{sTS+3}], s34 offen{SC1}"]
        seq += [('w', w), ('w', [f"buffer_load_dword v126, v5, s[{sTS}:{sTS+3}], s34 offen offset:64{SC1}"])]
    elif warm:
        two = lambda d, r: [('w', [f"buffer_load_dword v{r}, v5, s[{d}:{d+3}], s34 offen offset:64{SC1}"])] if warm[2] else []
        for tag, g in [('w', [f"s_and_b32 s34, s{sTb}, 7", f"s_lshl_b32 s34, s34, 3", f"s_add_u32 s34, s34, s{sW}", f"s_lshl_b32 s34, s34, 7",
                          f"v_lshlrev_b32 v5, 13, v0", f"buffer_load_dword v125, v5, s[{sB}:{sB+3}], s34 offen{SC1}"])] + two(sB, 126): put(warm[0], tag, g)
        for tag, g in [('w', [f"s_and_b32 s34, s{sNb}, 3", f"s_lshl_b32 s34, s34, 3", f"s_add_u32 s34, s34, s{sW}", f"s_lshl_b32 s34, s34, 7",
                          f"v_min_u32 v5, 53, v0", f"v_lshlrev_b32 v5, 12, v5", f"buffer_load_dword v125, v5, s[{sA}:{sA+3}], s34 offen{SC1}"])] + two(sA, 126): put(pf0, tag, g)
    seq += p2.g_load()
    u = pf0 + (1 if warm is True or not warm else warm[1])
    per = -(-len(seq) // (xbar - u))
    for i, (tag, g) in enumerate(seq): put(u + i // per, tag, g)
    seq = []
    for i, s in enumerate((7, 8, 9)):
        for nt in range(5):
            g = []
            if nt == 0: g += p3.so_b(s)
            if nt in (0, 4): g += [f"s_add_u32 m0, s{sRe}, {5120 * i + 1024 * nt}", None]
            g += [f"buffer_load_dwordx4 v{vL if nt < 4 else vL2}, s[{sB}:{sB+3}], s{sSb} offen offset:{1024 * (nt & 3)}{SC1} lds"]
            seq.append((('l', s), g))
    u = xbar + 1
    per = -(-len(seq) // (31 - u))
    for i, (tag, g) in enumerate(seq): put(u + i // per, tag, g)
    ab = {9: [] if kst else sl(5), xbar: sl(7)}
    if fine2: ab = {u: [stamp(prof, i + 2)] for i, u in enumerate(fine2)}
    ab[arr] = ab.get(arr, []) + [arrive]
    ab[arr + pub] = ab.get(arr + pub, []) + [publish]
    vq = p2.p2_loop(k, cp=cp, n0=n0, rate=rate, also={arr: 'h'}, bars=bars, prio=prio, extra=extra, prof=prof, pattern=pattern, xbars=(xbar,), afterbar=ab, stamps=(13, 15) if fine else ((1, 15) if fine2 else (4, 8)))
    fb = p2.p2_finish(k, vq.wait('g2'), sRl)
    vq.q += ['o', 'o']
    if obar: k('s_barrier')
    k(st(9))
    tails.append(fb)
    vq.add(k, p3.slot_loads(3, 3, "a"), ('a', 3))
    vq.add(k, p3.g_loads(), 'g')
    k(f"v_add_u32 v{p3.vRe}, s{sRe}, v{vL}")
    def lds_b(buf, i):
        return [f"ds_read_b128 v[{BUFB[buf]+4*nt}:{BUFB[buf]+4*nt+3}], v{p3.vRe} offset:{5120*i + 1024*nt}" for nt in range(5)]
    for s in range(7):
        p3.compute_slot(k, vq, s, s % 4, nxt=(s + 4 if s < 6 else None), part=("ab" if s < 3 else "a"), first=(s == 0))
        if 3 <= s < 6:
            for x in lds_b(s % 4, s - 3): k(x)
        if s == 3: k(st(10))
    k("s_nop 7")
    p3.scale(k, vq)
    k(st(11))
    oregs = [BUFA[b] + r for b in (3, 0, 1) for r in range(16)]
    chk = [f"v_max3_u32 v5, v{oregs[0]}, v{oregs[1]}, v{oregs[2]}"] + [f"v_max3_u32 v5, v5, v{a}, v{b}" for a, b in zip(oregs[3::2], oregs[4::2])] + \
          [f"v_max_u32 v5, v5, v{oregs[-1]}", "v_cmp_eq_u32 vcc, -1, v5"]
    nm2, back2 = k.uniq("ospin"), k.uniq("oback")
    k("s_waitcnt vmcnt(0) lgkmcnt(0)")
    for x in chk: k(x)
    k(f"s_cbranch_vccnz {nm2}")
    k.label(back2)
    k(st(12))
    tails.append(lambda: spin_loop(k, nm2, [x for s, b in ((7, 3), (8, 0), (9, 1)) for x in p3.slot_loads(s, b, "a")], chk, back2))
    p3.o_phase(k, [3, 0, 1])
    k(st(13) if not fine else '')
    p3.reduce_store(k, omod)
    if dbg:
        cond = None
        if dbg[1] is not None:
            m = sum(1 << i for i in range(16) if CB_TABLE[i] >= 10)
            cond = f"s_and_b32 s20, s2, 6\ns_lshl_b32 s20, s20, 1\ns_lshr_b32 s21, s2, 6\ns_add_u32 s20, s20, s21\ns_mov_b32 s21, {m}\ns_bitcmp1_b32 s21, s20\ns_cbranch_scc{1 - dbg[1]}"
        prof_dbg(k, 14, sDBG, op=dbg[0], cond=cond)
    elif prof: prof_out(k, 14, sWS, sW, area=area, mode=prof)
    k.label(END)
    k("s_endpgm")
    for t in tails: t()
    return k

if __name__ == "__main__":
    k = gen("f_kernel"); seen = set()
    for wg in (0, 3, 77, 71, 200, 255, 196):
        for w in (0, 3, 4, 7):
            for e in check(k, init=dict(wg=wg, wave=w), verbose=(w == 0)):
                if e not in seen: seen.add(e); print(e)
```

```python
from asmlib import *
from layout import *
import struct
def f32hex(x): return "0x%08x" % struct.unpack("<I", struct.pack("<f", x))[0]

sWS, sDBG, sW = 4, 6, 3
sX, sWt, sO = 8, 12, 16
sRb, sCb, sTg, sCg = 20, 21, 22, 23
sT = [24, 25, 26, 27, 28, 29, 30, 31]
sM0x, sM0w = 32, [33, 34, 35]
sSoX, sSoW, sStr = 36, 37, 38
sSwz = 39
sC = 42
sPtr = 48
X_SLOT, W_BASE, W_UP = 16384, 49152, 12288
def wslot(var): return 24576 if var == 'F' else 21504
vDx, vDw = 1, [2, 3, 4]
vXa = [[5, 6], [7, 8]]
vWa = [9, 10]
FR = [16, 56]
ACC = 96
HP = 192
SC1 = " sc1"

def p1_setup(k, prof=False, pref=None, wsb=0, side=None, kst=None):
    t = sT
    lo = sum(CB_TABLE[i] << (4 * i) for i in range(8)); hi = sum(CB_TABLE[8 + i] << (4 * i) for i in range(8))
    k(f"""
    s_load_dwordx16 s[{sPtr}:{sPtr+15}], s[0:1], 0
    s_load_dwordx2 s[{sWS}:{sWS+1}], s[0:1], 80
    s_load_dwordx2 s[{sDBG}:{sDBG+1}], s[0:1], 72
    {stamp(prof, 0)}
    v_lshrrev_b32 v1, 6, v0
    v_and_b32 v0, 63, v0
    s_and_b32 s{t[0]}, s2, 1
    v_readfirstlane_b32 s{sW}, v1
    s_lshl_b32 s{t[0]}, s{t[0]}, 3
    s_lshr_b32 s{t[1]}, s2, 3
    s_and_b32 s{t[2]}, s{t[1]}, 7
    s_add_u32 s{sRb}, s{t[0]}, s{t[2]}
    s_lshr_b32 s{t[1]}, s{t[1]}, 3
    s_and_b32 s{t[0]}, s2, 2
    s_lshl_b32 s{t[0]}, s{t[0]}, 1
    s_add_u32 s{t[1]}, s{t[1]}, s{t[0]}
    s_lshl_b32 s{t[1]}, s{t[1]}, 2
    s_and_b32 s{t[0]}, s2, 4
    s_mov_b32 s{t[2]}, {hex(hi)}
    s_cmp_eq_u32 s{t[0]}, 0
    s_cselect_b32 s{t[0]}, {hex(lo)}, s{t[2]}
    s_lshr_b32 s{t[0]}, s{t[0]}, s{t[1]}
    s_and_b32 s{sCb}, s{t[0]}, 15
    s_and_b32 s{sTg}, s{sW}, 1
    s_lshr_b32 s{sCg}, s{sW}, 1
    """)
    k(f"""
    s_lshl_b32 s{sM0x}, s{sW}, 10
    s_lshl_b32 s{t[0]}, s{sW}, 2
    v_lshrrev_b32 v5, 4, v0
    v_add_u32 v5, s{t[0]}, v5
    v_xor_b32 v5, v5, v0
    v_and_b32 v5, 7, v5
    v_lshlrev_b32 v5, 4, v5
    v_lshrrev_b32 v6, 3, v0
    s_mul_i32 s{t[0]}, s{sW}, {8*1280}
    v_mul_u32_u24 v6, 1280, v6
    v_add3_u32 v{vDx}, v5, v6, s{t[0]}
    s_mul_i32 s{t[1]}, s{sRb}, {128*1280}
    s_mov_b32 s{sX+2}, {128*1280}
    s_mov_b32 s{sX+3}, 0x00020000
    s_mov_b32 s{sWt+3}, 0x00020000
    s_mov_b32 s{sO+3}, 0x00020000
    """)
    LQ, LJ = k.uniq("qkvpar"), k.uniq("parj")
    k(f"""
    s_mov_b32 s{sSoX}, s{t[1]}
    s_cmp_ge_u32 s{sCb}, 10
    s_cbranch_scc1 {LQ}
    s_mov_b32 s{sSwz}, 6
    s_mov_b32 s{t[2]}, 2731
    s_mov_b32 s{t[3]}, 24
    s_mov_b32 s{t[4]}, 3456
    s_mul_i32 s{t[5]}, s{sCb}, 384
    s_and_b32 s{t[6]}, s{sW}, 3
    s_mov_b32 s{t[7]}, 4
    s_mov_b32 s{sC}, 24
    s_lshr_b32 s{sC+1}, s{sW}, 2
    s_mul_i32 s{sC+1}, s{sC+1}, {W_UP}
    s_mov_b32 s{sWt+2}, {640*3456}
    s_branch {LJ}
    {LQ}:
    s_mov_b32 s{sSwz}, 0
    s_mov_b32 s{t[2]}, 1561
    s_mov_b32 s{t[3]}, 42
    s_mov_b32 s{t[4]}, 3840
    s_sub_u32 s{t[5]}, s{sCb}, 10
    s_mul_i32 s{t[5]}, s{t[5]}, 640
    s_mov_b32 s{t[6]}, s{sW}
    s_mov_b32 s{t[7]}, 8
    s_mov_b32 s{sC}, 40
    s_mov_b32 s{sC+1}, 0
    s_mov_b32 s{sWt+2}, {640*3840}
    {LJ}:
    s_lshl_b32 s{sStr}, s{t[4]}, 5
    s_mov_b32 s{sSoW}, 0
    v_mov_b32 v13, 0x7fff0000
    """)
    for i in range(3):
        k(f"""
        s_lshl_b32 s{t[0]}, s{t[6]}, 6
        v_add_u32 v5, s{t[0]}, v0
        v_mul_u32_u24 v6, s{t[2]}, v5
        v_lshrrev_b32 v6, 16, v6
        v_mul_u32_u24 v7, s{t[3]}, v6
        v_sub_u32 v7, v5, v7
        v_and_b32 v8, 0x13, v6
        v_and_b32 v9, 4, v6
        v_lshl_or_b32 v8, v9, 1, v8
        v_and_b32 v9, 8, v6
        v_lshrrev_b32 v9, 1, v9
        v_or_b32 v8, v8, v9
        v_mul_u32_u24 v8, s{t[4]}, v8
        v_cmp_gt_u32 vcc, s{sC}, v7
        v_and_b32 v9, s{sSwz}, v6
        v_xor_b32 v7, v7, v9
        v_lshl_add_u32 v8, v7, 4, v8
        v_add_u32 v8, s{t[5]}, v8
        v_cndmask_b32 v8, v13, v8, vcc
        v_cmp_gt_u32 vcc, 32, v6
        s_lshl_b32 s{t[0]}, s{t[6]}, 10
        s_add_u32 s{t[0]}, s{t[0]}, s{sC+1}
        v_cndmask_b32 v{vDw[i]}, v13, v8, vcc
        s_lshl_b32 s{t[1]}, s{t[6]}, 1
        s_cmp_lt_u32 s{t[1]}, s{t[3]}
        s_cselect_b32 s{sM0w[i]}, s{t[0]}, {163840 - W_BASE}
        s_add_u32 s{t[6]}, s{t[6]}, s{t[7]}
        """)
    if pref: pref_setup(k)
    k(f"""
    s_mov_b32 m0, s{sM0x}
    s_mov_b32 s{t[0]}, {64*1280}
    s_cmp_lt_u32 s{sW}, 4
    s_waitcnt lgkmcnt(0)
    s_cselect_b32 s{sWt}, s{sPtr+8}, s{sPtr+10}
    s_cselect_b32 s{sWt+1}, s{sPtr+9}, s{sPtr+11}
    s_cmp_ge_u32 s{sCb}, 10
    s_cselect_b32 s{sWt}, s{sPtr+2}, s{sWt}
    s_cselect_b32 s{sWt+1}, s{sPtr+3}, s{sWt+1}
    s_add_u32 s{sX}, s{sPtr}, s{sSoX}
    s_addc_u32 s{sX+1}, s{sPtr+1}, 0
    {stamp(prof, kst) if kst else ''}
    """)
    if wsb: k(f"s_add_u32 s{sWS}, s{sWS}, {hex(wsb)}\ns_addc_u32 s{sWS+1}, s{sWS+1}, 0")
    if side: k(f"s_cmp_eq_u32 s{sCb}, 9\ns_cbranch_scc1 {side}")
    pre = pref_loads(*pref).get('pre', []) if pref else []
    for g in pre:
        for x in g: k(x)
    k(f"""
    buffer_load_dwordx4 v{vDx}, s[{sX}:{sX+3}], 0 offen lds
    s_add_u32 m0, s{sM0x}, 8192
    s_nop 0
    buffer_load_dwordx4 v{vDx}, s[{sX}:{sX+3}], s{t[0]} offen lds
    """)
    for i in range(3):
        k(f"""
        s_add_u32 m0, s{sM0w[i]}, {W_BASE}
        s_nop 0
        buffer_load_dwordx4 v{vDw[i]}, s[{sWt}:{sWt+3}], 0 offen lds
        """)

vPf = 240
def pref_setup(k):
    t = sT
    k(f"""
    s_movk_i32 s{sC+2}, 320
    s_lshr_b32 s{t[6]}, s{sW}, 2
    s_lshl_b32 s{t[6]}, s{t[6]}, 1
    s_cmp_ge_u32 s{sCb}, 10
    s_cselect_b32 s{t[0]}, 3, 2
    s_cselect_b32 s{t[1]}, 7, 3
    s_cselect_b32 s{t[6]}, s{t[6]}, 0
    s_cselect_b32 s{t[2]}, 512, s{sC+2}
    s_and_b32 s{t[3]}, s{sW}, 3
    s_lshl_b32 s{t[3]}, s{t[3]}, 3
    s_and_b32 s{t[7]}, s{sRb}, 7
    s_add_u32 s{t[3]}, s{t[3]}, s{t[7]}
    s_lshl_b32 s{t[3]}, s{t[3]}, 2
    s_add_u32 s{t[6]}, s{t[6]}, s{t[3]}
    v_lshrrev_b32 v5, s{t[0]}, v0
    v_add_u32 v5, s{t[6]}, v5
    v_mul_u32_u24 v5, s{t[4]}, v5
    v_and_b32 v6, s{t[1]}, v0
    v_lshlrev_b32 v6, 7, v6
    v_min_u32 v6, s{t[2]}, v6
    v_cmp_gt_u32 vcc, 16, v0
    v_add3_u32 v5, v5, v6, s{t[5]}
    s_lshr_b32 s{t[0]}, s2, 6
    v_cndmask_b32 v{vPf}, v13, v5, vcc
    s_lshl_b32 s{t[0]}, s{t[0]}, 3
    s_add_u32 s{t[0]}, s{t[0]}, s{sW}
    s_mul_i32 s{t[0]}, s{t[0]}, {4*1280}
    v_lshrrev_b32 v5, 1, v0
    v_mul_u32_u24 v5, 1280, v5
    v_and_b32 v6, 1, v0
    v_lshlrev_b32 v6, 7, v6
    v_cmp_gt_u32 vcc, 8, v0
    v_add3_u32 v5, v5, v6, s{t[0]}
    s_nop 0
    v_cndmask_b32 v{vPf+1}, v13, v5, vcc
    """)
def pref_loads(ww, wx, mod=""):
    t = sT
    out = {}
    for j in range(5):
        out.setdefault(wx[j], []).append([f"buffer_load_dword v{vPf+3}, v{vPf+1}, s[{sX}:{sX+3}], 0 offen offset:{256*j}{mod}"])
        out.setdefault(ww[j], []).append([f"s_mul_i32 s{t[1]}, s{sStr}, {4*j}", f"buffer_load_dword v{vPf+2}, v{vPf}, s[{sWt}:{sWt+3}], s{t[1]} offen{mod}"])
    out.pop(None, None)
    return out

def dma_group(n, NW, var):
    out = []
    if n >= 20: return out
    out.append([f"s_add_u32 s{sSoW}, s{sSoW}, s{sStr}"])
    for i in range(3):
        out.append([f"s_add_u32 m0, s{sM0w[i]}, {W_BASE + (n % NW) * wslot(var)}", None, f"buffer_load_dwordx4 v{vDw[i]}, s[{sWt}:{sWt+3}], s{sSoW} offen lds"])
    if n % 2 == 0:
        c = n // 2
        for h in range(2):
            out.append([f"s_add_u32 m0, s{sM0x}, {(c % 3) * X_SLOT + h * 8192}", f"s_mov_b32 s{sSoX}, {h * 64 * 1280 + c * 128}",
                        f"buffer_load_dwordx4 v{vDx}, s[{sX}:{sX+3}], s{sSoX} offen lds"])
    return out
def ndma(n): return 0 if n >= 20 else (5 if n % 2 == 0 else 3)

def p1_addr(k, var):
    t = sT
    pitch = 384 if var == 'F' else 672
    k(f"""
    v_and_b32 v13, 15, v0
    v_lshrrev_b32 v14, 4, v0
    v_lshrrev_b32 v15, 1, v13
    v_xor_b32 v15, v15, v14
    v_lshlrev_b32 v15, 4, v15
    v_lshl_add_u32 v15, v13, 7, v15
    s_lshl_b32 s{t[0]}, s{sTg}, 13
    v_add_u32 v{vXa[0][0]}, s{t[0]}, v15
    v_xor_b32 v{vXa[0][1]}, 4096, v{vXa[0][0]}
    v_xor_b32 v{vXa[1][0]}, 64, v{vXa[0][0]}
    v_xor_b32 v{vXa[1][1]}, 64, v{vXa[0][1]}
    v_lshrrev_b32 v13, 2, v0
    v_and_b32 v15, 7, v13
    v_and_b32 v13, 8, v13
    v_lshl_or_b32 v15, v13, 1, v15
    v_mul_u32_u24 v15, {pitch}, v15
    v_and_b32 v13, 3, v0
    v_mul_u32_u24 v13, {40 if var == 'QK' else 8}, v13
    """)
    if var == 'F':
        k(f"""
        v_bfe_u32 v14, v0, 3, 2
        v_xor_b32 v14, s{sCg}, v14
        v_lshl_add_u32 v13, v14, 5, v13
        s_mov_b32 s{t[0]}, {W_BASE}
        """)
    else:
        k(f"s_mul_i32 s{t[0]}, s{sCg}, 160\ns_add_u32 s{t[0]}, s{t[0]}, {W_BASE}")
    k(f"""
    v_add3_u32 v{vWa[0]}, v13, v15, s{t[0]}
    v_add_u32 v{vWa[1]}, {2*wslot(var)}, v{vWa[0]}
    """)

def frag_reads(var, s, NW):
    fs = FR[s & 1]
    out = []
    for tt in range(4):
        out.append(f"ds_read_b128 v[{fs+4*tt}:{fs+4*tt+3}], v{vXa[s & 1][tt >> 1]} offset:{((s // 2) % 3) * X_SLOT + (tt & 1) * 2048}")
    slot = s % NW
    hb = 1 if slot >= 2 else 0
    so = (slot - 2 * hb) * wslot(var)
    w0 = fs + 16
    if var == 'F':
        for sl in range(3):
            for up in range(2):
                r = w0 + 4 * (2 * sl + up)
                for j in range(2):
                    out.append(f"ds_read_b64_tr_b16 v[{r+2*j}:{r+2*j+1}], v{vWa[hb]} offset:{so + up * W_UP + 128 * sl + j * 8 * 384}")
    else:
        for tl in range(5):
            r = w0 + 4 * tl
            for j in range(2):
                out.append(f"ds_read_b64_tr_b16 v[{r+2*j}:{r+2*j+1}], v{vWa[hb]} offset:{so + tl * (8 if var == 'QK' else 32) + j * 8 * 672}")
    return out

def acc_reg(var, tt, c):
    return ACC + 4 * (tt * (6 if var == 'F' else 5) + c)
def mfmas(var, s):
    fs = FR[s & 1]
    out = []
    nc = 6 if var == 'F' else 5
    for tt in range(4):
        for c in range(nc):
            d = acc_reg(var, tt, c)
            X, W = f"v[{fs+4*tt}:{fs+4*tt+3}]", f"v[{fs+16+4*c}:{fs+19+4*c}]"
            a, b = (X, W) if var == 'V' else (W, X)
            out.append(f"v_mfma_f32_16x16x32_bf16 v[{d}:{d+3}], {a}, {b}, " + ("0" if s == 0 else f"v[{d}:{d+3}]"))
    return out

def p1_loop(k, var, NW, prof=False, compute=True, hooks=None, pro=None, pbar=(0, 1), fine=True, paced=False, tail=None, nobar=(), il=0):
    hooks = hooks or {}
    vq = VQ([0] * 5)
    nxt = 2 if paced else NW
    for n in range(1, nxt):
        if n - 1 in pbar: k("s_barrier")
        for g in dma_group(n, NW, var): vq.add(k, g, n)
    p1_addr(k, var)
    if pro: pro(k, vq)
    k(f"s_waitcnt vmcnt({vq.wait(0)})")
    k("s_barrier")
    k(stamp(prof, 1))
    for x in frag_reads(var, 0, NW): k(x)
    for (tag, y) in hooks.get('b', []): vq.add(k, y, tag)
    if paced:
        for g in dma_group(2, NW, var): vq.add(k, g, 2)
        nxt = 3
    for s in range(20):
        k(f"s_waitcnt vmcnt({vq.wait(s + 1)}) lgkmcnt(0)")
        if s not in nobar: k("s_barrier")
        if prof in ("rt", "ct") and fine and s % 2 == 1: k(stamp(prof, 2 + s // 2))
        m = mfmas(var, s) if compute else []
        r = frag_reads(var, s + 1, NW) if (s < 19 and compute) else []
        g = list(hooks.get(s - 0.5, []))
        for _ in range(2):
            if nxt <= s + NW and nxt < 20:
                y = dma_group(nxt, NW, var)
                g += [(nxt, y[0] + y[1])] + [(nxt, z) for z in y[2:]]
                nxt += 1
        g += [(tag, y) for (tag, y) in hooks.get(s, [])]
        seq = []
        ri = gi = 0
        slots = len(m) - (len(r) + 1) // 2
        every = 2 if slots >= 2 * len(g) else 1
        if il == 0:
            for i, x in enumerate(m):
                seq.append(x)
                if ri < len(r):
                    seq += r[ri:ri + 2]; ri += 2
                elif gi < len(g) and (i % every == 0):
                    seq += vq.note(g[gi][1], g[gi][0]); gi += 1
        else:
            free = len(m) - len(r)
            for i, x in enumerate(m):
                seq.append(x)
                if il == 1: rd, lim = True, lambda j: j * (len(m) - 1) <= i * len(g)
                elif il == 2: rd, lim = True, lambda j: i >= len(r) and j * free <= (i - len(r)) * len(g)
                elif il == 3: rd, lim = i >= min(free, len(g)), lambda j: j * min(free, len(g)) <= i * len(g)
                else:
                    gap = [(2 * j + 1) * len(m) // (2 * free) for j in range(free)]
                    rd, lim = i not in gap, lambda j: i in gap and j * free <= gap.index(i) * len(g)
                if rd and ri < len(r):
                    seq.append(r[ri]); ri += 1
                while gi < len(g) and lim(gi):
                    seq += vq.note(g[gi][1], g[gi][0]); gi += 1
            assert ri == len(r)
        for y in g[gi:]: seq += vq.note(y[1], y[0])
        if s == 19 and tail:
            seq, nc = [], len(m) // 4
            for i, x in enumerate(m):
                seq.append(x)
                tt, c = divmod(i, nc)
                if tt >= 2:
                    e = tail[tt - 2]
                    seq += e[c * len(e) // nc:(c + 1) * len(e) // nc]
                elif i == 0: seq += tail[4]
            seq += tail[2] + tail[3]
        for x in seq: k(x or "s_nop 0")
    k(stamp(prof, 12 if (prof in ("rt", "ct") and fine) else 2))
    return vq

def gelu_consts(k):
    c1 = -2.0 * 1.4426950408889634 * (2.0 / 3.141592653589793) ** 0.5
    k(f"""
    s_mov_b32 s60, {f32hex(c1 * 0.044715)}
    s_mov_b32 s61, {f32hex(c1 * 0.044715)}
    v_mov_b32 v220, {f32hex(c1)}
    v_mov_b32 v221, {f32hex(c1)}
    """)
def gelu_math(var):
    items = []
    for tt in range(4):
        for sl in range(2): items.append((tt, sl, HP + 4 * tt + 2 * sl))
        items.append((tt, 2, HP + 16 + 2 * tt))
    P = lambda r: f"v[{r}:{r+1}]"
    def stage(n, ph):
        tt, sl, dst = items[n]
        g, u = acc_reg(var, tt, 2 * sl), acc_reg(var, tt, 2 * sl + 1)
        z = 16 + 4 * (n % 4)
        if ph == 0:
            return [f"v_pk_mul_f32 {P(z+2*h)}, {P(g+2*h)}, {P(g+2*h)}" for h in range(2)] + \
                   [f"v_pk_fma_f32 {P(z+2*h)}, {P(z+2*h)}, s[60:61], v[220:221]" for h in range(2)] + \
                   [f"v_pk_mul_f32 {P(z+2*h)}, {P(z+2*h)}, {P(g+2*h)}" for h in range(2)]
        if ph == 1:
            return [f"v_exp_f32 v{z+i}, v{z+i}" for i in range(4)] + [f"v_pk_mul_f32 {P(u+2*h)}, {P(u+2*h)}, {P(g+2*h)}" for h in range(2)] + \
                   [f"v_pk_add_f32 {P(z+2*h)}, {P(z+2*h)}, 1.0 op_sel_hi:[1,0]" for h in range(2)]
        return [f"v_rcp_f32 v{z+i}, v{z+i}" for i in range(4)] + ["s_nop 0"] + [f"v_pk_mul_f32 {P(u+2*h)}, {P(u+2*h)}, {P(z+2*h)}" for h in range(2)] + \
               [f"v_cvt_pk_bf16_f32 v{dst+h}, v{u+2*h}, v{u+2*h+1}" for h in range(2)]
    out = []
    for n in range(len(items)):
        for ph in range(3): out += stage(n, ph)
    return out

def h_swaps():
    return [f"v_permlane32_swap_b32 v{HP+16+4*pr+h}, v{HP+18+4*pr+h}" for pr in range(2) for h in range(2)]

def qk_epilogue(k):
    t = sT
    LK, LJ = k.uniq("isk"), k.uniq("qkj")
    k(f"""
    s_and_b32 s{t[3]}, s{sCb}, 1
    s_lshl_b32 s{t[3]}, s{t[3]}, 2
    s_add_u32 s{t[3]}, s{t[3]}, s{sCg}
    s_lshl_b32 s{t[3]}, s{t[3]}, 8
    s_lshl_b32 s{t[4]}, s{sRb}, 2
    s_add_u32 s{t[3]}, s{t[3]}, s{t[4]}
    s_lshl_b32 s{t[4]}, s{sTg}, 1
    s_add_u32 s{t[3]}, s{t[3]}, s{t[4]}
    v_and_b32 v13, 15, v0
    v_lshrrev_b32 v14, 4, v0
    s_cmp_ge_u32 s{sCb}, 12
    s_cbranch_scc1 {LK}
    s_mov_b32 s{t[0]}, {WS_Q}
    s_mov_b32 s{t[1]}, {Q_TILE}
    s_mov_b32 s{t[5]}, 16
    s_mov_b32 s{sC}, {f32hex(QSCALE)}
    s_mov_b32 s{sC+1}, {f32hex(QSCALE)}
    """)
    for r in range(0, 80, 2): k(f"v_pk_mul_f32 v[{ACC+r}:{ACC+r+1}], v[{ACC+r}:{ACC+r+1}], s[{sC}:{sC+1}]")
    k(f"""
    s_branch {LJ}
    {LK}:
    s_mov_b32 s{t[0]}, {WS_KV}
    s_mov_b32 s{t[1]}, {KV_TILE}
    s_mov_b32 s{t[5]}, 8
    v_and_b32 v15, 8, v13
    v_add_u32 v13, v13, v15
    {LJ}:
    s_mul_i32 s{t[3]}, s{t[3]}, s{t[1]}
    s_add_u32 s{t[0]}, s{t[0]}, s{t[3]}
    s_add_u32 s{sO}, s{sWS}, s{t[0]}
    s_addc_u32 s{sO+1}, s{sWS+1}, 0
    s_lshl_b32 s{t[2]}, s{t[1]}, 6
    s_lshl_b32 s{sO+2}, s{t[1]}, 8
    v_mul_u32_u24 v14, s{t[2]}, v14
    v_add_u32 v15, s{t[5]}, v13
    v_lshl_add_u32 v5, v13, 4, v14
    v_lshl_add_u32 v6, v15, 4, v14
    v_lshl_add_u32 v7, v13, 3, v14
    v_lshl_add_u32 v8, v15, 3, v14
    """)
    for tt in range(4):
        o = 16 + 12 * tt
        for c in range(5):
            a = acc_reg('QK', tt, c)
            for h in range(2): k(f"v_cvt_pk_bf16_f32 v{o+2*c+h}, v{a+2*h}, v{a+2*h+1}")
        so = "0" if tt < 2 else f"s{t[1]}"
        k(f"buffer_store_dwordx4 v[{o}:{o+3}], v{5+(tt&1)}, s[{sO}:{sO+3}], {so} offen{SC1}")
        k(f"buffer_store_dwordx4 v[{o+4}:{o+7}], v{5+(tt&1)}, s[{sO}:{sO+3}], {so} offen offset:512{SC1}")
        k(f"buffer_store_dwordx2 v[{o+8}:{o+9}], v{7+(tt&1)}, s[{sO}:{sO+3}], {so} offen offset:1024{SC1}")

def v_epilogue(k):
    t = sT
    k(f"""
    s_and_b32 s{t[3]}, s{sCb}, 1
    s_lshl_b32 s{t[3]}, s{t[3]}, 2
    s_add_u32 s{t[3]}, s{t[3]}, s{sCg}
    s_lshl_b32 s{t[3]}, s{t[3]}, 8
    s_lshl_b32 s{t[4]}, s{sRb}, 2
    s_add_u32 s{t[3]}, s{t[3]}, s{t[4]}
    s_lshl_b32 s{t[4]}, s{sTg}, 1
    s_add_u32 s{t[3]}, s{t[3]}, s{t[4]}
    s_mul_i32 s{t[3]}, s{t[3]}, {KV_TILE}
    s_add_u32 s{t[3]}, s{t[3]}, {WS_KV}
    s_add_u32 s{sO}, s{sWS}, s{t[3]}
    s_addc_u32 s{sO+1}, s{sWS+1}, 0
    s_mov_b32 s{sO+2}, {4*KV_HEAD}
    s_mov_b32 s{t[0]}, {KV_HEAD - 320}
    v_lshrrev_b32 v14, 4, v0
    v_mul_u32_u24 v14, 320, v14
    v_and_b32 v13, 15, v0
    """)
    for c in range(5):
        k(f"""
        v_add_u32 v15, {16*c}, v13
        v_mul_u32_u24 v{5+c}, 3277, v15
        v_lshrrev_b32 v{5+c}, 16, v{5+c}
        v_mul_u32_u24 v{5+c}, s{t[0]}, v{5+c}
        v_lshl_add_u32 v15, v15, 4, v14
        v_add_u32 v{5+c}, v{5+c}, v15
        """)
    n = 0
    for pr in range(2):
        for c in range(5):
            o = 16 + 4 * n; n += 1
            for b in range(2):
                a = acc_reg('V', 2 * pr + b, c)
                for h in range(2): k(f"v_cvt_pk_bf16_f32 v{o+2*b+h}, v{a+2*h}, v{a+2*h+1}")
            k(f"buffer_store_dwordx4 v[{o}:{o+3}], v{5+c}, s[{sO}:{sO+3}], 0 offen offset:{1280 + pr*KV_TILE}{SC1}")

def qk_tail():
    t = sT
    pre = f"""
    s_and_b32 s{t[3]}, s{sCb}, 1
    s_lshl_b32 s{t[3]}, s{t[3]}, 2
    s_add_u32 s{t[3]}, s{t[3]}, s{sCg}
    s_lshl_b32 s{t[3]}, s{t[3]}, 8
    s_lshl_b32 s{t[4]}, s{sRb}, 2
    s_add_u32 s{t[3]}, s{t[3]}, s{t[4]}
    s_lshl_b32 s{t[4]}, s{sTg}, 1
    s_add_u32 s{t[3]}, s{t[3]}, s{t[4]}
    v_and_b32 v13, 15, v0
    v_lshrrev_b32 v14, 4, v0
    s_mov_b32 s{t[0]}, {WS_Q}
    s_mov_b32 s{t[1]}, {Q_TILE}
    s_mov_b32 s{sC}, {f32hex(QSCALE)}
    s_cmp_ge_u32 s{sCb}, 12
    s_cselect_b32 s{t[0]}, {WS_KV}, s{t[0]}
    s_cselect_b32 s{t[1]}, {KV_TILE}, s{t[1]}
    s_cselect_b32 s{t[5]}, 8, 16
    s_cselect_b32 s{t[6]}, 8, 0
    s_cselect_b32 s{sC}, 1.0, s{sC}
    s_mov_b32 s{sC+1}, s{sC}
    v_and_b32 v15, s{t[6]}, v13
    v_add_u32 v13, v13, v15
    s_mul_i32 s{t[3]}, s{t[3]}, s{t[1]}
    s_add_u32 s{t[0]}, s{t[0]}, s{t[3]}
    s_add_u32 s{sO}, s{sWS}, s{t[0]}
    s_addc_u32 s{sO+1}, s{sWS+1}, 0
    s_lshl_b32 s{t[2]}, s{t[1]}, 6
    s_lshl_b32 s{sO+2}, s{t[1]}, 8
    v_mul_u32_u24 v14, s{t[2]}, v14
    v_add_u32 v15, s{t[5]}, v13
    v_lshl_add_u32 v5, v13, 4, v14
    v_lshl_add_u32 v6, v15, 4, v14
    v_lshl_add_u32 v7, v13, 3, v14
    v_lshl_add_u32 v8, v15, 3, v14
    """
    out = []
    for tt in range(4):
        o = 16 + 12 * tt
        e = []
        for c in range(5):
            a = acc_reg('QK', tt, c)
            e += [f"v_pk_mul_f32 v[{a+2*h}:{a+2*h+1}], v[{a+2*h}:{a+2*h+1}], s[{sC}:{sC+1}]" for h in range(2)]
            e += [f"v_cvt_pk_bf16_f32 v{o+2*c+h}, v{a+2*h}, v{a+2*h+1}" for h in range(2)]
            so = "0" if tt < 2 else f"s{t[1]}"
            if c == 1: e.append(f"buffer_store_dwordx4 v[{o}:{o+3}], v{5+(tt&1)}, s[{sO}:{sO+3}], {so} offen{SC1}")
            if c == 3: e.append(f"buffer_store_dwordx4 v[{o+4}:{o+7}], v{5+(tt&1)}, s[{sO}:{sO+3}], {so} offen offset:512{SC1}")
            if c == 4: e.append(f"buffer_store_dwordx2 v[{o+8}:{o+9}], v{7+(tt&1)}, s[{sO}:{sO+3}], {so} offen offset:1024{SC1}")
        out.append(e)
    return out + [[x.strip() for x in pre.strip().split("\n")]]

def v_tail():
    t = sT
    pre = f"""
    s_and_b32 s{t[3]}, s{sCb}, 1
    s_lshl_b32 s{t[3]}, s{t[3]}, 2
    s_add_u32 s{t[3]}, s{t[3]}, s{sCg}
    s_lshl_b32 s{t[3]}, s{t[3]}, 8
    s_lshl_b32 s{t[4]}, s{sRb}, 2
    s_add_u32 s{t[3]}, s{t[3]}, s{t[4]}
    s_lshl_b32 s{t[4]}, s{sTg}, 1
    s_add_u32 s{t[3]}, s{t[3]}, s{t[4]}
    s_mul_i32 s{t[3]}, s{t[3]}, {KV_TILE}
    s_add_u32 s{t[3]}, s{t[3]}, {WS_KV}
    s_add_u32 s{sO}, s{sWS}, s{t[3]}
    s_addc_u32 s{sO+1}, s{sWS+1}, 0
    s_mov_b32 s{sO+2}, {4*KV_HEAD}
    s_mov_b32 s{t[0]}, {KV_HEAD - 320}
    v_lshrrev_b32 v14, 4, v0
    v_mul_u32_u24 v14, 320, v14
    v_and_b32 v13, 15, v0
    """
    for c in range(5):
        pre += f"""v_add_u32 v15, {16*c}, v13
        v_mul_u32_u24 v{5+c}, 3277, v15
        v_lshrrev_b32 v{5+c}, 16, v{5+c}
        v_mul_u32_u24 v{5+c}, s{t[0]}, v{5+c}
        v_lshl_add_u32 v15, v15, 4, v14
        v_add_u32 v{5+c}, v{5+c}, v15
        """
    out = []
    for tt in range(4):
        pr, b = divmod(tt, 2)
        e = []
        for c in range(5):
            o = 16 + 4 * (5 * pr + c)
            a = acc_reg('V', tt, c)
            e += [f"v_cvt_pk_bf16_f32 v{o+2*b+h}, v{a+2*h}, v{a+2*h+1}" for h in range(2)]
            if b: e.append(f"buffer_store_dwordx4 v[{o}:{o+3}], v{5+c}, s[{sO}:{sO+3}], 0 offen offset:{1280 + pr*KV_TILE}{SC1}")
        out.append(e)
    return out + [[x.strip() for x in pre.strip().split("\n")]]

LATE_SZ = WS_SYNC
BIGV = 0x7fff0000
def side_prog(k, vq, mid=None):
    t = sT
    sJ, sA, sB1, sB2_, sCj, sSt, sCq = t[0], t[1], t[2], t[3], t[4], t[5], t[6]
    sK = 32
    vRow, vHi, vAd, vTr, vSt = 1, 2, 3, 4, 5
    k(f"""
    v_bfe_u32 v6, v0, 3, 2
    v_mul_u32_u24 v6, 1280, v6
    v_and_b32 v7, 7, v0
    v_lshl_add_u32 v{vRow}, v7, 4, v6
    v_lshrrev_b32 v6, 5, v0
    v_mul_u32_u24 v{vHi}, 1280, v6
    v_lshrrev_b32 v6, 4, v0
    v_lshlrev_b32 v6, 10, v6
    v_bfe_u32 v7, v0, 2, 2
    v_lshl_add_u32 v6, v7, 7, v6
    v_and_b32 v7, 3, v0
    v_lshl_add_u32 v6, v7, 3, v6
    s_mul_i32 s{sSoX}, s{sW}, 20480
    v_add_u32 v{vTr}, s{sSoX}, v6
    v_lshlrev_b32 v{vSt}, 4, v0
    s_add_u32 s{sO}, s{sWS}, {WS_B2}
    s_addc_u32 s{sO+1}, s{sWS+1}, 0
    s_mov_b32 s{sO+2}, {8*B2_BLK}
    """)
    sSo = 56
    k(f"s_mov_b32 s{sSo}, s{sSoX}")
    def loads(i, slot):
        L = [k.uniq(f"ty{j}") for j in range(4)]
        k(f"""
        s_lshl_b32 s{sJ}, s{sRb}, 3
        s_add_u32 s{sJ}, s{sJ}, s{sW}
        s_add_u32 s{sJ}, s{sJ}, {128 * i}
        s_mul_i32 s{sSt}, s{sJ}, 6554
        s_lshr_b32 s{sSt}, s{sSt}, 16
        s_mul_i32 s{sCq}, s{sSt}, 10
        s_sub_u32 s{sCq}, s{sJ}, s{sCq}
        s_mov_b32 s{sB1}, {4*1280}
        s_mov_b32 s{sCj}, 8
        """)
        lo, hi = 128 * i // 10, (128 * i + 127) // 10
        kinds = [(0, 36), (36, 54), (54, 70), (70, 77)]
        use = [j for j, (a, b) in enumerate(kinds) if a <= hi and b > lo]
        for j in use[1:][::-1]: k(f"s_cmp_ge_u32 s{sSt}, {kinds[j][0]}\ns_cbranch_scc1 {L[j]}")
        LJ = k.uniq("tyj")
        for j in use:
            if j != use[0]: k.label(L[j])
            if j == 0:
                k(f"""
                s_lshr_b32 s{sA}, s{sSt}, 2
                s_lshl_b32 s{sA}, s{sA}, 3
                s_add_u32 s{sA}, s{sA}, s{sSt}
                s_lshl_b32 s{sA}, s{sA}, 4
                s_mov_b32 s{sB2_}, {8*1280}
                s_mov_b32 s{sCj}, 64
                """)
            elif j == 1:
                k(f"""
                s_sub_u32 s{sA}, s{sSt}, 36
                s_lshr_b32 s{t[7]}, s{sA}, 1
                s_lshl_b32 s{t[7]}, s{t[7]}, 2
                s_add_u32 s{sA}, s{sA}, s{t[7]}
                s_add_u32 s{sA}, s{sA}, 4
                s_lshl_b32 s{sA}, s{sA}, 5
                s_mov_b32 s{sB2_}, {16*1280}
                """)
            elif j == 2:
                k(f"s_sub_u32 s{sA}, s{sSt}, 54\ns_mul_i32 s{sA}, s{sA}, 40\ns_mov_b32 s{sB2_}, {20*1280}")
            else:
                k(f"""
                s_sub_u32 s{sA}, s{sSt}, 70
                s_mul_i32 s{sA}, s{sA}, 160
                s_add_u32 s{sA}, s{sA}, 16
                s_mov_b32 s{sB1}, {40*1280}
                s_mov_b32 s{sB2_}, {80*1280}
                s_mov_b32 s{sCj}, 20
                """)
            if j != use[-1]: k(f"s_branch {LJ}")
        k.label(LJ)
        k(f"""
        v_mad_u32_u24 v{vAd}, v{vHi}, s{sCj}, v{vRow}
        s_mul_i32 s{sA}, s{sA}, 1280
        s_lshl_b32 s{t[7]}, s{sCq}, 7
        s_add_u32 s{sA}, s{sA}, s{t[7]}
        s_lshl_b32 s{sK+2*i+1}, s{sCq}, 2
        s_mul_i32 s{sK+2*i}, s{sSt}, 5120
        s_mov_b32 s{t[7]}, {1728*1280}
        s_cmp_ge_u32 s{sSt}, 54
        s_cselect_b32 s{sWt}, s{sPtr+4}, s{sPtr+12}
        s_cselect_b32 s{sWt+1}, s{sPtr+5}, s{sPtr+13}
        s_cselect_b32 s{sWt+2}, {640*1280}, s{t[7]}
        """)
        if hi >= NSTEP:
            k(f"""
            s_cmp_ge_u32 s{sSt}, {NSTEP}
            s_cselect_b32 s{sA}, 0x7f000000, s{sA}
            s_cselect_b32 s{sK+2*i}, 0x7f000000, s{sK+2*i}
            """)
        ld = lambda so: f"buffer_load_dwordx4 v{vAd}, s[{sWt}:{sWt+3}], s{so} offen lds"
        vq.add(k, [f"s_add_u32 m0, s{sSo}, {4096*slot}", f"s_add_u32 s{sB1}, s{sA}, s{sB1}", ld(sA),
                   "s_add_u32 m0, m0, 1024", f"s_add_u32 s{sA}, s{sA}, s{sB2_}", ld(sB1),
                   "s_add_u32 m0, m0, 1024", f"s_add_u32 s{sB1}, s{sB1}, s{sB2_}", ld(sA),
                   "s_add_u32 m0, m0, 1024", None, ld(sB1)], ('j', i))
    for i in range(5): loads(i, i)
    if mid: mid(k, vq)
    for i in range(6):
        D = 16 + 16 * i
        k(f"s_waitcnt vmcnt({vq.wait(('j', i))})")
        for c in range(4):
            for j in range(2): k(f"ds_read_b64_tr_b16 v[{D+4*c+2*j}:{D+4*c+2*j+1}], v{vTr} offset:{4096*(i % 5) + 32*c + 512*j}")
        if i == 0:
            k("s_waitcnt lgkmcnt(0)")
            loads(5, 0)
        for c in range(4):
            vq.add(k, [f"s_mul_i32 s{t[0]}, s{sK+2*i+1}, 13108", f"s_lshr_b32 s{t[0]}, s{t[0]}, 16", f"s_mul_i32 s{t[0]}, s{t[0]}, {B2_BLK - 5120}",
                       f"s_lshl_b32 s{t[1]}, s{sK+2*i+1}, 10", f"s_add_u32 s{t[0]}, s{t[0]}, s{t[1]}", f"s_add_u32 s{t[0]}, s{t[0]}, s{sK+2*i}",
                       f"s_add_u32 s{sK+2*i+1}, s{sK+2*i+1}, 1", f"s_waitcnt lgkmcnt({6 - 2*c})",
                       f"buffer_store_dwordx4 v[{D+4*c}:{D+4*c+3}], v{vSt}, s[{sO}:{sO+3}], s{t[0]} offen{SC1}"], 'st')
    GX, GW = 112, 192
    k(f"""
    s_mul_i32 s{t[0]}, s{sW}, {16*1280}
    v_lshrrev_b32 v6, 4, v0
    v_mul_u32_u24 v7, 1280, v6
    v_and_b32 v8, 15, v0
    v_lshlrev_b32 v9, 4, v8
    v_add3_u32 v7, v7, v9, s{t[0]}
    """)
    vq.add(k, [f"global_load_dwordx4 v[{GW+4*i}:{GW+3+4*i}], v9, s[{sPtr+14}:{sPtr+15}] offset:{256*i}" for i in range(5)], 'gw')
    for r in range(4):
        vq.add(k, [f"s_mov_b32 s{t[1]}, {5120*r}"] + [f"buffer_load_dwordx4 v[{GX+20*r+4*i}:{GX+20*r+3+4*i}], v7, s[{sX}:{sX+3}], s{t[1]} offen offset:{256*i}" for i in range(5)], ('gx', r))
    k(f"""
    s_lshl_b32 s{t[1]}, s{sRb}, 9
    s_add_u32 s{t[1]}, s{t[1]}, {WS_G}
    s_add_u32 s{sO}, s{sWS}, s{t[1]}
    s_addc_u32 s{sO+1}, s{sWS+1}, 0
    s_mov_b32 s{sO+2}, 512
    s_lshl_b32 s{t[0]}, s{sW}, 4
    v_and_b32 v9, 3, v0
    v_lshl_add_u32 v6, v9, 2, v6
    v_add_u32 v6, s{t[0]}, v6
    v_lshlrev_b32 v6, 2, v6
    v_and_b32 v8, 12, v0
    v_lshl_add_u32 v6, v8, 20, v6
    """)
    for r in range(4):
        k(f"v_mov_b32 v{16+2*r}, 0\nv_mov_b32 v{17+2*r}, 0")
        k(f"s_waitcnt vmcnt({vq.wait('gw', ('gx', r))})")
        for i in range(20): k(f"v_dot2_f32_bf16 v{16+2*r+(i&1)}, v{GX+20*r+i}, v{GW+i}, v{16+2*r+(i&1)}")
    k("s_nop 3")
    for r in range(4): k(f"v_add_f32 v{16+2*r}, v{16+2*r}, v{17+2*r}")
    for sh in (8, 4, 2, 1):
        k("s_nop 0")
        for r in range(4): k(f"v_add_f32_dpp v{16+2*r}, v{16+2*r}, v{16+2*r} row_ror:{sh} row_mask:0xf bank_mask:0xf")
    for r in range(1, 4): k(f"v_cmp_eq_u32 vcc, {r}, v9\ns_nop 1\nv_cndmask_b32 v16, v16, v{16+2*r}, vcc")
    k(f"""
    v_mul_f32 v16, {f32hex(-1.4426950408889634)}, v16
    v_exp_f32 v16, v16
    s_nop 0
    v_add_f32 v16, 1.0, v16
    v_rcp_f32 v16, v16
    s_nop 0
    buffer_store_dword v16, v6, s[{sO}:{sO+3}], 0 offen{SC1}
    """)

def late_setup(k, var):
    t = sT
    if var != 'F':
        k(f"s_mov_b32 s{sO+2}, 0")
        for r in (HP + 24, HP + 25, HP + 26): k(f"v_mov_b32 v{r}, {hex(BIGV)}")
        return
    k(f"""
    s_lshl_b32 s{t[2]}, s{sRb}, 1
    s_add_u32 s{t[2]}, s{t[2]}, s{sTg}
    s_mul_i32 s{t[2]}, s{t[2]}, {A2_BLK}
    s_add_u32 s{t[2]}, s{t[2]}, {WS_A2}
    s_add_u32 s{sO}, s{sWS}, s{t[2]}
    s_addc_u32 s{sO+1}, s{sWS+1}, 0
    s_mov_b32 s{sO+2}, {A2_BLK}
    s_lshl_b32 s{t[0]}, s{sCb}, 2
    s_add_u32 s{t[0]}, s{t[0]}, s{sCg}
    s_lshl_b32 s{t[0]}, s{t[0]}, 12
    s_lshl_b32 s{t[1]}, s{sCb}, 1
    s_lshr_b32 s{t[2]}, s{sCg}, 1
    s_add_u32 s{t[1]}, s{t[1]}, s{t[2]}
    s_add_u32 s{t[1]}, s{t[1]}, 36
    s_lshl_b32 s{t[1]}, s{t[1]}, 3
    s_and_b32 s{t[2]}, s{sCg}, 1
    s_add_u32 s{t[1]}, s{t[1]}, s{t[2]}
    s_lshl_b32 s{t[1]}, s{t[1]}, 9
    v_lshlrev_b32 v13, 4, v0
    v_add_u32 v{HP+24}, s{t[0]}, v13
    v_xor_b32 v{HP+25}, 2048, v{HP+24}
    v_and_b32 v{HP+26}, 512, v13
    v_add3_u32 v{HP+26}, v{HP+26}, v13, s{t[1]}
    """)
def late_stores():
    out = [f"buffer_store_dwordx4 v[{HP+4*tt}:{HP+4*tt+3}], v{HP+24+(tt>>1)}, s[{sO}:{sO+3}], 0 offen offset:{(tt&1)*1024}{SC1}" for tt in range(4)]
    out += [f"buffer_store_dwordx4 v[{HP+16+4*pr}:{HP+19+4*pr}], v{HP+26}, s[{sO}:{sO+3}], 0 offen offset:{2048*pr}{SC1}" for pr in range(2)]
    return out
```
